```python
import torch

def _softmax(x, axis=-1):
    return torch.softmax(x, dim=axis)
def _gelu(x):
    return torch.nn.functional.gelu(x, approximate="tanh")
def _silu(x):
    return torch.nn.functional.silu(x)
def _sigmoid(x):
    return torch.sigmoid(x)
def _layernorm(x, axis=-1, eps=1e-5):
    m = x.mean(dim=axis, keepdim=True)
    v = x.var(dim=axis, keepdim=True, unbiased=False)
    return (x - m) / torch.sqrt(v + eps)
def _scatter_add(tgt, idx, src, axis=0):
    return tgt.clone().index_add_(axis, idx, src)
def _segment_sum(src, seg, n):
    out = torch.zeros((n,) + src.shape[1:], dtype=src.dtype)
    return out.index_add_(0, seg, src)
def _pad(x, pw):
    flat = tuple(v for pair in reversed(pw) for v in pair)
    return torch.nn.functional.pad(x, flat)

kernel_name = 'gated_mix__grouped_kv_mqa__ssm_conv_s5__prompt'

def setup_inputs():

    _w = (lambda a: (lambda t: t.to(torch.bfloat16) if t.is_floating_point() else t)(torch.as_tensor(a)))
    def _A_setup():
        B, S, D, H = 1, 2048, 448, 16
        Dh = D // H
        return {
            "x": _w((lambda *s: torch.randn(*s, dtype=torch.bfloat16) * 0.05)(B, S, D)),
            "wq": _w((lambda *s: torch.randn(*s, dtype=torch.bfloat16) * 1.6)(D, H * Dh)),
            "wk": _w((lambda *s: torch.randn(*s, dtype=torch.bfloat16) * 1.6)(D, Dh)),
            "wv": _w((lambda *s: torch.randn(*s, dtype=torch.bfloat16) * 0.05)(D, Dh)),
            "wo": _w((lambda *s: torch.randn(*s, dtype=torch.bfloat16) * 0.05)(H * Dh, D)),
        }
    _A_in = _A_setup()

    def _B_setup():
        B, S, D = 1, 2048, 448
        P = D
        Lambda_re = -0.5 * (lambda _x: torch.exp(torch.as_tensor(_x)))((lambda *s: torch.randn(*s, dtype=torch.bfloat16) * 0.4)(P))
        Lambda_im = (lambda *s: torch.randn(*s, dtype=torch.bfloat16) * 0.8)(P) * 1.0
        B_re = (lambda *s: torch.randn(*s, dtype=torch.bfloat16) * 0.4)(P, D) * (D ** -0.5)
        B_im = (lambda *s: torch.randn(*s, dtype=torch.bfloat16) * 0.4)(P, D) * (D ** -0.5)
        C_re = (lambda *s: torch.randn(*s, dtype=torch.bfloat16) * 0.4)(D, P) * (P ** -0.5)
        C_im = (lambda *s: torch.randn(*s, dtype=torch.bfloat16) * 0.4)(D, P) * (P ** -0.5)
        log_dt = (lambda *s: torch.randn(*s, dtype=torch.bfloat16) * 0.4)(P) * 0.3 - 2.0
        Dskip = (lambda *s: torch.randn(*s, dtype=torch.bfloat16) * 0.2)(D)
        return {
            "x": _w((lambda *s: torch.randn(*s, dtype=torch.bfloat16) * 0.05)(B, S, D)),
            "Lambda_re": _w(Lambda_re),
            "Lambda_im": _w(Lambda_im),
            "B_re": _w(B_re),
            "B_im": _w(B_im),
            "C_re": _w(C_re),
            "C_im": _w(C_im),
            "log_dt": _w(log_dt),
            "Dskip": _w(Dskip),
        }
    _B_in = _B_setup()

    return {
        "A_x": _A_in["x"],
        "A_wq": _A_in["wq"],
        "A_wk": _A_in["wk"],
        "A_wv": _A_in["wv"],
        "A_wo": _A_in["wo"],
        "B_x": _B_in["x"],
        "B_Lambda_re": _B_in["Lambda_re"],
        "B_Lambda_im": _B_in["Lambda_im"],
        "B_B_re": _B_in["B_re"],
        "B_B_im": _B_in["B_im"],
        "B_C_re": _B_in["C_re"],
        "B_C_im": _B_in["C_im"],
        "B_log_dt": _B_in["log_dt"],
        "B_Dskip": _B_in["Dskip"],
        "gate_w": _w((lambda *s: torch.randn(*s, dtype=torch.bfloat16) * 0.05)(448) * 16.0),
    }

def reference(A_x, A_wq, A_wk, A_wv, A_wo, B_x, B_Lambda_re, B_Lambda_im, B_B_re, B_B_im, B_C_re, B_C_im, B_log_dt, B_Dskip, gate_w):
    def _A_ref(x, wq, wk, wv, wo):
        B, S, D = x.shape
        H = 16
        Dh = D // H
        q = (lambda x, *d: x.permute(*d))((x @ wq).reshape(B, S, H, Dh), 0, 2, 1, 3)
        k = x @ wk
        v = x @ wv
        scores = torch.einsum("bhqd,bkd->bhqk", q, k) * (Dh ** -0.5)
        p = _softmax(scores, axis=-1)
        o = torch.einsum("bhqk,bkd->bhqd", p, v)
        return (lambda x, *d: x.permute(*d))(o, 0, 2, 1, 3).reshape(B, S, H * Dh) @ wo

    def _B_ref(x, Lambda_re, Lambda_im, B_re, B_im, C_re, C_im, log_dt, Dskip):
        Bsz, L, H = x.shape
        Lam = Lambda_re + 1j * Lambda_im
        Bmat = B_re + 1j * B_im
        Cmat = C_re + 1j * C_im
        dt = torch.exp(log_dt)
        Lam_bar = torch.exp(dt * Lam)
        B_bar = ((Lam_bar - 1.0) / Lam)[:, None] * Bmat
        Bu = torch.einsum("bld,pd->blp", x + 0j, B_bar)
        h = torch.zeros_like(Bu[:, 0, :])
        hs = []
        for t in range(L):
            h = Lam_bar[None, :] * h + Bu[:, t, :]
            hs.append(h)
        hseq = torch.stack(hs, 1)
        y = 2.0 * torch.einsum("blp,dp->bld", hseq, Cmat).real + x * Dskip[None, None, :]
        return y

    x = A_x
    g = _sigmoid((x * gate_w).sum(-1, keepdims=True))
    a = _A_ref(x, A_wq, A_wk, A_wv, A_wo)
    b = _B_ref(x, B_Lambda_re, B_Lambda_im, B_B_re, B_B_im, B_C_re, B_C_im, B_log_dt, B_Dskip)
    return g * a + (1 - g) * b
```

```python
class Asm:
    def __init__(self):
        self.lines = []
        self.uid = 0
    def __call__(self, s):
        for l in s.split("\n"):
            l = l.strip()
            if l: self.lines.append("    " + l)
    def label(self, l): self.lines.append(l + ":")
    def raw(self, l): self.lines.append(l)
    def comment(self, c): self.lines.append("    ; " + c)
    def newlabel(self, p="L"):
        self.uid += 1
        return "%s_%d" % (p, self.uid)
    def text(self): return "\n".join(self.lines) + "\n"

def vr(b, n=1):
    return "v%d" % b if n == 1 else "v[%d:%d]" % (b, b + n - 1)
def sr(b, n=1):
    return "s%d" % b if n == 1 else "s[%d:%d]" % (b, b + n - 1)

def kernel_footer(name, nvgpr, nsgpr=102, kernarg=144, accum=None):
    if accum is None: accum = min(256, (nvgpr + 3) // 4 * 4)
    return """.section .rodata,"a"
.p2align 6
.amdhsa_kernel %s
  .amdhsa_next_free_vgpr %d
  .amdhsa_next_free_sgpr %d
  .amdhsa_accum_offset %d
  .amdhsa_group_segment_fixed_size 0
  .amdhsa_kernarg_size %d
  .amdhsa_user_sgpr_count 2
  .amdhsa_user_sgpr_kernarg_segment_ptr 1
  .amdhsa_system_sgpr_workgroup_id_x 1
.end_amdhsa_kernel
""" % (name, nvgpr, nsgpr, accum, kernarg)

def kernel_header(name):
    return """.text
.globl %s
.p2align 8
.type %s,@function
%s:
""" % (name, name, name)
```

```python
from asmlib import *

class AttnRegs:
    def __init__(self, base):
        self.Q = base
        self.O = base + 32
        self.KV = base + 96
        self.S = base + 160
        self.P = base + 192
        self.end = base + 208

def attn_loop(a, R, voff, srd, soff, NT=16, ld_flags="sc1", tile_bytes=4096, stamp=None, tripstamps=None, place="b", zero_o=True):
    nsteps = NT * 4
    def load_one(m, i):
        b = m % 4
        a("buffer_load_dwordx4 %s, %s, %s, %s offen offset:%d %s" % (vr(R.KV + b*16 + i*4, 4), vr(voff), sr(srd, 4), sr(soff), i*1024, ld_flags))
    def bump(): a("s_add_u32 %s, %s, %d" % (sr(soff), sr(soff), tile_bytes))
    def load_tile(m):
        for i in range(4): load_one(m, i)
        bump()
    def A(i, which):
        kt, qt = i // 4, i % 4
        S = R.S + (i % 2) * 16
        K = R.KV + (kt % 4) * 16 + which * 4
        Q = R.Q + qt * 8 + which * 4
        c = "0" if which == 0 else vr(S, 16)
        a("v_mfma_f32_32x32x16_bf16 %s, %s, %s, %s" % (vr(S, 16), vr(K, 4), vr(Q, 4), c))
    def C(i, which):
        kt, qt = i // 4, i % 4
        O = R.O + qt * 16
        V = R.KV + (kt % 4) * 16 + 8 + which * 4
        P = R.P + (i % 2) * 8 + which * 4
        c = vr(O, 16)
        if not zero_o and kt == 0 and which == 0: c = "0"
        a("v_mfma_f32_32x32x16_bf16 %s, %s, %s, %s" % (vr(O, 16), vr(V, 4), vr(P, 4), c))
    def Bgrp(i, g):
        S = R.S + (i % 2) * 16 + g * 4
        P = R.P + (i % 2) * 8 + g * 2
        for e in range(4): a("v_exp_f32 %s, %s" % (vr(S + e), vr(S + e)))
        a("v_cvt_pk_bf16_f32 %s, %s, %s" % (vr(P), vr(S), vr(S + 1)))
        a("v_cvt_pk_bf16_f32 %s, %s, %s" % (vr(P + 1), vr(S + 2), vr(S + 3)))
    def wait_for(mp):
        later = min(NT - 1, mp + 2) - mp
        return later
    def iteration(j, first_tile_c0=False):
        doA = j + 1 < nsteps
        doB = j < nsteps
        doC = j - 1 >= 0
        after = [[], [], [], []]
        before = []
        if place == "a":
            if j % 4 == 1 and (j - 1) // 4 + 3 < NT: before.append(lambda: load_tile((j - 1) // 4 + 3))
            if doA and (j + 1) % 4 == 0: before.append(lambda: a("s_waitcnt vmcnt(%d)" % (4 * wait_for((j + 1) // 4))))
        elif place == "b":
            if j % 4 == 1 and (j - 1) // 4 + 3 < NT:
                m = (j - 1) // 4 + 3
                for g in range(4): after[g].append(lambda g=g: load_one(m, g))
            if j % 4 == 2 and (j - 2) // 4 + 3 < NT: after[0].append(bump)
            if (j + 2) % 4 == 0 and j + 2 < nsteps:
                after[3].append(lambda: a("s_waitcnt vmcnt(%d)" % (4 * wait_for((j + 2) // 4))))
        elif place == "c":
            if j >= 1:
                m = (j - 1) // 4 + 3; i = (j - 1) % 4
                if m < NT:
                    after[0].append(lambda: load_one(m, i))
                    if i == 3: after[1].append(bump)
            if (j + 2) % 4 == 0 and j + 2 < nsteps:
                mp = (j + 2) // 4
                n_after = 0
                if mp + 1 < NT: n_after += 4
                if mp + 2 < NT: n_after += 2
                after[3].append(lambda: a("s_waitcnt vmcnt(%d)" % n_after))
        for f in before: f()
        ops = []
        if doA: ops += [lambda: A(j + 1, 0), lambda: A(j + 1, 1)]
        else: ops += [None, None]
        if doC: ops += [lambda: C(j - 1, 0), lambda: C(j - 1, 1)]
        else: ops += [None, None]
        for g in range(4):
            if ops[g] is not None: ops[g]()
            for f in after[g]: f()
            if doB: Bgrp(j, g)
            elif g == 1: a("s_nop 1")
    if zero_o:
        for r in range(64): a("v_mov_b32 %s, 0" % vr(R.O + r))
    for m in range(3): load_tile(m)
    a("s_waitcnt vmcnt(8)")
    if stamp is not None: a("s_memtime %s" % sr(stamp, 2))
    A(0, 0); A(0, 1)
    a("s_nop 7"); a("s_nop 7")
    iteration(0)
    ntrips = NT // 4
    if zero_o:
        first = 1
        if ntrips > 1:
            cnt = soff + 1
            a("s_mov_b32 %s, %d" % (sr(cnt), ntrips - 1))
            L = a.newlabel("L_attn")
            a.raw(".p2align 6")
            a.label(L)
            for j in range(1, 17): iteration(j)
            if tripstamps is not None:
                a("s_memtime %s" % sr(tripstamps, 2)); a("s_waitcnt lgkmcnt(0)")
                for n in range(1, ntrips):
                    a("s_cmp_eq_u32 %s, %d" % (sr(cnt), n)); a("s_cselect_b32 %s, %s, %s" % (sr(tripstamps + 2 + n), sr(tripstamps), sr(tripstamps + 2 + n)))
            a("s_sub_u32 %s, %s, 1" % (sr(cnt), sr(cnt)))
            a("s_cmp_lg_u32 %s, 0" % sr(cnt))
            a("s_cbranch_scc1 %s" % L)
        base = (ntrips - 1) * 16
        for j in range(base + 1, base + 17): iteration(j)
```

```python
import sys, math, struct
sys.path.insert(0, "gen")
from asmlib import *
import attn

NAME = "gated_mix__grouped_kv_mqa__ssm_conv_s5__prompt_kernel"

WS_KV = 0x0
WS_E  = 0x40000
WS_HF = 0x80000
WS_OF = 0x81000
WS_H  = 0x100000
WS_O  = 0x480000
WS_END = 0x680000
WS_DBG = 0x700000
WS_SIZE_DBG = 0x2000000

L_X = 0
L_RING = 57344
SLOT = 24576
L_MISC = 155648
L_G = L_MISC
L_SEG = L_MISC + 512
L_KM = L_MISC + 3072
L_QF = L_RING
L_TOTAL = 163840
L_CST = 0
L_CNT = 98304
L_RED = 114688

S_WG, S_WAVE, S_RBK, S_HP, S_NONCE = 2, 3, 4, 5, 6
S_X, S_WQ, S_BA, S_WS, S_DBG, S_T, S_T2 = 8, 12, 16, 24, 28, 32, 36
P_X, P_WQ, P_WK, P_WV, P_WO, P_LRE, P_LIM = 64, 66, 68, 70, 72, 76, 78
P_BRE, P_BIM, P_CRE, P_CIM, P_LDT, P_DSK, P_GW, P_OUT = 80, 82, 84, 86, 88, 90, 92, 94
P_DBG, P_WS = 96, 98
S_XOFF, S_BOFF, S_WOFF, S_MX, S_MB, S_HI = 40, 41, 42, 43, 44, 46
S_TMP = 48

V_LANE, V_L16, V_DE, V_DO, V_DW = 1, 2, 3, 4, 5
V_GATE, V_ZERO = 240, 247

LOG2E = 1.4426950408889634
QSCALE = 28 ** -0.5 * LOG2E
def f2u(x): return struct.unpack("<I", struct.pack("<f", x))[0]

def srd(a, s, p, nbytes):
    a("s_mov_b32 s%d, s%d" % (s, p)); a("s_mov_b32 s%d, s%d" % (s + 1, p + 1))
    a("s_mov_b32 s%d, 0x%x" % (s + 2, nbytes)); a("s_mov_b32 s%d, 0x20000" % (s + 3))

MF = "v_mfma_f32_32x32x16_bf16"
HEADER_COMMENT = "; Generated by gen/kern.py: persistent single-kernel implementation\n"

class K:
    def __init__(self, stop_after=None, debug=False):
        self.a = Asm()
        self.stop_after = stop_after
        self.debug = debug

    def prologue(self):
        a = self.a
        a("s_cmp_ge_u32 s2, 256")
        a("s_cbranch_scc1 L_exit")
        a("s_load_dwordx16 s[64:79], s[0:1], 0")
        a("s_load_dwordx16 s[80:95], s[0:1], 64")
        a("s_load_dwordx4 s[96:99], s[0:1], 128")
        a("v_and_b32 v1, 63, v0")
        a("v_lshrrev_b32 v6, 6, v0")
        a("s_and_b32 s48, s2, 7")
        a("v_readfirstlane_b32 s3, v6")
        a("s_lshr_b32 s49, s2, 3")
        a("s_and_b32 s5, s49, 7")
        a("s_lshr_b32 s49, s49, 3")
        a("s_lshl_b32 s4, s48, 2")
        a("s_add_u32 s4, s4, s49")
        a("v_lshlrev_b32 v2, 4, v1")
        a("v_lshrrev_b32 v6, 3, v1")
        a("v_and_b32 v7, 7, v1")
        a("v_lshrrev_b32 v8, 4, v1")
        a("v_mul_u32_u24 v9, 896, v6")
        a("v_xor_b32 v10, v7, v8")
        a("v_lshl_add_u32 v3, v10, 4, v9")
        a("v_xor_b32 v10, 4, v10")
        a("v_lshl_add_u32 v4, v10, 4, v9")
        a("v_min_u32 v10, 6, v7")
        a("v_lshl_add_u32 v5, v10, 4, v9")
        a("v_mov_b32 v%d, 0" % V_ZERO)
        a("s_mov_b32 s%d, 0" % S_HI); a("s_mov_b32 s%d, -1" % (S_HI + 1))
        a("s_lshl_b32 s%d, s3, 10" % S_MX)
        a("s_lshl_b32 s48, s4, 6"); a("s_lshl_b32 s49, s3, 3"); a("s_add_u32 s48, s48, s49")
        a("s_mul_i32 s%d, s48, 896" % S_XOFF)
        a("s_mul_i32 s48, s49, 896"); a("s_mul_i32 s50, s5, 112"); a("s_add_u32 s%d, s48, s50" % S_WOFF)
        a("s_waitcnt lgkmcnt(0)")
        srd(a, S_X, P_X, 2048 * 896)
        srd(a, S_WQ, P_WQ, 448 * 896)
        srd(a, S_WS, P_WS, WS_SIZE_DBG if self.debug else WS_END)
        srd(a, S_DBG, P_DBG, 256)
        a("s_or_b32 s48, s2, s3")
        a("s_cmp_lg_u32 s48, 0")
        a("s_cbranch_scc1 L_nononce")
        a("s_memrealtime s[50:51]")
        a("s_waitcnt lgkmcnt(0)")
        a("s_or_b32 s50, s50, 1")
        a("v_mov_b32 v6, s50")
        a("v_mov_b32 v7, 128")
        a("s_mov_b64 exec, 1")
        a("buffer_store_dword v6, v7, s[%d:%d], 0 offen sc1" % (S_DBG, S_DBG + 3))
        a("s_mov_b64 exec, -1")
        a.label("L_nononce")
        srd(a, S_T, P_GW, 896)
        a("v_lshrrev_b32 v6, 3, v1")
        a("s_lshl_b32 s48, s3, 3")
        a("v_add_lshl_u32 v6, v6, s48, 1")
        for c in range(7):
            a("buffer_load_ushort v%d, v6, s[%d:%d], 0 offen offset:%d" % (V_GATE + c, S_T, S_T + 3, 128 * c))

    def dma(self, vaddr, srdreg, soff_expr_reg, m0_base_reg, m0_const):
        a = self.a
        a("s_add_u32 m0, s%d, %d" % (m0_base_reg, m0_const))
        a("s_nop 0")
        a("buffer_load_dwordx4 v%d, s[%d:%d], s%d offen lds" % (vaddr, srdreg, srdreg + 3, soff_expr_reg))

    def issue_chunk(self, c, kv):
        a = self.a
        slot = L_RING + (c % 4) * SLOT
        a("s_add_u32 s48, s%d, %d" % (S_XOFF, 128 * c))
        self.dma(11, S_X, 48, S_MX, L_X + c * 8192)
        if not kv:
            a("s_add_u32 s48, s%d, %d" % (S_WOFF, 64 * c * 896))
            self.dma(V_DW, S_WQ, 48, S_MX, slot)
            a("s_add_u32 s48, s%d, %d" % (S_BOFF, 128 * c))
            self.dma(V_DE, S_BA, 48, S_MB, slot + 8192)
            a("s_add_u32 s48, s%d, %d" % (S_BOFF, 128 * c + 8 * 896))
            self.dma(V_DO, S_BA, 48, S_MB, slot + 8192 + 1024)
        else:
            a("s_add_u32 s48, s%d, %d" % (S_BOFF, 3584 * c))
            self.dma(V_L16, S_BA, 48, S_MB, slot + 8192)
            a("s_add_u32 s48, s%d, %d" % (S_WOFF, 64 * c * 896))
            self.dma(V_DW, S_WQ, 48, S_MX, slot)

    def gate_write(self, c):
        a = self.a
        slot = L_RING + (c % 4) * SLOT
        a("s_add_u32 s48, s%d, %d" % (S_MX, slot))
        a("v_add_u32 v12, s48, v%d" % V_L16)
        a("s_mov_b32 exec_lo, 0x80808080"); a("s_mov_b32 exec_hi, 0x80808080")
        a("ds_write2_b32 v12, v%d, v%d offset0:0 offset1:1" % (V_GATE + c, V_ZERO))
        a("s_mov_b64 exec, -1")

    def xfrag_addrs(self, base, rowexpr):
        a = self.a
        a("v_lshrrev_b32 v15, 1, v13"); a("v_and_b32 v15, 7, v15")
        for s in range(4):
            a("v_or_b32 v12, %d, v14" % (2 * s))
            a("v_xor_b32 v12, v12, v15")
            a("v_lshlrev_b32 v12, 4, v12")
            a("v_lshl_add_u32 v%d, v13, 7, v12" % (base + s))

    def tr_base(self, dst, pitch, colbytes_reg=None, colbytes_const=0):
        a = self.a
        a("v_lshrrev_b32 v12, 5, v1")
        a("v_lshlrev_b32 v12, 3, v12")
        a("v_bfe_u32 v13, v1, 2, 2")
        a("v_add_u32 v12, v12, v13")
        a("v_mul_u32_u24 v12, %d, v12" % pitch)
        a("v_bfe_u32 v13, v1, 4, 1")
        a("v_lshl_add_u32 v12, v13, 5, v12")
        a("v_and_b32 v13, 3, v1")
        a("v_lshl_add_u32 v%d, v13, 3, v12" % dst)
        if colbytes_reg is not None: a("v_add_u32 v%d, s%d, v%d" % (dst, colbytes_reg, dst))
        if colbytes_const: a("v_add_u32 v%d, %d, v%d" % (dst, colbytes_const, dst))

    def chunk_head(self, c, per):
        a = self.a
        later = min(6, c + 2) - c
        a("s_waitcnt vmcnt(%d)" % (per * later))
        self.gate_write(c)
        a("s_waitcnt lgkmcnt(0)")
        a("s_barrier")

    def front_q(self, kv):
        a = self.a
        per = 3 if kv else 4
        XF, TR, TRA, ACC, FA, FB = 16, 20, 21, 32, 48, 64
        for c in range(7):
            self.chunk_head(c, per)
            slot = L_RING + (c % 4) * SLOT
            a("v_add_u32 v%d, %d, v%d" % (TRA, slot, TR))
            for s in range(4):
                a("ds_read_b64_tr_b16 v[%d:%d], v%d offset:%d" % (FA + 4*s, FA + 4*s + 1, TRA, 16 * s * 128))
                a("ds_read_b64_tr_b16 v[%d:%d], v%d offset:%d" % (FA + 4*s + 2, FA + 4*s + 3, TRA, 16 * s * 128 + 512))
                a("ds_read_b128 v[%d:%d], v%d offset:%d" % (FB + 4*s, FB + 4*s + 3, XF + s, L_X + c * 8192))
            if c + 3 <= 6: self.issue_chunk(c + 3, kv)
            for s in range(4):
                a("s_waitcnt lgkmcnt(%d)" % (3 * (3 - s)))
                cc = "0" if (c == 0 and s == 0) else vr(ACC, 16)
                a("%s %s, %s, %s, %s" % (MF, vr(ACC, 16), vr(FA + 4*s, 4), vr(FB + 4*s, 4), cc))

    def front_h(self):
        a = self.a
        XP, BF, BFA, RE, IM, FX, FR, FI = 16, 20, 24, 32, 48, 64, 80, 96
        for c in range(7):
            self.chunk_head(c, 4)
            slot = L_RING + (c % 4) * SLOT + 8192
            for s in range(4): a("v_add_u32 v%d, %d, v%d" % (BFA + s, slot, BF + s))
            for s in range(4):
                a("ds_read_b128 v[%d:%d], v%d offset:%d" % (FX + 4*s, FX + 4*s + 3, XP + s, L_X + c * 8192))
                a("ds_read_b128 v[%d:%d], v%d" % (FR + 4*s, FR + 4*s + 3, BFA + s))
                a("ds_read_b128 v[%d:%d], v%d offset:8192" % (FI + 4*s, FI + 4*s + 3, BFA + s))
            if c + 3 <= 6: self.issue_chunk(c + 3, False)
            for s in range(4):
                a("s_waitcnt lgkmcnt(%d)" % (3 * (3 - s)))
                c1 = "0" if (c == 0 and s == 0) else vr(RE, 16)
                c2 = "0" if (c == 0 and s == 0) else vr(IM, 16)
                a("%s %s, %s, %s, %s" % (MF, vr(RE, 16), vr(FX + 4*s, 4), vr(FR + 4*s, 4), c1))
                a("%s %s, %s, %s, %s" % (MF, vr(IM, 16), vr(FX + 4*s, 4), vr(FI + 4*s, 4), c2))

    def front_kv(self, isv):
        a = self.a
        XF, TR, TRA, ACC, FA, FB = 16, 20, 21, 32, 48, 64
        for c in range(7):
            self.chunk_head(c, 3)
            slot = L_RING + (c % 4) * SLOT + 8192 + (4096 if isv else 0)
            a("v_add_u32 v%d, %d, v%d" % (TRA, slot, TR))
            for s in range(4):
                a("ds_read_b64_tr_b16 v[%d:%d], v%d offset:%d" % (FA + 4*s, FA + 4*s + 1, TRA, 16 * s * 56))
                a("ds_read_b64_tr_b16 v[%d:%d], v%d offset:%d" % (FA + 4*s + 2, FA + 4*s + 3, TRA, 16 * s * 56 + 4 * 56))
                a("ds_read_b128 v[%d:%d], v%d offset:%d" % (FB + 4*s, FB + 4*s + 3, XF + s, L_X + c * 8192))
            if c + 3 <= 6: self.issue_chunk(c + 3, True)
            for s in range(4):
                a("s_waitcnt lgkmcnt(%d)" % (3 * (3 - s)))
                cc = "0" if (c == 0 and s == 0) else vr(ACC, 16)
                if isv: a("%s %s, %s, %s, %s" % (MF, vr(ACC, 16), vr(FB + 4*s, 4), vr(FA + 4*s, 4), cc))
                else:   a("%s %s, %s, %s, %s" % (MF, vr(ACC, 16), vr(FA + 4*s, 4), vr(FB + 4*s, 4), cc))

    def pack_acc(self, acc, dst, scale=None):
        a = self.a
        if scale is not None:
            for r in range(16): a("v_mul_f32 v%d, s%d, v%d" % (acc + r, scale, acc + r))
        for i in range(8): a("v_cvt_pk_bf16_f32 v%d, v%d, v%d" % (dst + i, acc + 2*i, acc + 2*i + 1))

    def norm2(self, P, out, tmp):
        a = self.a
        a("v_dot2_f32_bf16 v%d, v%d, v%d, v%d" % (out, P, P, V_ZERO))
        for i in range(1, 8): a("v_dot2_f32_bf16 v%d, v%d, v%d, v%d" % (out, P + i, P + i, out))
        a("s_nop 2")
        a("v_mov_b32 v%d, v%d" % (tmp, out))
        a("s_nop 1")
        a("v_permlane32_swap_b32 v%d, v%d" % (out, tmp))
        a("s_nop 1")
        a("v_add_f32 v%d, v%d, v%d" % (out, out, tmp))

    def q_epilogue(self):
        a = self.a
        ACC, P = 32, 48
        a("s_nop 7"); a("s_nop 7")
        a("v_mov_b32 v60, v%d" % (ACC + 12))
        a("s_mov_b32 s48, 0x%x" % f2u(QSCALE))
        self.pack_acc(ACC, P, scale=48)
        a("v_cndmask_b32 v%d, v%d, v%d, s[%d:%d]" % (P + 6, P + 6, V_ZERO, S_HI, S_HI + 1))
        a("v_cndmask_b32 v%d, v%d, v%d, s[%d:%d]" % (P + 7, P + 7, V_ZERO, S_HI, S_HI + 1))
        self.norm2(P, 56, 57)
        a("v_sqrt_f32 v56, v56")
        a("s_mov_b32 s48, 0x%x" % f2u(1.0 + 2.0 ** -6))
        a("v_mul_f32 v56, s48, v56")
        a("v_cvt_pk_bf16_f32 v58, v56, v%d" % V_ZERO)
        a("v_cndmask_b32 v%d, v%d, v58, s[%d:%d]" % (P + 6, P + 6, S_HI, S_HI + 1))
        a("s_lshl_b32 s48, s3, 11"); a("s_add_u32 s48, s48, %d" % L_QF)
        a("v_add_u32 v12, s48, v%d" % V_L16)
        a("ds_write_b128 v12, v[%d:%d]" % (P, P + 3))
        a("ds_write_b128 v12, v[%d:%d] offset:1024" % (P + 4, P + 7))
        a("s_bitcmp1_b32 s3, 0")
        lab = a.newlabel("L_nog")
        a("s_cbranch_scc0 %s" % lab)
        a("s_mov_b32 s48, 0x%x" % f2u(-LOG2E))
        a("v_mul_f32 v60, s48, v60")
        a("v_exp_f32 v60, v60")
        a("s_nop 0")
        a("v_add_f32 v60, 1.0, v60")
        a("v_rcp_f32 v60, v60")
        a("s_lshr_b32 s48, s3, 1"); a("s_lshl_b32 s48, s48, 7"); a("s_add_u32 s48, s48, %d" % (L_G - 128))
        a("v_lshlrev_b32 v12, 2, v1"); a("v_add_u32 v12, s48, v12")
        a("s_mov_b64 exec, s[%d:%d]" % (S_HI, S_HI + 1))
        a("ds_write_b32 v12, v60")
        a("s_mov_b64 exec, -1")
        a.label(lab)

    def k_epilogue(self):
        a = self.a
        ACC, P = 32, 48
        a("s_nop 7"); a("s_nop 7")
        self.pack_acc(ACC, P)
        a("v_cndmask_b32 v%d, v%d, v%d, s[%d:%d]" % (P + 6, P + 6, V_ZERO, S_HI, S_HI + 1))
        a("v_cndmask_b32 v%d, v%d, v%d, s[%d:%d]" % (P + 7, P + 7, V_ZERO, S_HI, S_HI + 1))
        self.norm2(P, 56, 57)
        a("v_mov_b32 v58, 0x3f803f80"); a("v_mov_b32 v59, 0x3f80")
        a("v_cndmask_b32 v%d, v%d, v58, s[%d:%d]" % (P + 6, P + 6, S_HI, S_HI + 1))
        a("v_cndmask_b32 v%d, v%d, v59, s[%d:%d]" % (P + 7, P + 7, S_HI, S_HI + 1))
        self.kv_store(P, 0)
        for sh in (1, 2, 4, 8):
            a("s_nop 1")
            a("v_max_f32_dpp v56, v56, v56 row_shr:%d row_mask:0xf bank_mask:0xf" % sh)
        a("s_nop 1")
        a("v_readlane_b32 s48, v56, 15"); a("v_readlane_b32 s49, v56, 31")
        a("s_nop 3")
        a("s_max_u32 s48, s48, s49")
        a("v_mov_b32 v56, s48")
        a("s_sub_u32 s49, s3, 4"); a("s_lshr_b32 s49, s49, 1"); a("s_lshl_b32 s49, s49, 2"); a("s_add_u32 s49, s49, %d" % L_KM)
        a("v_mov_b32 v12, s49")
        a("ds_write_b32 v12, v56")

    def v_epilogue(self):
        a = self.a
        ACC, P = 32, 48
        a("s_nop 7"); a("s_nop 7")
        self.pack_acc(ACC, P)
        a("s_mov_b32 s48, 0x10000000"); a("s_mov_b32 s49, 0x10000000")
        a("s_mov_b32 s50, 0xe0000000"); a("s_mov_b32 s51, 0xe0000000")
        a("v_mov_b32 v58, 0x3f803f80")
        for i in range(8):
            a("v_cndmask_b32 v%d, v%d, v58, s[48:49]" % (P + i, P + i))
            a("v_cndmask_b32 v%d, v%d, v%d, s[50:51]" % (P + i, P + i, V_ZERO))
        self.kv_store(P, 2048)

    def kv_store(self, P, off):
        a = self.a
        a("s_sub_u32 s52, s3, 4"); a("s_lshr_b32 s52, s52, 1"); a("s_lshl_b32 s53, s4, 1"); a("s_add_u32 s52, s52, s53")
        a("s_lshl_b32 s52, s52, 12"); a("s_add_u32 s52, s52, %d" % (WS_KV + off))
        a("buffer_store_dwordx4 v[%d:%d], v%d, s[%d:%d], s52 offen sc1" % (P, P + 3, V_L16, S_WS, S_WS + 3))
        a("buffer_store_dwordx4 v[%d:%d], v%d, s[%d:%d], s52 offen offset:1024 sc1" % (P + 4, P + 7, V_L16, S_WS, S_WS + 3))

    def params_load(self):
        a = self.a
        a("s_and_b32 s48, s3, 1"); a("s_lshl_b32 s48, s48, 5"); a("s_lshl_b32 s49, s5, 6"); a("s_add_u32 s48, s48, s49")
        a("v_and_b32 v12, 31, v1"); a("v_add_lshl_u32 v12, v12, s48, 1")
        srd(a, S_T2, P_LRE, 896); a("buffer_load_ushort v112, v12, s[%d:%d], 0 offen" % (S_T2, S_T2 + 3))
        srd(a, S_T2, P_LIM, 896); a("buffer_load_ushort v113, v12, s[%d:%d], 0 offen" % (S_T2, S_T2 + 3))
        srd(a, S_T2, P_LDT, 896); a("buffer_load_ushort v114, v12, s[%d:%d], 0 offen" % (S_T2, S_T2 + 3))
        srd(a, S_T2, P_DSK, 896); a("buffer_load_ushort v115, v12, s[%d:%d], 0 offen" % (S_T2, S_T2 + 3))

    def csq(self, dr, di, sr_, si):
        a = self.a
        a("v_mul_f32 v%d, v%d, v%d" % (di, si, si))
        a("v_fma_f32 v%d, v%d, v%d, -v%d" % (dr, sr_, sr_, di))
        a("v_mul_f32 v%d, v%d, v%d" % (di, sr_, si))
        a("v_add_f32 v%d, v%d, v%d" % (di, di, di))

    def params_compute(self):
        a = self.a
        LR, LI, CR, CI, L16R, L16I, MUR, MUI, M2R, M2I, L32R, L32I = range(116, 128)
        a("v_lshlrev_b32 v112, 16, v112"); a("v_lshlrev_b32 v113, 16, v113"); a("v_lshlrev_b32 v114, 16, v114")
        a("s_mov_b32 s48, 0x%x" % f2u(LOG2E))
        a("v_mul_f32 v114, s48, v114"); a("v_exp_f32 v114, v114"); a("s_nop 0")
        a("v_cvt_pk_bf16_f32 v114, v114, v%d" % V_ZERO); a("v_lshlrev_b32 v114, 16, v114")
        a("v_mul_f32 v8, v114, v112"); a("v_mul_f32 v9, v114, v113")
        a("v_mul_f32 v8, s48, v8"); a("v_exp_f32 v8, v8")
        a("v_mul_f32 v9, 0.15915494, v9"); a("v_fract_f32 v9, v9")
        a("v_cos_f32 v10, v9"); a("v_sin_f32 v9, v9"); a("s_nop 0")
        a("v_mul_f32 v%d, v8, v10" % LR); a("v_mul_f32 v%d, v8, v9" % LI)
        a("v_add_f32 v8, -1.0, v%d" % LR)
        a("v_mul_f32 v9, v112, v112"); a("v_fma_f32 v9, v113, v113, v9"); a("v_rcp_f32 v9, v9")
        a("v_mul_f32 v10, v8, v112"); a("v_fma_f32 v10, v%d, v113, v10" % LI)
        a("v_mul_f32 v15, v%d, v112" % LI); a("v_fma_f32 v15, -v8, v113, v15")
        a("v_mul_f32 v%d, v10, v9" % CR); a("v_mul_f32 v%d, v15, v9" % CI)
        self.csq(8, 9, LR, LI)
        self.csq(10, 15, 8, 9)
        self.csq(8, 9, 10, 15)
        self.csq(L16R, L16I, 8, 9)
        self.csq(L32R, L32I, L16R, L16I)
        self.csq(MUR, MUI, L32R, L32I)
        self.csq(M2R, M2I, MUR, MUI)

    def h_epilogue_pass1(self):
        a = self.a
        RE, IM = 32, 48
        LR, LI, CR, CI = 116, 117, 118, 119
        a("s_nop 7"); a("s_nop 7")
        for r in range(16):
            a("v_mul_f32 v8, v%d, v%d" % (CI, IM + r)); a("v_mul_f32 v9, v%d, v%d" % (CI, RE + r))
            a("v_fma_f32 v%d, v%d, v%d, -v8" % (RE + r, CR, RE + r)); a("v_fma_f32 v%d, v%d, v%d, v9" % (IM + r, CR, IM + r))
        a("v_mov_b32 v8, v%d" % RE); a("v_mov_b32 v9, v%d" % IM)
        for r in range(1, 16):
            a("v_fma_f32 v10, v%d, v8, v%d" % (LR, RE + r)); a("v_fma_f32 v15, v%d, v9, v%d" % (LR, IM + r))
            a("v_fma_f32 v10, -v%d, v9, v10" % LI); a("v_fma_f32 v9, v%d, v8, v15" % LI)
            a("v_mov_b32 v8, v10")
        a("s_sub_u32 s48, s3, 4"); a("s_lshr_b32 s49, s48, 1"); a("s_and_b32 s48, s48, 1")
        a("s_lshl_b32 s49, s49, 10"); a("s_lshl_b32 s48, s48, 8"); a("s_add_u32 s48, s48, s49"); a("s_add_u32 s48, s48, %d" % L_SEG)
        a("v_lshrrev_b32 v12, 5, v1"); a("v_lshlrev_b32 v12, 9, v12"); a("v_and_b32 v13, 31, v1"); a("v_lshl_add_u32 v12, v13, 3, v12")
        a("v_add_u32 v12, s48, v12")
        a("ds_write_b64 v12, v[8:9]")

    def poll_nonce(self):
        a = self.a
        lab = a.newlabel("L_pn"); done = a.newlabel("L_pnd")
        a("v_mov_b32 v12, 128")
        a("s_mov_b32 s48, 0x100000")
        a.label(lab)
        a("buffer_load_dword v13, v12, s[%d:%d], 0 offen sc1" % (S_DBG, S_DBG + 3))
        a("s_waitcnt vmcnt(0)")
        a("v_readfirstlane_b32 s%d, v13" % S_NONCE)
        a("s_sub_u32 s48, s48, 1")
        a("s_cbranch_scc1 %s" % done)
        a("s_cmp_eq_u32 s%d, 0" % S_NONCE)
        a("s_cbranch_scc1 %s" % lab)
        a.label(done)

    def dump(self, base, nregs, slot_bytes, idx_sreg, off):
        a = self.a
        a("s_mul_i32 s58, s%d, %d" % (idx_sreg, slot_bytes)); a("s_add_u32 s58, s58, %d" % (WS_DBG + off))
        a("v_lshlrev_b32 v12, 2, v1")
        for r in range(nregs):
            if r % 16 == 0 and r: a("s_add_u32 s58, s58, 4096")
            a("buffer_store_dword v%d, v12, s[%d:%d], s58 offen offset:%d" % (base + r, S_WS, S_WS + 3, (r % 16) * 256))

    def text(self, lds=L_TOTAL):
        hdr = "; @launch grid=(256,1,1) block=(512,1,1) lds=%d\n" % lds
        hdr += '.amdgcn_target "amdgcn-amd-amdhsa--gfx950"\n' + kernel_header(NAME)
        return hdr + self.a.text() + kernel_footer(NAME, 256)

    def build(self):
        a = self.a
        self.prologue()
        a("s_bitcmp1_b32 s3, 0")
        a("s_cselect_b64 s[48:49], -1, 0")
        a("v_cndmask_b32 v11, v%d, v%d, s[48:49]" % (V_DE, V_DO))
        a("s_cmp_eq_u32 s5, 7")
        a("s_cbranch_scc1 L_hp7")
        a("s_cmp_lt_u32 s3, 4")
        a("s_cselect_b32 s%d, s%d, s%d" % (S_BA, P_BRE, P_BIM)); a("s_cselect_b32 s%d, s%d, s%d" % (S_BA + 1, P_BRE + 1, P_BIM + 1))
        a("s_mov_b32 s%d, 0x%x" % (S_BA + 2, 448 * 896)); a("s_mov_b32 s%d, 0x20000" % (S_BA + 3))
        a("s_and_b32 s48, s3, 3"); a("s_lshl_b32 s48, s48, 4"); a("s_lshl_b32 s49, s5, 6"); a("s_add_u32 s48, s48, s49")
        a("s_mul_i32 s%d, s48, 896" % S_BOFF)
        a("s_lshl_b32 s%d, s3, 11" % S_MB)
        a("s_cmp_ge_u32 s3, 4")
        a("s_cbranch_scc1 L_gen_helper")
        for c in range(3): self.issue_chunk(c, False)
        self.q_setup()
        self.front_q(False)
        self.q_epilogue()
        a("s_branch L_front_done")
        a.label("L_gen_helper")
        self.params_load()
        for c in range(3): self.issue_chunk(c, False)
        self.h_setup()
        a("s_waitcnt vmcnt(12)")
        self.params_compute()
        self.front_h()
        self.h_epilogue_pass1()
        a("s_branch L_front_done")
        a.label("L_hp7")
        a("s_cmp_lt_u32 s3, 4")
        a("s_cselect_b32 s%d, s%d, s%d" % (S_BA, P_WK, P_WV)); a("s_cselect_b32 s%d, s%d, s%d" % (S_BA + 1, P_WK + 1, P_WV + 1))
        a("s_mov_b32 s%d, 0x%x" % (S_BA + 2, 448 * 56)); a("s_mov_b32 s%d, 0x20000" % (S_BA + 3))
        a("s_and_b32 s48, s3, 3"); a("s_lshl_b32 s%d, s48, 10" % S_BOFF)
        a("s_lshr_b32 s49, s3, 2"); a("s_lshl_b32 s49, s49, 12"); a("s_add_u32 s%d, s49, s%d" % (S_MB, S_BOFF))
        for c in range(3): self.issue_chunk(c, True)
        a("s_cmp_ge_u32 s3, 4")
        a("s_cbranch_scc1 L_hp7_helper")
        self.q_setup()
        self.front_q(True)
        self.q_epilogue()
        a("s_branch L_front_done")
        a.label("L_hp7_helper")
        a("s_sub_u32 s48, s3, 4"); a("s_lshr_b32 s48, s48, 1"); a("s_lshl_b32 s48, s48, 5")
        a("v_and_b32 v13, 31, v1"); a("v_add_u32 v13, s48, v13"); a("v_lshrrev_b32 v14, 5, v1")
        self.xfrag_addrs(16, None)
        self.tr_base(20, 56)
        a("s_bitcmp1_b32 s3, 0")
        a("s_cbranch_scc1 L_hp7_v")
        self.front_kv(False)
        self.k_epilogue()
        a("s_waitcnt vmcnt(0)")
        a("s_branch L_front_done")
        a.label("L_hp7_v")
        self.front_kv(True)
        self.v_epilogue()
        a("s_waitcnt vmcnt(0)")
        a.label("L_front_done")
        a("s_waitcnt lgkmcnt(0)")
        a("s_barrier")
        self.after_front()
        a.label("L_exit")
        a("s_endpgm")

    def q_setup(self):
        a = self.a
        a("s_lshr_b32 s48, s3, 1"); a("s_lshl_b32 s48, s48, 5")
        a("v_and_b32 v13, 31, v1"); a("v_add_u32 v13, s48, v13"); a("v_lshrrev_b32 v14, 5, v1")
        self.xfrag_addrs(16, None)
        a("s_and_b32 s48, s3, 1"); a("s_mul_i32 s48, s48, 56")
        self.tr_base(20, 128, colbytes_reg=48)

    def h_setup(self):
        a = self.a
        a("v_and_b32 v12, 31, v1")
        a("v_bfe_u32 v13, v12, 2, 1"); a("v_lshlrev_b32 v13, 4, v13")
        a("v_lshrrev_b32 v14, 3, v12"); a("v_lshl_add_u32 v13, v14, 2, v13")
        a("v_and_b32 v14, 3, v12"); a("v_add_u32 v13, v13, v14")
        a("s_sub_u32 s48, s3, 4"); a("s_lshr_b32 s48, s48, 1"); a("s_lshl_b32 s48, s48, 5")
        a("v_add_u32 v13, s48, v13"); a("v_lshrrev_b32 v14, 5, v1")
        self.xfrag_addrs(16, None)
        a("s_and_b32 s48, s3, 1"); a("s_lshl_b32 s48, s48, 5")
        a("v_and_b32 v13, 31, v1"); a("v_add_u32 v13, s48, v13"); a("v_lshrrev_b32 v14, 5, v1")
        self.xfrag_addrs(20, None)

    def lds_inc(self, cnt):
        a = self.a
        a("v_mov_b32 v12, %d" % (L_CNT + 4 * cnt)); a("v_mov_b32 v13, 1")
        a("s_mov_b64 exec, 1")
        a("ds_add_u32 v12, v13")
        a("s_mov_b64 exec, -1")
    def lds_wait(self, cnt, target):
        a = self.a
        lab = a.newlabel("L_lw"); done = a.newlabel("L_lwd")
        a("v_mov_b32 v12, %d" % (L_CNT + 4 * cnt))
        a("s_mov_b32 s48, 0x400000")
        a.label(lab)
        a("ds_read_b32 v13, v12")
        a("s_waitcnt lgkmcnt(0)")
        a("v_readfirstlane_b32 s49, v13")
        a("s_sub_u32 s48, s48, 1")
        a("s_cbranch_scc1 %s" % done)
        a("s_cmp_lt_u32 s49, %d" % target)
        a("s_cbranch_scc1 %s" % lab)
        a.label(done)

    def poll_flags(self, ws_off, nflags_mask_lo):
        a = self.a
        lab = a.newlabel("L_pf"); done = a.newlabel("L_pfd")
        a("s_lshl_b32 s50, s4, 7"); a("s_add_u32 s50, s50, %d" % ws_off)
        a("v_lshlrev_b32 v12, 2, v1")
        a("s_mov_b32 s48, 0x100000")
        a("s_mov_b32 exec_lo, 0x%x" % nflags_mask_lo); a("s_mov_b32 exec_hi, 0")
        a.label(lab)
        a("buffer_load_dword v13, v12, s[%d:%d], s50 offen sc1" % (S_WS, S_WS + 3))
        a("s_waitcnt vmcnt(0)")
        a("v_cmp_ne_u32 vcc, s%d, v13" % S_NONCE)
        a("s_sub_u32 s48, s48, 1")
        a("s_cbranch_scc1 %s" % done)
        a("s_nop 2")
        a("s_cbranch_vccz %s" % done)
        a("s_sleep 1")
        a("s_branch %s" % lab)
        a.label(done)
        a("s_mov_b64 exec, -1")

    def flag_store(self, ws_off, idx_sreg):
        a = self.a
        a("s_lshl_b32 s50, s4, 7"); a("s_lshl_b32 s51, s%d, 2" % idx_sreg); a("s_add_u32 s50, s50, s51"); a("s_add_u32 s50, s50, %d" % ws_off)
        a("v_mov_b32 v12, s50"); a("v_mov_b32 v13, s%d" % S_NONCE)
        a("s_mov_b64 exec, 1")
        a("buffer_store_dword v13, v12, s[%d:%d], 0 offen sc1" % (S_WS, S_WS + 3))
        a("s_mov_b64 exec, -1")

    def after_front(self):
        a = self.a
        a("s_cmp_ge_u32 s3, 4")
        a("s_cbranch_scc1 L_af_helper")
        self.attention_wave()
        a.label("L_af_helper")
        a("s_cmp_eq_u32 s5, 7")
        a("s_cbranch_scc0 L_af_gen")
        a("s_cmp_eq_u32 s3, 4"); a("s_cbranch_scc0 L_exit")
        a("v_mov_b32 v12, %d" % L_KM); a("ds_read_b64 v[14:15], v12"); a("s_waitcnt lgkmcnt(0)")
        a("v_max_f32 v14, v14, v15"); a("v_or_b32 v14, 1, v14")
        a("s_lshl_b32 s48, s4, 2"); a("v_mov_b32 v12, s48")
        a("s_mov_b64 exec, 1")
        a("buffer_store_dword v14, v12, s[%d:%d], 0 offen sc1" % (S_DBG, S_DBG + 3))
        a("s_mov_b64 exec, -1")
        self.zero_counters()
        a("s_waitcnt lgkmcnt(0)")
        a("s_barrier")
        a("s_endpgm")
        a.label("L_af_gen")
        self.helper_wave()

    def zero_counters(self):
        a = self.a
        a("v_lshlrev_b32 v12, 2, v1"); a("v_add_u32 v12, %d, v12" % L_CNT)
        a("ds_write_b32 v12, v%d" % V_ZERO)

    def attention_wave(self):
        a = self.a
        R = attn.AttnRegs(16)
        for s in range(4):
            a("s_xor_b32 s48, s3, %d" % ((s + 1) & 3)); a("s_lshl_b32 s48, s48, 11"); a("s_add_u32 s48, s48, %d" % L_QF)
            a("v_add_u32 v12, s48, v%d" % V_L16)
            a("ds_read_b128 v[%d:%d], v12" % (R.Q + s*8, R.Q + s*8 + 3))
            a("ds_read_b128 v[%d:%d], v12 offset:1024" % (R.Q + s*8 + 4, R.Q + s*8 + 7))
        a("s_lshr_b32 s48, s3, 1"); a("s_lshl_b32 s48, s48, 7"); a("s_add_u32 s48, s48, %d" % L_G)
        a("v_and_b32 v12, 31, v1"); a("v_lshlrev_b32 v12, 2, v12"); a("v_add_u32 v12, s48, v12")
        a("ds_read_b32 v10, v12")
        a("s_waitcnt lgkmcnt(0)")
        a("s_barrier")
        lab = a.newlabel("L_pkv"); done = a.newlabel("L_pkvd")
        a("v_lshlrev_b32 v12, 2, v1")
        a("s_mov_b32 s48, 0x100000")
        a("s_mov_b32 exec_lo, -1"); a("s_mov_b32 exec_hi, 1")
        a.label(lab)
        a("buffer_load_dword v13, v12, s[%d:%d], 0 offen sc1" % (S_DBG, S_DBG + 3))
        a("s_waitcnt vmcnt(0)")
        a("v_cmp_eq_u32 vcc, 0, v13")
        a("s_sub_u32 s48, s48, 1")
        a("s_cbranch_scc1 %s" % done)
        a("s_nop 2")
        a("s_cbranch_vccz %s" % done)
        a("s_sleep 1")
        a("s_branch %s" % lab)
        a.label(done)
        a("s_mov_b64 exec, -1")
        a("v_readlane_b32 s%d, v13, 32" % S_NONCE)
        for sh in (1, 2, 4, 8):
            a("s_nop 1")
            a("v_max_f32_dpp v13, v13, v13 row_shr:%d row_mask:0xf bank_mask:0xf" % sh)
        a("s_nop 1")
        a("v_readlane_b32 s48, v13, 15"); a("v_readlane_b32 s49, v13, 31")
        a("s_nop 3")
        a("s_max_u32 s48, s48, s49")
        a("v_mov_b32 v13, s48")
        a("v_sqrt_f32 v13, v13")
        a("s_mov_b32 s48, 0x%x" % f2u(-(1.0 + 2.0 ** -6)))
        a("s_nop 0")
        a("v_mul_f32 v13, s48, v13")
        for s in range(4):
            q = R.Q + s*8 + 6
            a("v_lshlrev_b32 v12, 16, v%d" % q)
            a("v_mul_f32 v12, v12, v13")
            a("v_cvt_pk_bf16_f32 v12, v12, v%d" % V_ZERO)
            a("v_cndmask_b32 v%d, v%d, v12, s[%d:%d]" % (q, q, S_HI, S_HI + 1))
        if self.stop_after == "qpatch":
            a("s_lshl_b32 s57, s2, 2"); a("s_add_u32 s57, s57, s3")
            self.dump(R.Q, 32, 8192, 57, 0)
            a("s_waitcnt vmcnt(0)"); a("s_endpgm")
        a("s_lshl_b32 s60, s3, 16"); a("s_add_u32 s60, s60, %d" % WS_KV)
        attn.attn_loop(a, R, V_L16, S_WS, 60)
        a("s_nop 7"); a("s_nop 7")
        for s in range(3):
            a("s_xor_b32 s48, s3, %d" % (s + 1)); a("s_mul_i32 s48, s48, 12288"); a("s_add_u32 s48, s48, %d" % (L_RED + s * 4096))
            a("v_add_u32 v12, s48, v%d" % V_L16)
            for k in range(4):
                a("ds_write_b128 v12, v[%d:%d] offset:%d" % (R.O + s*16 + 4*k, R.O + s*16 + 4*k + 3, k * 1024))
        a("s_waitcnt lgkmcnt(0)")
        self.lds_inc(0)
        self.lds_wait(0, 4)
        a("s_mul_i32 s48, s3, 12288"); a("s_add_u32 s48, s48, %d" % L_RED)
        a("v_add_u32 v12, s48, v%d" % V_L16)
        T = R.KV
        for s in range(3):
            for k in range(4):
                a("ds_read_b128 v[%d:%d], v12 offset:%d" % (T + s*16 + 4*k, T + s*16 + 4*k + 3, s * 4096 + k * 1024))
        O = R.O + 48
        for s in range(3):
            a("s_waitcnt lgkmcnt(%d)" % (8 - 4 * s))
            for r in range(0, 16, 2):
                a("v_pk_add_f32 v[%d:%d], v[%d:%d], v[%d:%d]" % (O + r, O + r + 1, O + r, O + r + 1, T + s*16 + r, T + s*16 + r + 1))
        self.lds_inc(4)
        a("v_mov_b32 v12, v%d" % (O + 12)); a("v_mov_b32 v13, v%d" % (O + 12))
        a("s_nop 1")
        a("v_permlane32_swap_b32 v12, v13")
        a("s_nop 1")
        if self.debug: a("v_mov_b32 v14, v13")
        a("v_rcp_f32 v13, v13")
        a("s_nop 0")
        a("v_mul_f32 v13, v13, v10")
        for r in range(16): a("v_mul_f32 v%d, v13, v%d" % (O + r, O + r))
        P = R.P
        for i in range(8): a("v_cvt_pk_bf16_f32 v%d, v%d, v%d" % (P + i, O + 2*i, O + 2*i + 1))
        a("v_cndmask_b32 v%d, v%d, v%d, s[%d:%d]" % (P + 6, P + 6, V_ZERO, S_HI, S_HI + 1))
        a("v_cndmask_b32 v%d, v%d, v%d, s[%d:%d]" % (P + 7, P + 7, V_ZERO, S_HI, S_HI + 1))
        a("s_lshl_b32 s48, s4, 1"); a("s_lshr_b32 s49, s3, 1"); a("s_add_u32 s48, s48, s49"); a("s_lshl_b32 s48, s48, 4")
        a("s_lshl_b32 s49, s5, 1"); a("s_add_u32 s48, s48, s49"); a("s_and_b32 s49, s3, 1"); a("s_add_u32 s48, s48, s49")
        a("s_lshl_b32 s48, s48, 11"); a("s_add_u32 s48, s48, %d" % WS_O)
        a("buffer_store_dwordx4 v[%d:%d], v%d, s[%d:%d], s48 offen sc1" % (P, P + 3, V_L16, S_WS, S_WS + 3))
        a("buffer_store_dwordx4 v[%d:%d], v%d, s[%d:%d], s48 offen offset:1024 sc1" % (P + 4, P + 7, V_L16, S_WS, S_WS + 3))
        a("s_waitcnt vmcnt(0)")
        a("s_lshl_b32 s52, s5, 2"); a("s_add_u32 s52, s52, s3")
        self.flag_store(WS_OF, 52)
        a("s_endpgm")

    def E_reg(self, i): return 208 + 4 * i if i < 12 else 96 + 4 * (i - 12)

    def helper_wave(self):
        a = self.a
        LR, LI, CR, CI, L16R, L16I, MUR, MUI, M2R, M2I, L32R, L32I = range(116, 128)
        SEGV, CACC, G1 = 64, 128, 192
        a("s_sub_u32 s61, s3, 4"); a("s_lshr_b32 s62, s61, 1"); a("s_and_b32 s63, s61, 1")
        a("s_lshl_b32 s48, s63, 8"); a("s_add_u32 s48, s48, %d" % L_SEG)
        a("v_and_b32 v13, 31, v1"); a("v_lshlrev_b32 v13, 3, v13"); a("v_add_u32 v13, s48, v13")
        for sg in range(4): a("ds_read_b64 v[%d:%d], v13 offset:%d" % (SEGV + 2*sg, SEGV + 2*sg + 1, sg * 512))
        a("s_lshl_b32 s48, s62, 7"); a("s_add_u32 s48, s48, %d" % L_G)
        a("v_lshrrev_b32 v14, 5, v1"); a("v_lshlrev_b32 v13, 4, v14"); a("v_add_u32 v13, s48, v13")
        for aa in range(4): a("ds_read_b128 v[%d:%d], v13 offset:%d" % (G1 + 4*aa, G1 + 4*aa + 3, aa * 32))
        a("v_and_b32 v12, 31, v1"); a("v_lshrrev_b32 v13, 3, v12")
        a("s_lshl_b32 s48, s63, 2"); a("v_add_u32 v13, s48, v13")
        a("v_lshlrev_b32 v15, 1, v14"); a("v_xor_b32 v13, v13, v15")
        a("v_and_b32 v12, 7, v1"); a("v_lshlrev_b32 v12, 1, v12")
        a("v_lshl_add_u32 v12, v14, 9, v12")
        a("s_lshl_b32 s48, s62, 12"); a("s_lshl_b32 s49, s5, 13"); a("s_add_u32 s48, s48, s49")
        a("v_add_u32 v12, s48, v12")
        for n, kap in enumerate((0, 1, 4, 5)):
            a("v_xor_b32 v15, %d, v13" % kap); a("v_lshl_add_u32 v%d, v15, 4, v12" % (76 + n))
        for r in range(16):
            aa, b = r // 4, r % 4
            kap = 4 * (aa & 1) | (b >> 1)
            n = (0, 1, None, None, 4, 5).index(kap) if False else {0: 0, 1: 1, 4: 2, 5: 3}[kap]
            a("ds_read_u16 v%d, v%d offset:%d" % (CACC + r, 76 + n, (8 * aa + b) * 128))
        a("s_cmp_eq_u32 s3, 4"); lz = a.newlabel("L_nz"); a("s_cbranch_scc0 %s" % lz)
        self.zero_counters()
        a.label(lz)
        a("s_waitcnt lgkmcnt(0)")
        a("s_barrier")
        a("v_lshlrev_b32 v115, 16, v115"); a("v_mul_f32 v115, 0.5, v115")
        for r in range(16):
            a("v_lshlrev_b32 v%d, 16, v%d" % (CACC + r, CACC + r)); a("v_mul_f32 v%d, v115, v%d" % (CACC + r, CACC + r))
            a("v_sub_f32 v%d, 1.0, v%d" % (G1 + r, G1 + r)); a("v_add_f32 v%d, v%d, v%d" % (G1 + r, G1 + r, G1 + r))
        for r in range(16, 64): a("v_mov_b32 v%d, 0" % (CACC + r))
        self.poll_nonce()
        def cmad(dr, di, ar, ai, mr, mi, er, ei):
            a("v_fma_f32 v%d, v%d, v%d, v%d" % (dr, ar, mr, er)); a("v_fma_f32 v%d, v%d, v%d, v%d" % (di, ai, mr, ei))
            a("v_fma_f32 v%d, -v%d, v%d, v%d" % (dr, ai, mi, dr)); a("v_fma_f32 v%d, v%d, v%d, v%d" % (di, ar, mi, di))
        e0, e1, e2, e3 = SEGV, SEGV + 2, SEGV + 4, SEGV + 6
        cmad(72, 73, e0, e0 + 1, L16R, L16I, e1, e1 + 1)
        cmad(74, 75, 72, 73, L16R, L16I, e2, e2 + 1)
        lne = a.newlabel("L_noE")
        a("s_cmp_eq_u32 s62, 0"); a("s_cbranch_scc0 %s" % lne)
        cmad(8, 9, 74, 75, L16R, L16I, e3, e3 + 1)
        a("v_mov_b32 v10, s%d" % S_NONCE); a("v_mov_b32 v11, s%d" % S_NONCE)
        a("s_mul_i32 s48, s4, 7168"); a("s_lshl_b32 s49, s5, 10"); a("s_add_u32 s48, s48, s49"); a("s_lshl_b32 s49, s63, 9"); a("s_add_u32 s48, s48, s49")
        a("s_add_u32 s48, s48, %d" % WS_E)
        a("s_mov_b32 exec_hi, 0")
        a("buffer_store_dwordx4 v[8:11], v%d, s[%d:%d], s48 offen sc1" % (V_L16, S_WS, S_WS + 3))
        a("s_mov_b64 exec, -1")
        a.label(lne)
        lr1 = a.newlabel("L_rt1"); lrd = a.newlabel("L_rtd")
        a("s_cmp_eq_u32 s62, 0"); a("s_cbranch_scc0 %s" % lr1)
        hi = "s[%d:%d]" % (S_HI, S_HI + 1)
        a("v_cndmask_b32 v76, v%d, v%d, %s" % (V_ZERO, e0, hi)); a("v_cndmask_b32 v77, v%d, v%d, %s" % (V_ZERO, e0 + 1, hi))
        a("v_mov_b32 v12, 1.0")
        a("v_cndmask_b32 v78, v12, v%d, %s" % (L16R, hi)); a("v_cndmask_b32 v79, v%d, v%d, %s" % (V_ZERO, L16I, hi))
        a("s_branch %s" % lrd)
        a.label(lr1)
        a("v_cndmask_b32 v76, v72, v74, %s" % hi); a("v_cndmask_b32 v77, v73, v75, %s" % hi)
        a("v_mul_f32 v12, v%d, v%d" % (L32R, L16R)); a("v_fma_f32 v12, -v%d, v%d, v12" % (L32I, L16I))
        a("v_mul_f32 v13, v%d, v%d" % (L32R, L16I)); a("v_fma_f32 v13, v%d, v%d, v13" % (L32I, L16R))
        a("v_cndmask_b32 v78, v%d, v12, %s" % (L32R, hi)); a("v_cndmask_b32 v79, v%d, v13, %s" % (L32I, hi))
        a.label(lrd)
        a("s_add_u32 s56, s4, 1"); a("s_lshr_b32 s56, s56, 1")
        a("v_mov_b32 v80, 0"); a("v_mov_b32 v81, 0")
        lnoh = a.newlabel("L_noH")
        a("s_cmp_eq_u32 s4, 0"); a("s_cbranch_scc1 %s" % lnoh)
        a("v_and_b32 v12, 31, v1"); a("v_lshlrev_b32 v12, 4, v12"); a("v_lshrrev_b32 v13, 5, v1"); a("v_mul_u32_u24 v13, 7168, v13"); a("v_add_u32 v82, v12, v13")
        a("s_lshl_b32 s54, s5, 10"); a("s_lshl_b32 s49, s63, 9"); a("s_add_u32 s54, s54, s49"); a("s_add_u32 s54, s54, %d" % WS_E)
        a("s_mov_b32 s55, 0x40000")
        lp = a.newlabel("L_pe"); lld = a.newlabel("L_pel"); lck = a.newlabel("L_pec"); lok = a.newlabel("L_peo")
        a.label(lp)
        a("s_mov_b32 s48, s54")
        for i in range(16):
            if i:
                a("s_cmp_le_u32 s56, %d" % i); a("s_cbranch_scc1 %s" % lld)
            a("buffer_load_dwordx4 v[%d:%d], v82, s[%d:%d], s48 offen sc1" % (self.E_reg(i), self.E_reg(i) + 3, S_WS, S_WS + 3))
            a("s_add_u32 s48, s48, 14336")
        a.label(lld)
        a("s_waitcnt vmcnt(0)")
        a("v_mov_b32 v83, 0")
        for i in range(16):
            if i:
                a("s_cmp_le_u32 s56, %d" % i); a("s_cbranch_scc1 %s" % lck)
            a("s_lshl_b32 s49, s56, 1"); a("s_sub_u32 s49, s49, 1")
            a("s_cmp_eq_u32 s49, s4"); a("s_cselect_b32 s50, %d, 99" % 0)
            a("s_cmp_eq_u32 s56, %d" % (i + 1)); a("s_cselect_b32 s51, s50, 99")
            a("s_cmp_eq_u32 s51, 0"); a("s_cselect_b32 exec_hi, 0, -1")
            a("v_xor_b32 v12, s%d, v%d" % (S_NONCE, self.E_reg(i) + 2)); a("v_or_b32 v83, v83, v12")
            a("s_mov_b32 exec_hi, -1")
        a.label(lck)
        a("v_cmp_ne_u32 vcc, 0, v83")
        a("s_sub_u32 s55, s55, 1"); a("s_cbranch_scc1 %s" % lok)
        a("s_nop 2")
        a("s_cbranch_vccz %s" % lok)
        a("s_sleep 2")
        a("s_branch %s" % lp)
        a.label(lok)
        lhd = a.newlabel("L_hd")
        for i in range(16):
            if i:
                a("s_cmp_le_u32 s56, %d" % i); a("s_cbranch_scc1 %s" % lhd)
            a("s_lshl_b32 s49, s56, 1"); a("s_sub_u32 s49, s49, 1")
            a("s_cmp_eq_u32 s49, s4"); a("s_cselect_b32 s50, 0, 99")
            a("s_cmp_eq_u32 s56, %d" % (i + 1)); a("s_cselect_b32 s51, s50, 99")
            a("s_cmp_eq_u32 s51, 0"); a("s_cselect_b32 exec_hi, 0, -1")
            e = self.E_reg(i)
            a("v_pk_fma_f32 v[84:85], v[%d:%d], v[80:81], v[%d:%d] op_sel:[0,0,0] op_sel_hi:[0,1,1]" % (M2R, M2I, e, e + 1))
            a("v_pk_fma_f32 v[80:81], v[%d:%d], v[80:81], v[84:85] op_sel:[1,1,0] op_sel_hi:[1,0,1] neg_lo:[1,0,0]" % (M2R, M2I))
            a("s_mov_b32 exec_hi, -1")
        a.label(lhd)
        a("v_mul_f32 v84, v%d, v80" % MUR); a("v_fma_f32 v84, -v%d, v81, v84" % MUI)
        a("v_mul_f32 v85, v%d, v81" % MUR); a("v_fma_f32 v85, v%d, v80, v85" % MUI)
        a("s_bitcmp1_b32 s4, 0")
        a("s_cselect_b32 s50, 0, -1"); a("s_cselect_b32 s51, -1, 0")
        a("v_cndmask_b32 v80, v80, v84, s[50:51]"); a("v_cndmask_b32 v81, v81, v85, s[50:51]")
        a("v_mov_b32 v84, v80"); a("v_mov_b32 v85, v81"); a("s_nop 1")
        a("v_permlane32_swap_b32 v80, v84"); a("v_permlane32_swap_b32 v81, v85"); a("s_nop 1")
        a("v_add_f32 v80, v80, v84"); a("v_add_f32 v81, v81, v85")
        a.label(lnoh)
        cmad(8, 9, 80, 81, 78, 79, 76, 77)
        RE, IM = 32, 48
        a("v_and_b32 v12, 31, v1"); a("v_lshrrev_b32 v13, 3, v12"); a("v_and_b32 v14, 7, v1"); a("v_lshlrev_b32 v14, 1, v14")
        a("v_lshrrev_b32 v15, 5, v1"); a("v_lshl_add_u32 v14, v15, 11, v14")
        a("s_lshl_b32 s48, s61, 13"); a("v_add_u32 v14, s48, v14")
        for jx in range(4):
            a("v_xor_b32 v15, %d, v13" % jx); a("v_lshl_add_u32 v%d, v15, 4, v14" % (86 + jx))
        for r in range(16):
            a("v_fma_f32 v10, v%d, v8, v%d" % (LR, RE + r)); a("v_fma_f32 v11, v%d, v9, v%d" % (LR, IM + r))
            a("v_fma_f32 v10, -v%d, v9, v10" % LI); a("v_fma_f32 v9, v%d, v8, v11" % LI)
            a("v_mov_b32 v8, v10")
            a("v_cvt_pk_bf16_f32 v%d, v10, -v9" % (RE + r))
            sw = r >> 1
            a("ds_write_b16 v%d, v%d offset:%d" % (86 + (sw & 3), RE + r, r * 128 + ((0 ^ (sw >> 2)) * 64)))
            a("ds_write_b16_d16_hi v%d, v%d offset:%d" % (86 + (sw & 3), RE + r, r * 128 + ((1 ^ (sw >> 2)) * 64)))
        a("v_and_b32 v13, 31, v1"); a("v_lshrrev_b32 v14, 5, v1")
        self.xfrag_addrs(90, None)
        a("s_lshl_b32 s48, s61, 13")
        for s in range(4): a("v_add_u32 v%d, s48, v%d" % (90 + s, 90 + s))
        a("s_waitcnt lgkmcnt(0)")
        for s in range(4): a("ds_read_b128 v[%d:%d], v%d" % (64 + 4*s, 64 + 4*s + 3, 90 + s))
        a("s_lshl_b32 s48, s4, 1"); a("s_add_u32 s48, s48, s62"); a("s_mul_i32 s48, s48, 56")
        a("s_lshl_b32 s49, s5, 2"); a("s_add_u32 s48, s48, s49"); a("s_lshl_b32 s49, s63, 1"); a("s_add_u32 s48, s48, s49")
        a("s_lshl_b32 s48, s48, 10"); a("s_add_u32 s48, s48, %d" % WS_H); a("s_add_u32 s49, s48, %d" % (28 * 1024))
        a("s_waitcnt lgkmcnt(0)")
        a("buffer_store_dwordx4 v[64:67], v%d, s[%d:%d], s48 offen sc1" % (V_L16, S_WS, S_WS + 3))
        a("buffer_store_dwordx4 v[68:71], v%d, s[%d:%d], s48 offen offset:1024 sc1" % (V_L16, S_WS, S_WS + 3))
        a("buffer_store_dwordx4 v[72:75], v%d, s[%d:%d], s49 offen sc1" % (V_L16, S_WS, S_WS + 3))
        a("buffer_store_dwordx4 v[76:79], v%d, s[%d:%d], s49 offen offset:1024 sc1" % (V_L16, S_WS, S_WS + 3))
        a("s_waitcnt vmcnt(0)")
        a("s_lshl_b32 s52, s5, 2"); a("s_add_u32 s52, s52, s61")
        self.flag_store(WS_HF, 52)
        if self.stop_after == "h":
            a("s_waitcnt vmcnt(0)"); a("s_endpgm")
        for j in range(3):
            a("s_add_u32 s52, s61, %d" % (4 * j))
            a("s_cmp_ge_u32 s52, 7")
            a("s_cselect_b32 s%d, s%d, s%d" % (S_T, P_CIM, P_CRE)); a("s_cselect_b32 s%d, s%d, s%d" % (S_T + 1, P_CIM + 1, P_CRE + 1))
            a("s_cselect_b32 s53, 7, 0")
            a("s_mov_b32 s%d, 0x%x" % (S_T + 2, 448 * 896)); a("s_mov_b32 s%d, 0x20000" % (S_T + 3))
            a("s_sub_u32 s53, s52, s53"); a("s_lshl_b32 s53, s53, 7")
            a("s_mul_i32 s48, s5, %d" % (64 * 896)); a("s_add_u32 s53, s53, s48")
            a("s_lshl_b32 s52, s52, 13")
            for m in range(8):
                a("s_add_u32 s48, s53, %d" % (8 * m * 896))
                a("s_add_u32 m0, s52, %d" % (m * 1024)); a("s_nop 0")
                a("buffer_load_dwordx4 v%d, s[%d:%d], s48 offen lds" % (V_DE if m % 2 == 0 else V_DO, S_T, S_T + 3))
        srd(a, S_T2, P_CIM, 448 * 896)
        a("v_and_b32 v12, 31, v1"); a("v_mul_u32_u24 v12, 896, v12"); a("v_lshrrev_b32 v13, 5, v1"); a("v_lshl_add_u32 v12, v13, 4, v12")
        a("s_lshl_b32 s48, s61, 6"); a("s_add_u32 s48, s48, %d" % (20 * 32)); a("s_mul_i32 s49, s5, %d" % (64 * 896)); a("s_add_u32 s48, s48, s49")
        a("s_mul_i32 s49, s63, %d" % (32 * 896)); a("s_add_u32 s50, s48, s49")
        a("s_xor_b32 s49, s63, 1"); a("s_mul_i32 s49, s49, %d" % (32 * 896)); a("s_add_u32 s51, s48, s49")
        DC = 224
        for kk in range(2):
            a("buffer_load_dwordx4 v[%d:%d], v12, s[%d:%d], s50 offen offset:%d" % (DC + kk*8, DC + kk*8 + 3, S_T2, S_T2 + 3, kk * 32))
            a("buffer_load_dwordx4 v[%d:%d], v12, s[%d:%d], s51 offen offset:%d" % (DC + kk*8 + 4, DC + kk*8 + 7, S_T2, S_T2 + 3, kk * 32))
        self.poll_flags(WS_HF, 0x0fffffff)
        HF = 16
        for rtp in range(2):
            a("s_xor_b32 s48, s62, %d" % rtp); a("s_lshl_b32 s49, s4, 1"); a("s_add_u32 s48, s48, s49"); a("s_mul_i32 s48, s48, %d" % (56 * 1024))
            a("s_add_u32 s48, s48, %d" % WS_H)
            a("s_lshl_b32 s49, s61, 12"); a("s_add_u32 s50, s48, s49")
            for j in range(3):
                for s in range(4):
                    r = HF + ((j * 4 + s) * 2 + rtp) * 4
                    a("buffer_load_dwordx4 v[%d:%d], v%d, s[%d:%d], s50 offen offset:%d sc1" % (r, r + 3, V_L16, S_WS, S_WS + 3, s * 1024))
                a("s_add_u32 s50, s50, %d" % (16 * 1024))
            a("s_lshl_b32 s49, s61, 11"); a("s_add_u32 s50, s48, s49"); a("s_add_u32 s50, s50, %d" % (48 * 1024))
            for kk in range(2):
                r = HF + ((12 + kk) * 2 + rtp) * 4
                a("buffer_load_dwordx4 v[%d:%d], v%d, s[%d:%d], s50 offen offset:%d sc1" % (r, r + 3, V_L16, S_WS, S_WS + 3, kk * 1024))
        a("v_and_b32 v13, 31, v1"); a("v_lshrrev_b32 v14, 5, v1")
        self.xfrag_addrs(240, None)
        a("s_lshl_b32 s48, s61, 13"); a("s_lshl_b32 s49, s63, 12"); a("s_add_u32 s48, s48, s49")
        for s in range(4):
            a("v_add_u32 v%d, s48, v%d" % (240 + s, 240 + s)); a("v_xor_b32 v%d, 0x1000, v%d" % (244 + s, 240 + s))
        a("s_waitcnt vmcnt(0)")
        BT = 208
        for j in range(3):
            if j == 2:
                for s in range(8): a("v_add_u32 v%d, 0x10000, v%d" % (240 + s, 240 + s))
            off = (j * 32768) if j < 2 else 0
            for s in range(4):
                b = BT + (s % 2) * 8
                a("ds_read_b128 v[%d:%d], v%d offset:%d" % (b, b + 3, 240 + s, off))
                a("ds_read_b128 v[%d:%d], v%d offset:%d" % (b + 4, b + 7, 244 + s, off))
                a("s_waitcnt lgkmcnt(0)")
                for rtp in range(2):
                    for cp in range(2):
                        acc = CACC + (2 * rtp + cp) * 16
                        h = HF + ((j * 4 + s) * 2 + rtp) * 4
                        a("%s %s, %s, %s, %s" % (MF, vr(acc, 16), vr(h, 4), vr(b + 4 * cp, 4), vr(acc, 16)))
        for kk in range(2):
            for rtp in range(2):
                for cp in range(2):
                    acc = CACC + (2 * rtp + cp) * 16
                    h = HF + ((12 + kk) * 2 + rtp) * 4
                    a("%s %s, %s, %s, %s" % (MF, vr(acc, 16), vr(h, 4), vr(DC + kk * 8 + 4 * cp, 4), vr(acc, 16)))
        srd(a, S_T, P_WO, 448 * 896)
        a("v_lshrrev_b32 v12, 3, v1"); a("v_mul_u32_u24 v12, 896, v12"); a("v_and_b32 v13, 7, v1"); a("v_lshl_add_u32 v8, v13, 4, v12")
        for jj in range(2):
            lsk = a.newlabel("L_wosk")
            a("s_add_u32 s52, s61, %d" % (4 * jj))
            if jj == 1:
                a("s_cmp_ge_u32 s52, 7"); a("s_cbranch_scc1 %s" % lsk)
            a("s_mul_i32 s53, s52, %d" % (64 * 896)); a("s_lshl_b32 s48, s5, 7"); a("s_add_u32 s53, s53, s48")
            a("s_lshl_b32 s52, s52, 13")
            for m in range(8):
                a("s_add_u32 s48, s53, %d" % (8 * m * 896))
                a("s_add_u32 m0, s52, %d" % (m * 1024)); a("s_nop 0")
                a("buffer_load_dwordx4 v8, s[%d:%d], s48 offen lds" % (S_T, S_T + 3))
            if jj == 1: a.label(lsk)
        self.lds_wait(4, 4)
        a("s_nop 7"); a("s_nop 7")
        for u in range(1, 4):
            a("s_xor_b32 s48, s61, %d" % u); a("s_mul_i32 s48, s48, 12288"); a("s_add_u32 s48, s48, %d" % (L_RED + (u - 1) * 4096))
            a("v_add_u32 v12, s48, v%d" % V_L16)
            for k in range(4):
                a("ds_write_b128 v12, v[%d:%d] offset:%d" % (CACC + u*16 + 4*k, CACC + u*16 + 4*k + 3, k * 1024))
        a("s_waitcnt lgkmcnt(0)")
        self.lds_inc(1)
        self.lds_wait(1, 4)
        a("s_mul_i32 s48, s61, 12288"); a("s_add_u32 s48, s48, %d" % L_RED)
        a("v_add_u32 v12, s48, v%d" % V_L16)
        T = 16
        for s in range(3):
            for k in range(4):
                a("ds_read_b128 v[%d:%d], v12 offset:%d" % (T + s*16 + 4*k, T + s*16 + 4*k + 3, s * 4096 + k * 1024))
        for s in range(3):
            a("s_waitcnt lgkmcnt(%d)" % (8 - 4 * s))
            for r in range(0, 16, 2):
                a("v_pk_add_f32 v[%d:%d], v[%d:%d], v[%d:%d]" % (CACC + r, CACC + r + 1, CACC + r, CACC + r + 1, T + s*16 + r, T + s*16 + r + 1))
        for r in range(16): a("v_mul_f32 v%d, v%d, v%d" % (CACC + r, G1 + r, CACC + r))
        for r in range(16, 32): a("v_mov_b32 v%d, 0" % (CACC + r))
        a("s_waitcnt vmcnt(0)")
        self.lds_inc(2)
        self.lds_wait(2, 4)
        self.poll_flags(WS_OF, 0xffffffff)
        OF = 16
        a("s_lshl_b32 s48, s4, 1"); a("s_add_u32 s48, s48, s62"); a("s_lshl_b32 s48, s48, 4"); a("s_lshl_b32 s49, s63, 3"); a("s_add_u32 s48, s48, s49")
        a("s_lshl_b32 s48, s48, 11"); a("s_add_u32 s48, s48, %d" % WS_O)
        for hh in range(8):
            for f in range(2):
                r = OF + (hh * 2 + f) * 4
                a("buffer_load_dwordx4 v[%d:%d], v%d, s[%d:%d], s48 offen offset:%d sc1" % (r, r + 3, V_L16, S_WS, S_WS + 3, (hh % 2) * 2048 + f * 1024))
            if hh % 2 == 1: a("s_add_u32 s48, s48, 4096")
        a("v_lshrrev_b32 v12, 5, v1"); a("v_lshlrev_b32 v12, 2, v12"); a("v_bfe_u32 v13, v1, 2, 2"); a("v_add_u32 v12, v12, v13"); a("v_lshlrev_b32 v12, 7, v12")
        a("v_bfe_u32 v13, v1, 4, 1"); a("v_lshl_add_u32 v12, v13, 5, v12"); a("v_and_b32 v13, 3, v1"); a("v_lshl_add_u32 v12, v13, 3, v12")
        a("s_mul_i32 s48, s63, %d" % (8 * 28 * 128 + 64)); a("v_add_u32 v240, s48, v12"); a("v_xor_b32 v241, 64, v240")
        BT = 96
        for hh in range(8):
            for f in range(2):
                b = BT + ((hh * 2 + f) % 2) * 8
                off = (28 * hh + 16 * f) * 128
                for cp in range(2):
                    a("ds_read_b64_tr_b16 v[%d:%d], v%d offset:%d" % (b + 4*cp, b + 4*cp + 1, 240 + cp, off))
                    a("ds_read_b64_tr_b16 v[%d:%d], v%d offset:%d" % (b + 4*cp + 2, b + 4*cp + 3, 240 + cp, off + 8 * 128))
                a("s_waitcnt vmcnt(%d) lgkmcnt(0)" % (15 - (hh * 2 + f)))
                r = OF + (hh * 2 + f) * 4
                for cp in range(2):
                    acc = CACC + cp * 16
                    a("%s %s, %s, %s, %s" % (MF, vr(acc, 16), vr(r, 4), vr(b + 4 * cp, 4), vr(acc, 16)))
        a("s_nop 7"); a("s_nop 7")
        a("s_xor_b32 s48, s61, 1"); a("s_lshl_b32 s48, s48, 12"); a("s_add_u32 s48, s48, %d" % L_RED)
        a("v_add_u32 v12, s48, v%d" % V_L16)
        for k in range(4): a("ds_write_b128 v12, v[%d:%d] offset:%d" % (CACC + 16 + 4*k, CACC + 16 + 4*k + 3, k * 1024))
        a("s_waitcnt lgkmcnt(0)")
        self.lds_inc(3)
        self.lds_wait(3, 4)
        a("s_lshl_b32 s48, s61, 12"); a("s_add_u32 s48, s48, %d" % L_RED)
        a("v_add_u32 v12, s48, v%d" % V_L16)
        for k in range(4): a("ds_read_b128 v[%d:%d], v12 offset:%d" % (16 + 4*k, 16 + 4*k + 3, k * 1024))
        a("s_waitcnt lgkmcnt(0)")
        for r in range(0, 16, 2):
            a("v_pk_add_f32 v[%d:%d], v[%d:%d], v[%d:%d]" % (CACC + r, CACC + r + 1, CACC + r, CACC + r + 1, 16 + r, 16 + r + 1))
        srd(a, S_T, P_OUT, 2048 * 448 * 4)
        a("v_lshrrev_b32 v12, 5, v1"); a("v_mul_u32_u24 v12, %d, v12" % (4 * 1792)); a("v_and_b32 v13, 31, v1"); a("v_lshl_add_u32 v12, v13, 2, v12")
        a("s_lshl_b32 s48, s4, 6"); a("s_lshl_b32 s49, s62, 5"); a("s_add_u32 s48, s48, s49"); a("s_mul_i32 s48, s48, 1792")
        a("s_lshl_b32 s49, s5, 8"); a("s_add_u32 s48, s48, s49"); a("s_lshl_b32 s49, s63, 7"); a("s_add_u32 s48, s48, s49")
        for r in range(16):
            aa, b = r // 4, r % 4
            rowoff = (8 * aa + b) * 1792
            if b == 0 and aa > 0: a("s_add_u32 s48, s48, %d" % (8 * 1792))
            off = b * 1792
            if off > 4095:
                a("s_add_u32 s49, s48, %d" % off)
                a("buffer_store_dword v%d, v12, s[%d:%d], s49 offen" % (CACC + r, S_T, S_T + 3))
            else:
                a("buffer_store_dword v%d, v12, s[%d:%d], s48 offen offset:%d" % (CACC + r, S_T, S_T + 3, off))
        a("s_endpgm")

if __name__ == "__main__":
    k = K(debug=False)
    k.build()
    open("gated_mix__grouped_kv_mqa__ssm_conv_s5__prompt.s", "w").write(HEADER_COMMENT + k.text())
```

```python
import sys, math, struct
sys.path.insert(0, "gen")
from asmlib import *
import attn

NAME = "gated_mix__grouped_kv_mqa__ssm_conv_s5__prompt_kernel"

WS_KV = 0x0
WS_E  = 0x40000
WS_HF = 0x80000
WS_OF = 0x81000
WS_H  = 0x100000
WS_O  = 0x480000
WS_END = 0x680000
WS_DBG = 0x700000
WS_SIZE_DBG = 0x2000000

L_X = 0
L_RING = 57344
SLOT = 24576
L_MISC = 155648
L_G = L_MISC
L_SEG = L_MISC + 512
L_KM = L_MISC + 3072
L_QF = L_RING
L_TOTAL = 163840
L_CST = 0
L_CNT = 98304
L_RED = 114688

S_WG, S_WAVE, S_RBK, S_HP, S_NONCE = 2, 3, 4, 5, 6
S_X, S_WQ, S_BA, S_WS, S_DBG, S_T, S_T2 = 8, 12, 16, 24, 28, 32, 36
P_X, P_WQ, P_WK, P_WV, P_WO, P_LRE, P_LIM = 64, 66, 68, 70, 72, 76, 78
P_BRE, P_BIM, P_CRE, P_CIM, P_LDT, P_DSK, P_GW, P_OUT = 80, 82, 84, 86, 88, 90, 92, 94
P_DBG, P_WS = 96, 98
S_XOFF, S_BOFF, S_WOFF, S_MX, S_MB, S_HI = 40, 41, 42, 43, 44, 46
S_TMP = 48

V_LANE, V_L16, V_DE, V_DO, V_DW = 1, 2, 3, 4, 5
V_GATE, V_ZERO = 240, 247

LOG2E = 1.4426950408889634
QSCALE = 28 ** -0.5 * LOG2E
def f2u(x): return struct.unpack("<I", struct.pack("<f", x))[0]

def srd(a, s, p, nbytes):
    a("s_mov_b32 s%d, s%d" % (s, p)); a("s_mov_b32 s%d, s%d" % (s + 1, p + 1))
    a("s_mov_b32 s%d, 0x%x" % (s + 2, nbytes)); a("s_mov_b32 s%d, 0x20000" % (s + 3))

MF = "v_mfma_f32_32x32x16_bf16"
HEADER_COMMENT = "; Generated by gen/kern.py: persistent single-kernel implementation\n"

class K:
    def __init__(self, stop_after=None, debug=False, stamps=False, gst=False):
        self.gst = gst
        self.a = Asm()
        self.stop_after = stop_after
        self.debug = debug
        self.stamps = stamps

    def stamp(self, i):
        if not self.stamps: return
        a = self.a
        a("s_memrealtime s[100:101]"); a("s_waitcnt lgkmcnt(0)"); a("v_writelane_b32 v255, s100, %d" % i)
    def gstamp(self, i, neg=False):
        if not self.gst: return
        a = self.a
        a("s_memrealtime s[100:101]"); a("s_waitcnt lgkmcnt(0)")
        if neg: a("s_not_b32 s100, s100")
        a("v_mov_b32 v252, s100"); a("v_mov_b32 v253, %d" % (4 * i))
        a("s_mov_b64 s[100:101], exec"); a("s_mov_b64 exec, 1")
        a("buffer_atomic_umax v252, v253, s[%d:%d], 0 offen" % (S_DBG, S_DBG + 3))
        a("s_mov_b64 exec, s[100:101]")
    def stampc(self, i):
        if not self.stamps: return
        a = self.a
        a("s_memtime s[100:101]"); a("s_waitcnt lgkmcnt(0)"); a("v_writelane_b32 v255, s100, %d" % i)
    def stamp_flush(self):
        if not self.stamps: return
        a = self.a
        a("s_lshl_b32 s58, s2, 3"); a("s_add_u32 s58, s58, s3"); a("s_lshl_b32 s58, s58, 8"); a("s_add_u32 s58, s58, %d" % (WS_DBG + 0x800000))
        a("v_lshlrev_b32 v254, 2, v1")
        a("buffer_store_dword v255, v254, s[%d:%d], s58 offen" % (S_WS, S_WS + 3))
        a("s_waitcnt vmcnt(0)")

    def prologue(self):
        a = self.a
        a("s_cmp_ge_u32 s2, 256")
        a("s_cbranch_scc1 L_exit")
        if self.gst: a("s_memrealtime s[62:63]")
        if self.stamps:
            a("v_mov_b32 v255, 0")
            self.stamp(0)
            self.stampc(32)
        a("s_load_dwordx16 s[64:79], s[0:1], 0")
        a("s_load_dwordx16 s[80:95], s[0:1], 64")
        a("s_load_dwordx4 s[96:99], s[0:1], 128")
        a("v_and_b32 v1, 63, v0")
        a("v_lshrrev_b32 v6, 6, v0")
        a("s_and_b32 s48, s2, 7")
        a("v_readfirstlane_b32 s3, v6")
        a("s_lshr_b32 s49, s2, 3")
        a("s_and_b32 s5, s49, 7")
        a("s_lshr_b32 s49, s49, 3")
        a("s_lshl_b32 s4, s48, 2")
        a("s_add_u32 s4, s4, s49")
        a("v_lshlrev_b32 v2, 4, v1")
        a("v_lshrrev_b32 v6, 3, v1")
        a("v_and_b32 v7, 7, v1")
        a("v_lshrrev_b32 v8, 4, v1")
        a("v_mul_u32_u24 v9, 896, v6")
        a("v_xor_b32 v10, v7, v8")
        a("v_lshl_add_u32 v3, v10, 4, v9")
        a("v_xor_b32 v10, 4, v10")
        a("v_lshl_add_u32 v4, v10, 4, v9")
        a("v_min_u32 v10, 6, v7")
        a("v_lshl_add_u32 v5, v10, 4, v9")
        a("v_mov_b32 v%d, 0" % V_ZERO)
        a("s_mov_b32 s%d, 0" % S_HI); a("s_mov_b32 s%d, -1" % (S_HI + 1))
        a("s_lshl_b32 s%d, s3, 10" % S_MX)
        a("s_lshl_b32 s48, s4, 6"); a("s_lshl_b32 s49, s3, 3"); a("s_add_u32 s48, s48, s49")
        a("s_mul_i32 s%d, s48, 896" % S_XOFF)
        a("s_mul_i32 s48, s49, 896"); a("s_mul_i32 s50, s5, 112"); a("s_add_u32 s%d, s48, s50" % S_WOFF)
        a("s_waitcnt lgkmcnt(0)")
        self.stamp(1)
        srd(a, S_X, P_X, 2048 * 896)
        srd(a, S_WQ, P_WQ, 448 * 896)
        srd(a, S_WS, P_WS, WS_SIZE_DBG if self.debug else WS_END)
        srd(a, S_DBG, P_DBG, 256)
        if self.gst:
            a("s_not_b32 s62, s62"); a("v_mov_b32 v252, s62"); a("v_mov_b32 v253, 0"); a("s_mov_b64 exec, 1")
            a("buffer_atomic_umax v252, v253, s[%d:%d], 0 offen" % (S_DBG, S_DBG + 3)); a("s_mov_b64 exec, -1")
            self.gstamp(7)
        a("s_or_b32 s48, s2, s3")
        a("s_cmp_lg_u32 s48, 0")
        a("s_cbranch_scc1 L_nononce")
        a("s_memrealtime s[50:51]")
        a("s_waitcnt lgkmcnt(0)")
        a("s_or_b32 s50, s50, 1")
        a("v_mov_b32 v6, s50")
        a("v_mov_b32 v7, 124")
        a("s_mov_b64 exec, 1")
        a("buffer_store_dword v6, v7, s[%d:%d], 0 offen sc1" % (S_DBG, S_DBG + 3))
        a("s_mov_b64 exec, -1")
        a.label("L_nononce")
        srd(a, S_T, P_GW, 896)
        a("v_lshrrev_b32 v6, 3, v1")
        a("s_lshl_b32 s48, s3, 3")
        a("v_add_lshl_u32 v6, v6, s48, 1")
        for c in range(7):
            a("buffer_load_ushort v%d, v6, s[%d:%d], 0 offen offset:%d" % (V_GATE + c, S_T, S_T + 3, 128 * c))

    def dma(self, vaddr, srdreg, soff_expr_reg, m0_base_reg, m0_const):
        a = self.a
        a("s_add_u32 m0, s%d, %d" % (m0_base_reg, m0_const))
        a("s_nop 0")
        a("buffer_load_dwordx4 v%d, s[%d:%d], s%d offen lds" % (vaddr, srdreg, srdreg + 3, soff_expr_reg))

    def issue_chunk(self, c, kv):
        a = self.a
        slot = L_RING + (c % 4) * SLOT
        a("s_add_u32 s48, s%d, %d" % (S_XOFF, 128 * c))
        self.dma(11, S_X, 48, S_MX, L_X + c * 8192)
        if not kv:
            a("s_add_u32 s48, s%d, %d" % (S_WOFF, 64 * c * 896))
            self.dma(V_DW, S_WQ, 48, S_MX, slot)
            a("s_add_u32 s48, s%d, %d" % (S_BOFF, 128 * c))
            self.dma(V_DE, S_BA, 48, S_MB, slot + 8192)
            a("s_add_u32 s48, s%d, %d" % (S_BOFF, 128 * c + 8 * 896))
            self.dma(V_DO, S_BA, 48, S_MB, slot + 8192 + 1024)
        else:
            a("s_add_u32 s48, s%d, %d" % (S_BOFF, 3584 * c))
            self.dma(V_L16, S_BA, 48, S_MB, slot + 8192)
            a("s_add_u32 s48, s%d, %d" % (S_WOFF, 64 * c * 896))
            self.dma(V_DW, S_WQ, 48, S_MX, slot)

    def gate_write(self, c):
        a = self.a
        slot = L_RING + (c % 4) * SLOT
        a("s_add_u32 s48, s%d, %d" % (S_MX, slot))
        a("v_add_u32 v12, s48, v%d" % V_L16)
        a("s_mov_b32 exec_lo, 0x80808080"); a("s_mov_b32 exec_hi, 0x80808080")
        a("ds_write2_b32 v12, v%d, v%d offset0:0 offset1:1" % (V_GATE + c, V_ZERO))
        a("s_mov_b64 exec, -1")

    def xfrag_addrs(self, base, rowexpr):
        a = self.a
        a("v_lshrrev_b32 v15, 1, v13"); a("v_and_b32 v15, 7, v15")
        for s in range(4):
            a("v_or_b32 v12, %d, v14" % (2 * s))
            a("v_xor_b32 v12, v12, v15")
            a("v_lshlrev_b32 v12, 4, v12")
            a("v_lshl_add_u32 v%d, v13, 7, v12" % (base + s))

    def tr_base(self, dst, pitch, colbytes_reg=None, colbytes_const=0):
        a = self.a
        a("v_lshrrev_b32 v12, 5, v1")
        a("v_lshlrev_b32 v12, 3, v12")
        a("v_bfe_u32 v13, v1, 2, 2")
        a("v_add_u32 v12, v12, v13")
        a("v_mul_u32_u24 v12, %d, v12" % pitch)
        a("v_bfe_u32 v13, v1, 4, 1")
        a("v_lshl_add_u32 v12, v13, 5, v12")
        a("v_and_b32 v13, 3, v1")
        a("v_lshl_add_u32 v%d, v13, 3, v12" % dst)
        if colbytes_reg is not None: a("v_add_u32 v%d, s%d, v%d" % (dst, colbytes_reg, dst))
        if colbytes_const: a("v_add_u32 v%d, %d, v%d" % (dst, colbytes_const, dst))

    def chunk_head(self, c, per):
        a = self.a
        later = min(6, c + 2) - c
        a("s_waitcnt vmcnt(%d)" % (per * later))
        self.gate_write(c)
        a("s_waitcnt lgkmcnt(0)")
        if c == 0: self.stamp(2)
        if c == 0: self.gstamp(6)
        a("s_barrier")
        if c in (0, 3, 6): self.stamp({0: 3, 3: 4, 6: 5}[c])

    def pipeline(self, per, kv, reads, mfmas, extra=None):
        a = self.a
        for c in range(8):
            rd, mm = [], []
            if c <= 6:
                self.chunk_head(c, per)
                rd = reads(c)
            else:
                a("s_waitcnt lgkmcnt(0)")
            if c >= 1: mm = mfmas(c - 1)
            pre = [x for x in rd if x.startswith("v_")]
            rd = [x for x in rd if not x.startswith("v_")]
            for x in pre: a(x)
            nper = (len(rd) + max(1, len(mm)) - 1) // max(1, len(mm)) if mm else len(rd)
            ri = 0
            dma_done = False
            for k, m in enumerate(mm):
                a(m)
                for x in rd[ri:ri + nper]: a(x)
                ri += nper
            for x in rd[ri:]: a(x)
            if c + 3 <= 6: self.issue_chunk(c + 3, kv)
            if extra and c in extra: extra[c]()

    def front_q(self, kv):
        XF, TR, TRA, ACC, FA, FB = 16, 20, 21, 32, 48, 64
        def reads(c):
            slot = L_RING + (c % 4) * SLOT
            st = 32 * (c % 2)
            o = ["v_add_u32 v%d, %d, v%d" % (TRA, slot, TR)]
            for s in range(4):
                o.append("ds_read_b64_tr_b16 v[%d:%d], v%d offset:%d" % (FA + st + 4*s, FA + st + 4*s + 1, TRA, 16 * s * 128))
                o.append("ds_read_b64_tr_b16 v[%d:%d], v%d offset:%d" % (FA + st + 4*s + 2, FA + st + 4*s + 3, TRA, 16 * s * 128 + 512))
                o.append("ds_read_b128 v[%d:%d], v%d offset:%d" % (FB + st + 4*s, FB + st + 4*s + 3, XF + s, L_X + c * 8192))
            return o
        def mfmas(c):
            st = 32 * (c % 2)
            return ["%s %s, %s, %s, %s" % (MF, vr(ACC, 16), vr(FA + st + 4*s, 4), vr(FB + st + 4*s, 4), "0" if (c == 0 and s == 0) else vr(ACC, 16)) for s in range(4)]
        self.pipeline(3 if kv else 4, kv, reads, mfmas)

    def front_h(self):
        XP, BF, BFA, RE, IM = 16, 20, 24, 32, 48
        def base(c): return 64 if c % 2 == 0 else 128
        def reads(c):
            slot = L_RING + (c % 4) * SLOT + 8192
            b = base(c)
            o = ["v_add_u32 v%d, %d, v%d" % (BFA + s, slot, BF + s) for s in range(4)]
            for s in range(4):
                o.append("ds_read_b128 v[%d:%d], v%d offset:%d" % (b + 4*s, b + 4*s + 3, XP + s, L_X + c * 8192))
                o.append("ds_read_b128 v[%d:%d], v%d" % (b + 16 + 4*s, b + 16 + 4*s + 3, BFA + s))
                o.append("ds_read_b128 v[%d:%d], v%d offset:8192" % (b + 32 + 4*s, b + 32 + 4*s + 3, BFA + s))
            return o
        def mfmas(c):
            b = base(c); o = []
            for s in range(4):
                z = (c == 0 and s == 0)
                o.append("%s %s, %s, %s, %s" % (MF, vr(RE, 16), vr(b + 4*s, 4), vr(b + 16 + 4*s, 4), "0" if z else vr(RE, 16)))
                o.append("%s %s, %s, %s, %s" % (MF, vr(IM, 16), vr(b + 4*s, 4), vr(b + 32 + 4*s, 4), "0" if z else vr(IM, 16)))
            return o
        self.pipeline(4, False, reads, mfmas, extra={2: self.params_compute})

    def front_kv(self, isv):
        XF, TR, TRA, ACC, FA, FB = 16, 20, 21, 32, 48, 64
        def reads(c):
            slot = L_RING + (c % 4) * SLOT + 8192 + (4096 if isv else 0)
            st = 32 * (c % 2)
            o = ["v_add_u32 v%d, %d, v%d" % (TRA, slot, TR)]
            for s in range(4):
                o.append("ds_read_b64_tr_b16 v[%d:%d], v%d offset:%d" % (FA + st + 4*s, FA + st + 4*s + 1, TRA, 16 * s * 56))
                o.append("ds_read_b64_tr_b16 v[%d:%d], v%d offset:%d" % (FA + st + 4*s + 2, FA + st + 4*s + 3, TRA, 16 * s * 56 + 4 * 56))
                o.append("ds_read_b128 v[%d:%d], v%d offset:%d" % (FB + st + 4*s, FB + st + 4*s + 3, XF + s, L_X + c * 8192))
            return o
        def mfmas(c):
            st = 32 * (c % 2); o = []
            for s in range(4):
                cc = "0" if (c == 0 and s == 0) else vr(ACC, 16)
                if isv: o.append("%s %s, %s, %s, %s" % (MF, vr(ACC, 16), vr(FB + st + 4*s, 4), vr(FA + st + 4*s, 4), cc))
                else:   o.append("%s %s, %s, %s, %s" % (MF, vr(ACC, 16), vr(FA + st + 4*s, 4), vr(FB + st + 4*s, 4), cc))
            return o
        self.pipeline(3, True, reads, mfmas)

    def pack_acc(self, acc, dst, scale=None):
        a = self.a
        if scale is not None:
            for r in range(16): a("v_mul_f32 v%d, s%d, v%d" % (acc + r, scale, acc + r))
        for i in range(8): a("v_cvt_pk_bf16_f32 v%d, v%d, v%d" % (dst + i, acc + 2*i, acc + 2*i + 1))

    def norm2(self, P, out, tmp):
        a = self.a
        a("v_dot2_f32_bf16 v%d, v%d, v%d, v%d" % (out, P, P, V_ZERO))
        for i in range(1, 8): a("v_dot2_f32_bf16 v%d, v%d, v%d, v%d" % (out, P + i, P + i, out))
        a("s_nop 2")
        a("v_mov_b32 v%d, v%d" % (tmp, out))
        a("s_nop 1")
        a("v_permlane32_swap_b32 v%d, v%d" % (out, tmp))
        a("s_nop 1")
        a("v_add_f32 v%d, v%d, v%d" % (out, out, tmp))

    def q_epilogue(self):
        a = self.a
        ACC, P = 32, 48
        a("s_nop 7"); a("s_nop 7")
        a("v_mov_b32 v60, v%d" % (ACC + 12))
        a("s_mov_b32 s48, 0x%x" % f2u(QSCALE))
        self.pack_acc(ACC, P, scale=48)
        a("v_cndmask_b32 v%d, v%d, v%d, s[%d:%d]" % (P + 6, P + 6, V_ZERO, S_HI, S_HI + 1))
        a("v_cndmask_b32 v%d, v%d, v%d, s[%d:%d]" % (P + 7, P + 7, V_ZERO, S_HI, S_HI + 1))
        self.norm2(P, 56, 57)
        a("v_sqrt_f32 v56, v56")
        a("s_mov_b32 s48, 0x%x" % f2u(1.0 + 2.0 ** -6))
        a("v_mul_f32 v56, s48, v56")
        a("v_cvt_pk_bf16_f32 v58, v56, v%d" % V_ZERO)
        a("v_cndmask_b32 v%d, v%d, v58, s[%d:%d]" % (P + 6, P + 6, S_HI, S_HI + 1))
        a("s_lshl_b32 s48, s3, 11"); a("s_add_u32 s48, s48, %d" % L_QF)
        a("v_add_u32 v12, s48, v%d" % V_L16)
        a("ds_write_b128 v12, v[%d:%d]" % (P, P + 3))
        a("ds_write_b128 v12, v[%d:%d] offset:1024" % (P + 4, P + 7))
        a("s_bitcmp1_b32 s3, 0")
        lab = a.newlabel("L_nog")
        a("s_cbranch_scc0 %s" % lab)
        a("s_mov_b32 s48, 0x%x" % f2u(-LOG2E))
        a("v_mul_f32 v60, s48, v60")
        a("v_exp_f32 v60, v60")
        a("s_nop 0")
        a("v_add_f32 v60, 1.0, v60")
        a("v_rcp_f32 v60, v60")
        a("s_lshr_b32 s48, s3, 1"); a("s_lshl_b32 s48, s48, 7"); a("s_add_u32 s48, s48, %d" % (L_G - 128))
        a("v_lshlrev_b32 v12, 2, v1"); a("v_add_u32 v12, s48, v12")
        a("s_mov_b64 exec, s[%d:%d]" % (S_HI, S_HI + 1))
        a("ds_write_b32 v12, v60")
        a("s_mov_b64 exec, -1")
        a.label(lab)

    def k_epilogue(self):
        a = self.a
        ACC, P = 32, 48
        a("s_nop 7"); a("s_nop 7")
        self.pack_acc(ACC, P)
        a("v_cndmask_b32 v%d, v%d, v%d, s[%d:%d]" % (P + 6, P + 6, V_ZERO, S_HI, S_HI + 1))
        a("v_cndmask_b32 v%d, v%d, v%d, s[%d:%d]" % (P + 7, P + 7, V_ZERO, S_HI, S_HI + 1))
        self.norm2(P, 56, 57)
        a("v_mov_b32 v58, 0x3f803f80"); a("v_mov_b32 v59, 0x3f80")
        a("v_cndmask_b32 v%d, v%d, v58, s[%d:%d]" % (P + 6, P + 6, S_HI, S_HI + 1))
        a("v_cndmask_b32 v%d, v%d, v59, s[%d:%d]" % (P + 7, P + 7, S_HI, S_HI + 1))
        self.kv_store(P, 0)
        for sh in (1, 2, 4, 8):
            a("s_nop 1")
            a("v_max_f32_dpp v56, v56, v56 row_shr:%d row_mask:0xf bank_mask:0xf" % sh)
        a("s_nop 1")
        a("v_readlane_b32 s48, v56, 15"); a("v_readlane_b32 s49, v56, 31")
        a("s_nop 3")
        a("s_max_u32 s48, s48, s49")
        a("v_mov_b32 v56, s48")
        a("s_sub_u32 s49, s3, 4"); a("s_lshr_b32 s49, s49, 1"); a("s_lshl_b32 s49, s49, 2"); a("s_add_u32 s49, s49, %d" % L_KM)
        a("v_mov_b32 v12, s49")
        a("ds_write_b32 v12, v56")

    def v_epilogue(self):
        a = self.a
        ACC, P = 32, 48
        a("s_nop 7"); a("s_nop 7")
        self.pack_acc(ACC, P)
        a("s_mov_b32 s48, 0x10000000"); a("s_mov_b32 s49, 0x10000000")
        a("s_mov_b32 s50, 0xe0000000"); a("s_mov_b32 s51, 0xe0000000")
        a("v_mov_b32 v58, 0x3f803f80")
        for i in range(8):
            a("v_cndmask_b32 v%d, v%d, v58, s[48:49]" % (P + i, P + i))
            a("v_cndmask_b32 v%d, v%d, v%d, s[50:51]" % (P + i, P + i, V_ZERO))
        self.kv_store(P, 2048)

    def kv_store(self, P, off):
        a = self.a
        a("s_sub_u32 s52, s3, 4"); a("s_lshr_b32 s52, s52, 1"); a("s_lshl_b32 s53, s4, 1"); a("s_add_u32 s52, s52, s53")
        a("s_lshl_b32 s52, s52, 12"); a("s_add_u32 s52, s52, %d" % (WS_KV + off))
        a("buffer_store_dwordx4 v[%d:%d], v%d, s[%d:%d], s52 offen sc1" % (P, P + 3, V_L16, S_WS, S_WS + 3))
        a("buffer_store_dwordx4 v[%d:%d], v%d, s[%d:%d], s52 offen offset:1024 sc1" % (P + 4, P + 7, V_L16, S_WS, S_WS + 3))

    def params_load(self):
        a = self.a
        a("s_and_b32 s48, s3, 1"); a("s_lshl_b32 s48, s48, 5"); a("s_lshl_b32 s49, s5, 6"); a("s_add_u32 s48, s48, s49")
        a("v_and_b32 v12, 31, v1"); a("v_add_lshl_u32 v12, v12, s48, 1")
        srd(a, S_T2, P_LRE, 896); a("buffer_load_ushort v112, v12, s[%d:%d], 0 offen" % (S_T2, S_T2 + 3))
        srd(a, S_T2, P_LIM, 896); a("buffer_load_ushort v113, v12, s[%d:%d], 0 offen" % (S_T2, S_T2 + 3))
        srd(a, S_T2, P_LDT, 896); a("buffer_load_ushort v114, v12, s[%d:%d], 0 offen" % (S_T2, S_T2 + 3))
        srd(a, S_T2, P_DSK, 896); a("buffer_load_ushort v115, v12, s[%d:%d], 0 offen" % (S_T2, S_T2 + 3))

    def csq(self, dr, di, sr_, si):
        a = self.a
        a("v_mul_f32 v%d, v%d, v%d" % (di, si, si))
        a("v_fma_f32 v%d, v%d, v%d, -v%d" % (dr, sr_, sr_, di))
        a("v_mul_f32 v%d, v%d, v%d" % (di, sr_, si))
        a("v_add_f32 v%d, v%d, v%d" % (di, di, di))

    def params_compute(self):
        a = self.a
        LR, LI, CR, CI, L16R, L16I, MUR, MUI, M2R, M2I, L32R, L32I = range(116, 128)
        a("v_lshlrev_b32 v112, 16, v112"); a("v_lshlrev_b32 v113, 16, v113"); a("v_lshlrev_b32 v114, 16, v114")
        a("s_mov_b32 s48, 0x%x" % f2u(LOG2E))
        a("v_mul_f32 v114, s48, v114"); a("v_exp_f32 v114, v114"); a("s_nop 0")
        a("v_cvt_pk_bf16_f32 v114, v114, v%d" % V_ZERO); a("v_lshlrev_b32 v114, 16, v114")
        a("v_mul_f32 v8, v114, v112"); a("v_mul_f32 v9, v114, v113")
        a("v_mul_f32 v8, s48, v8"); a("v_exp_f32 v8, v8")
        a("v_mul_f32 v9, 0.15915494, v9"); a("v_fract_f32 v9, v9")
        a("v_cos_f32 v10, v9"); a("v_sin_f32 v9, v9"); a("s_nop 0")
        a("v_mul_f32 v%d, v8, v10" % LR); a("v_mul_f32 v%d, v8, v9" % LI)
        a("v_add_f32 v8, -1.0, v%d" % LR)
        a("v_mul_f32 v9, v112, v112"); a("v_fma_f32 v9, v113, v113, v9"); a("v_rcp_f32 v9, v9")
        a("v_mul_f32 v10, v8, v112"); a("v_fma_f32 v10, v%d, v113, v10" % LI)
        a("v_mul_f32 v15, v%d, v112" % LI); a("v_fma_f32 v15, -v8, v113, v15")
        a("v_mul_f32 v%d, v10, v9" % CR); a("v_mul_f32 v%d, v15, v9" % CI)
        self.csq(8, 9, LR, LI)
        self.csq(10, 15, 8, 9)
        self.csq(8, 9, 10, 15)
        self.csq(L16R, L16I, 8, 9)
        self.csq(L32R, L32I, L16R, L16I)
        self.csq(MUR, MUI, L32R, L32I)
        self.csq(M2R, M2I, MUR, MUI)

    def h_epilogue_pass1(self):
        a = self.a
        RE, IM = 32, 48
        LR, LI, CR, CI = 116, 117, 118, 119
        a("s_nop 7"); a("s_nop 7")
        for r in range(16):
            a("v_mul_f32 v8, v%d, v%d" % (CI, IM + r)); a("v_mul_f32 v9, v%d, v%d" % (CI, RE + r))
            a("v_fma_f32 v%d, v%d, v%d, -v8" % (RE + r, CR, RE + r)); a("v_fma_f32 v%d, v%d, v%d, v9" % (IM + r, CR, IM + r))
        a("v_mov_b32 v8, v%d" % RE); a("v_mov_b32 v9, v%d" % IM)
        for r in range(1, 16):
            a("v_fma_f32 v10, v%d, v8, v%d" % (LR, RE + r)); a("v_fma_f32 v15, v%d, v9, v%d" % (LR, IM + r))
            a("v_fma_f32 v10, -v%d, v9, v10" % LI); a("v_fma_f32 v9, v%d, v8, v15" % LI)
            a("v_mov_b32 v8, v10")
        a("s_sub_u32 s48, s3, 4"); a("s_lshr_b32 s49, s48, 1"); a("s_and_b32 s48, s48, 1")
        a("s_lshl_b32 s49, s49, 10"); a("s_lshl_b32 s48, s48, 8"); a("s_add_u32 s48, s48, s49"); a("s_add_u32 s48, s48, %d" % L_SEG)
        a("v_lshrrev_b32 v12, 5, v1"); a("v_lshlrev_b32 v12, 9, v12"); a("v_and_b32 v13, 31, v1"); a("v_lshl_add_u32 v12, v13, 3, v12")
        a("v_add_u32 v12, s48, v12")
        a("ds_write_b64 v12, v[8:9]")

    def poll_nonce(self):
        a = self.a
        lab = a.newlabel("L_pn"); done = a.newlabel("L_pnd")
        a("v_mov_b32 v12, 124")
        a("s_mov_b32 s48, 0x100000")
        a.label(lab)
        a("buffer_load_dword v13, v12, s[%d:%d], 0 offen sc1" % (S_DBG, S_DBG + 3))
        a("s_waitcnt vmcnt(0)")
        a("v_readfirstlane_b32 s%d, v13" % S_NONCE)
        a("s_sub_u32 s48, s48, 1")
        a("s_cbranch_scc1 %s" % done)
        a("s_cmp_eq_u32 s%d, 0" % S_NONCE)
        a("s_cbranch_scc1 %s" % lab)
        a.label(done)

    def dump(self, base, nregs, slot_bytes, idx_sreg, off):
        a = self.a
        a("s_mul_i32 s58, s%d, %d" % (idx_sreg, slot_bytes)); a("s_add_u32 s58, s58, %d" % (WS_DBG + off))
        a("v_lshlrev_b32 v12, 2, v1")
        for r in range(nregs):
            if r % 16 == 0 and r: a("s_add_u32 s58, s58, 4096")
            a("buffer_store_dword v%d, v12, s[%d:%d], s58 offen offset:%d" % (base + r, S_WS, S_WS + 3, (r % 16) * 256))

    def text(self, lds=L_TOTAL):
        hdr = "; @launch grid=(256,1,1) block=(512,1,1) lds=%d\n" % lds
        hdr += '.amdgcn_target "amdgcn-amd-amdhsa--gfx950"\n' + kernel_header(NAME)
        return hdr + self.a.text() + kernel_footer(NAME, 256)

    def build(self):
        a = self.a
        self.prologue()
        a("s_bitcmp1_b32 s3, 0")
        a("s_cselect_b64 s[48:49], -1, 0")
        a("v_cndmask_b32 v11, v%d, v%d, s[48:49]" % (V_DE, V_DO))
        a("s_cmp_eq_u32 s5, 7")
        a("s_cbranch_scc1 L_hp7")
        a("s_cmp_lt_u32 s3, 4")
        a("s_cselect_b32 s%d, s%d, s%d" % (S_BA, P_BRE, P_BIM)); a("s_cselect_b32 s%d, s%d, s%d" % (S_BA + 1, P_BRE + 1, P_BIM + 1))
        a("s_mov_b32 s%d, 0x%x" % (S_BA + 2, 448 * 896)); a("s_mov_b32 s%d, 0x20000" % (S_BA + 3))
        a("s_and_b32 s48, s3, 3"); a("s_lshl_b32 s48, s48, 4"); a("s_lshl_b32 s49, s5, 6"); a("s_add_u32 s48, s48, s49")
        a("s_mul_i32 s%d, s48, 896" % S_BOFF)
        a("s_lshl_b32 s%d, s3, 11" % S_MB)
        a("s_cmp_ge_u32 s3, 4")
        a("s_cbranch_scc1 L_gen_helper")
        for c in range(3): self.issue_chunk(c, False)
        self.q_setup()
        self.front_q(False)
        self.q_epilogue()
        a("s_branch L_front_done")
        a.label("L_gen_helper")
        self.params_load()
        for c in range(3): self.issue_chunk(c, False)
        self.h_setup()
        self.front_h()
        self.h_epilogue_pass1()
        a("s_branch L_front_done")
        a.label("L_hp7")
        a("s_cmp_lt_u32 s3, 4")
        a("s_cselect_b32 s%d, s%d, s%d" % (S_BA, P_WK, P_WV)); a("s_cselect_b32 s%d, s%d, s%d" % (S_BA + 1, P_WK + 1, P_WV + 1))
        a("s_mov_b32 s%d, 0x%x" % (S_BA + 2, 448 * 56)); a("s_mov_b32 s%d, 0x20000" % (S_BA + 3))
        a("s_and_b32 s48, s3, 3"); a("s_lshl_b32 s%d, s48, 10" % S_BOFF)
        a("s_lshr_b32 s49, s3, 2"); a("s_lshl_b32 s49, s49, 12"); a("s_add_u32 s%d, s49, s%d" % (S_MB, S_BOFF))
        for c in range(3): self.issue_chunk(c, True)
        a("s_cmp_ge_u32 s3, 4")
        a("s_cbranch_scc1 L_hp7_helper")
        self.q_setup()
        self.front_q(True)
        self.q_epilogue()
        a("s_branch L_front_done")
        a.label("L_hp7_helper")
        a("s_sub_u32 s48, s3, 4"); a("s_lshr_b32 s48, s48, 1"); a("s_lshl_b32 s48, s48, 5")
        a("v_and_b32 v13, 31, v1"); a("v_add_u32 v13, s48, v13"); a("v_lshrrev_b32 v14, 5, v1")
        self.xfrag_addrs(16, None)
        self.tr_base(20, 56)
        a("s_bitcmp1_b32 s3, 0")
        a("s_cbranch_scc1 L_hp7_v")
        self.front_kv(False)
        self.k_epilogue()
        a("s_waitcnt vmcnt(0)")
        a("s_branch L_front_done")
        a.label("L_hp7_v")
        self.front_kv(True)
        self.v_epilogue()
        a("s_waitcnt vmcnt(0)")
        a.label("L_front_done")
        a("s_waitcnt lgkmcnt(0)")
        self.stamp(6)
        self.stampc(33)
        a("s_barrier")
        self.gstamp(1)
        self.stamp(7)
        self.after_front()
        a.label("L_exit")
        a("s_endpgm")

    def q_setup(self):
        a = self.a
        a("s_lshr_b32 s48, s3, 1"); a("s_lshl_b32 s48, s48, 5")
        a("v_and_b32 v13, 31, v1"); a("v_add_u32 v13, s48, v13"); a("v_lshrrev_b32 v14, 5, v1")
        self.xfrag_addrs(16, None)
        a("s_and_b32 s48, s3, 1"); a("s_mul_i32 s48, s48, 56")
        self.tr_base(20, 128, colbytes_reg=48)

    def h_setup(self):
        a = self.a
        a("v_and_b32 v12, 31, v1")
        a("v_bfe_u32 v13, v12, 2, 1"); a("v_lshlrev_b32 v13, 4, v13")
        a("v_lshrrev_b32 v14, 3, v12"); a("v_lshl_add_u32 v13, v14, 2, v13")
        a("v_and_b32 v14, 3, v12"); a("v_add_u32 v13, v13, v14")
        a("s_sub_u32 s48, s3, 4"); a("s_lshr_b32 s48, s48, 1"); a("s_lshl_b32 s48, s48, 5")
        a("v_add_u32 v13, s48, v13"); a("v_lshrrev_b32 v14, 5, v1")
        self.xfrag_addrs(16, None)
        a("s_and_b32 s48, s3, 1"); a("s_lshl_b32 s48, s48, 5")
        a("v_and_b32 v13, 31, v1"); a("v_add_u32 v13, s48, v13"); a("v_lshrrev_b32 v14, 5, v1")
        self.xfrag_addrs(20, None)

    def lds_inc(self, cnt):
        a = self.a
        a("v_mov_b32 v12, %d" % (L_CNT + 4 * cnt)); a("v_mov_b32 v13, 1")
        a("s_mov_b64 exec, 1")
        a("ds_add_u32 v12, v13")
        a("s_mov_b64 exec, -1")
    def lds_wait(self, cnt, target):
        a = self.a
        lab = a.newlabel("L_lw"); done = a.newlabel("L_lwd")
        a("v_mov_b32 v12, %d" % (L_CNT + 4 * cnt))
        a("s_mov_b32 s48, 0x400000")
        a.label(lab)
        a("ds_read_b32 v13, v12")
        a("s_waitcnt lgkmcnt(0)")
        a("v_readfirstlane_b32 s49, v13")
        a("s_sub_u32 s48, s48, 1")
        a("s_cbranch_scc1 %s" % done)
        a("s_cmp_lt_u32 s49, %d" % target)
        a("s_cbranch_scc1 %s" % lab)
        a.label(done)

    def poll_flags(self, ws_off, nflags_mask_lo):
        a = self.a
        lab = a.newlabel("L_pf"); done = a.newlabel("L_pfd")
        a("s_lshl_b32 s50, s4, 7"); a("s_add_u32 s50, s50, %d" % ws_off)
        a("v_lshlrev_b32 v12, 2, v1")
        a("s_mov_b32 s48, 0x100000")
        a("s_mov_b32 exec_lo, 0x%x" % nflags_mask_lo); a("s_mov_b32 exec_hi, 0")
        a.label(lab)
        a("buffer_load_dword v13, v12, s[%d:%d], s50 offen sc1" % (S_WS, S_WS + 3))
        a("s_waitcnt vmcnt(0)")
        a("v_cmp_ne_u32 vcc, s%d, v13" % S_NONCE)
        a("s_sub_u32 s48, s48, 1")
        a("s_cbranch_scc1 %s" % done)
        a("s_nop 2")
        a("s_cbranch_vccz %s" % done)
        a("s_sleep 1")
        a("s_branch %s" % lab)
        a.label(done)
        a("s_mov_b64 exec, -1")

    def flag_store(self, ws_off, idx_sreg):
        a = self.a
        a("s_lshl_b32 s50, s4, 7"); a("s_lshl_b32 s51, s%d, 2" % idx_sreg); a("s_add_u32 s50, s50, s51"); a("s_add_u32 s50, s50, %d" % ws_off)
        a("v_mov_b32 v12, s50"); a("v_mov_b32 v13, s%d" % S_NONCE)
        a("s_mov_b64 exec, 1")
        a("buffer_store_dword v13, v12, s[%d:%d], 0 offen sc1" % (S_WS, S_WS + 3))
        a("s_mov_b64 exec, -1")

    def after_front(self):
        a = self.a
        a("s_cmp_ge_u32 s3, 4")
        a("s_cbranch_scc1 L_af_helper")
        self.attention_wave()
        a.label("L_af_helper")
        a("s_cmp_eq_u32 s5, 7")
        a("s_cbranch_scc0 L_af_gen")
        a("s_cmp_eq_u32 s3, 4"); a("s_cbranch_scc0 L_exit")
        a("v_mov_b32 v12, %d" % L_KM); a("ds_read_b64 v[14:15], v12"); a("s_waitcnt lgkmcnt(0)")
        a("v_max_f32 v14, v14, v15"); a("v_or_b32 v14, 1, v14")
        a("s_lshl_b32 s48, s4, 2"); a("v_mov_b32 v12, s48")
        a("s_mov_b64 exec, 1")
        a("buffer_store_dword v14, v12, s[%d:%d], 0 offen offset:128 sc1" % (S_DBG, S_DBG + 3))
        a("s_mov_b64 exec, -1")
        self.zero_counters()
        a("s_waitcnt lgkmcnt(0)")
        self.stamp(8)
        a("s_barrier")
        self.stamp_flush()
        a("s_endpgm")
        a.label("L_af_gen")
        self.helper_wave()

    def zero_counters(self):
        a = self.a
        a("v_lshlrev_b32 v12, 2, v1"); a("v_add_u32 v12, %d, v12" % L_CNT)
        a("ds_write_b32 v12, v%d" % V_ZERO)

    def attention_wave(self):
        a = self.a
        R = attn.AttnRegs(16)
        for s in range(4):
            a("s_xor_b32 s48, s3, %d" % ((s + 1) & 3)); a("s_lshl_b32 s48, s48, 11"); a("s_add_u32 s48, s48, %d" % L_QF)
            a("v_add_u32 v12, s48, v%d" % V_L16)
            a("ds_read_b128 v[%d:%d], v12" % (R.Q + s*8, R.Q + s*8 + 3))
            a("ds_read_b128 v[%d:%d], v12 offset:1024" % (R.Q + s*8 + 4, R.Q + s*8 + 7))
        a("s_lshr_b32 s48, s3, 1"); a("s_lshl_b32 s48, s48, 7"); a("s_add_u32 s48, s48, %d" % L_G)
        a("v_and_b32 v12, 31, v1"); a("v_lshlrev_b32 v12, 2, v12"); a("v_add_u32 v12, s48, v12")
        a("ds_read_b32 v10, v12")
        a("s_waitcnt lgkmcnt(0)")
        a("s_barrier")
        self.stamp(8)
        lab = a.newlabel("L_pkv"); done = a.newlabel("L_pkvd")
        a("v_lshlrev_b32 v12, 2, v1"); a("v_add_u32 v12, 128, v12"); a("v_mov_b32 v13, 124")
        a("v_cndmask_b32 v12, v12, v13, s[%d:%d]" % (S_HI, S_HI + 1))
        a("s_mov_b32 s48, 0x100000")
        a("s_mov_b32 exec_lo, -1"); a("s_mov_b32 exec_hi, 1")
        a.label(lab)
        a("buffer_load_dword v13, v12, s[%d:%d], 0 offen sc1" % (S_DBG, S_DBG + 3))
        a("s_waitcnt vmcnt(0)")
        a("v_cmp_eq_u32 vcc, 0, v13")
        a("s_sub_u32 s48, s48, 1")
        a("s_cbranch_scc1 %s" % done)
        a("s_nop 2")
        a("s_cbranch_vccz %s" % done)
        a("s_sleep 1")
        a("s_branch %s" % lab)
        a.label(done)
        a("s_mov_b64 exec, -1")
        a("v_readlane_b32 s%d, v13, 32" % S_NONCE)
        self.stamp(9)
        for sh in (1, 2, 4, 8):
            a("s_nop 1")
            a("v_max_f32_dpp v13, v13, v13 row_shr:%d row_mask:0xf bank_mask:0xf" % sh)
        a("s_nop 1")
        a("v_readlane_b32 s48, v13, 15"); a("v_readlane_b32 s49, v13, 31")
        a("s_nop 3")
        a("s_max_u32 s48, s48, s49")
        a("v_mov_b32 v13, s48")
        a("v_sqrt_f32 v13, v13")
        a("s_mov_b32 s48, 0x%x" % f2u(-(1.0 + 2.0 ** -6)))
        a("s_nop 0")
        a("v_mul_f32 v13, s48, v13")
        for s in range(4):
            q = R.Q + s*8 + 6
            a("v_lshlrev_b32 v12, 16, v%d" % q)
            a("v_mul_f32 v12, v12, v13")
            a("v_cvt_pk_bf16_f32 v12, v12, v%d" % V_ZERO)
            a("v_cndmask_b32 v%d, v%d, v12, s[%d:%d]" % (q, q, S_HI, S_HI + 1))
        if self.stop_after == "qpatch":
            a("s_lshl_b32 s57, s2, 2"); a("s_add_u32 s57, s57, s3")
            self.dump(R.Q, 32, 8192, 57, 0)
            a("s_waitcnt vmcnt(0)"); a("s_endpgm")
        a("s_lshl_b32 s60, s3, 16"); a("s_add_u32 s60, s60, %d" % WS_KV)
        a("s_setprio 1")
        self.gstamp(2)
        self.stamp(10)
        self.stampc(30)
        attn.attn_loop(a, R, V_L16, S_WS, 60)
        a("s_nop 7"); a("s_nop 7")
        self.stampc(31)
        self.gstamp(3)
        self.stamp(11)
        for s in range(3):
            a("s_xor_b32 s48, s3, %d" % (s + 1)); a("s_mul_i32 s48, s48, 12288"); a("s_add_u32 s48, s48, %d" % (L_RED + s * 4096))
            a("v_add_u32 v12, s48, v%d" % V_L16)
            for k in range(4):
                a("ds_write_b128 v12, v[%d:%d] offset:%d" % (R.O + s*16 + 4*k, R.O + s*16 + 4*k + 3, k * 1024))
        a("s_waitcnt lgkmcnt(0)")
        self.lds_inc(0)
        self.lds_wait(0, 4)
        a("s_mul_i32 s48, s3, 12288"); a("s_add_u32 s48, s48, %d" % L_RED)
        a("v_add_u32 v12, s48, v%d" % V_L16)
        T = R.KV
        for s in range(3):
            for k in range(4):
                a("ds_read_b128 v[%d:%d], v12 offset:%d" % (T + s*16 + 4*k, T + s*16 + 4*k + 3, s * 4096 + k * 1024))
        O = R.O + 48
        for s in range(3):
            a("s_waitcnt lgkmcnt(%d)" % (8 - 4 * s))
            for r in range(0, 16, 2):
                a("v_pk_add_f32 v[%d:%d], v[%d:%d], v[%d:%d]" % (O + r, O + r + 1, O + r, O + r + 1, T + s*16 + r, T + s*16 + r + 1))
        self.lds_inc(4)
        self.stamp(12)
        a("v_mov_b32 v12, v%d" % (O + 12)); a("v_mov_b32 v13, v%d" % (O + 12))
        a("s_nop 1")
        a("v_permlane32_swap_b32 v12, v13")
        a("s_nop 1")
        if self.debug: a("v_mov_b32 v14, v13")
        a("v_rcp_f32 v13, v13")
        a("s_nop 0")
        a("v_mul_f32 v13, v13, v10")
        for r in range(16): a("v_mul_f32 v%d, v13, v%d" % (O + r, O + r))
        P = R.P
        for i in range(8): a("v_cvt_pk_bf16_f32 v%d, v%d, v%d" % (P + i, O + 2*i, O + 2*i + 1))
        a("v_cndmask_b32 v%d, v%d, v%d, s[%d:%d]" % (P + 6, P + 6, V_ZERO, S_HI, S_HI + 1))
        a("v_cndmask_b32 v%d, v%d, v%d, s[%d:%d]" % (P + 7, P + 7, V_ZERO, S_HI, S_HI + 1))
        a("s_lshl_b32 s48, s4, 1"); a("s_lshr_b32 s49, s3, 1"); a("s_add_u32 s48, s48, s49"); a("s_lshl_b32 s48, s48, 4")
        a("s_lshl_b32 s49, s5, 1"); a("s_add_u32 s48, s48, s49"); a("s_and_b32 s49, s3, 1"); a("s_add_u32 s48, s48, s49")
        a("s_lshl_b32 s48, s48, 11"); a("s_add_u32 s48, s48, %d" % WS_O)
        a("buffer_store_dwordx4 v[%d:%d], v%d, s[%d:%d], s48 offen sc1" % (P, P + 3, V_L16, S_WS, S_WS + 3))
        a("buffer_store_dwordx4 v[%d:%d], v%d, s[%d:%d], s48 offen offset:1024 sc1" % (P + 4, P + 7, V_L16, S_WS, S_WS + 3))
        a("s_waitcnt vmcnt(0)")
        self.stamp(13)
        a("s_lshl_b32 s52, s5, 2"); a("s_add_u32 s52, s52, s3")
        self.flag_store(WS_OF, 52)
        self.stamp_flush()
        a("s_endpgm")

    def E_reg(self, i): return 208 + 4 * i if i < 12 else 96 + 4 * (i - 12)

    def helper_wave(self):
        a = self.a
        LR, LI, CR, CI, L16R, L16I, MUR, MUI, M2R, M2I, L32R, L32I = range(116, 128)
        SEGV, CACC, G1 = 64, 128, 192
        a("s_sub_u32 s61, s3, 4"); a("s_lshr_b32 s62, s61, 1"); a("s_and_b32 s63, s61, 1")
        a("s_lshl_b32 s48, s63, 8"); a("s_add_u32 s48, s48, %d" % L_SEG)
        a("v_and_b32 v13, 31, v1"); a("v_lshlrev_b32 v13, 3, v13"); a("v_add_u32 v13, s48, v13")
        for sg in range(4): a("ds_read_b64 v[%d:%d], v13 offset:%d" % (SEGV + 2*sg, SEGV + 2*sg + 1, sg * 512))
        a("s_lshl_b32 s48, s62, 7"); a("s_add_u32 s48, s48, %d" % L_G)
        a("v_lshrrev_b32 v14, 5, v1"); a("v_lshlrev_b32 v13, 4, v14"); a("v_add_u32 v13, s48, v13")
        for aa in range(4): a("ds_read_b128 v[%d:%d], v13 offset:%d" % (G1 + 4*aa, G1 + 4*aa + 3, aa * 32))
        a("v_and_b32 v12, 31, v1"); a("v_lshrrev_b32 v13, 3, v12")
        a("s_lshl_b32 s48, s63, 2"); a("v_add_u32 v13, s48, v13")
        a("v_lshlrev_b32 v15, 1, v14"); a("v_xor_b32 v13, v13, v15")
        a("v_and_b32 v12, 7, v1"); a("v_lshlrev_b32 v12, 1, v12")
        a("v_lshl_add_u32 v12, v14, 9, v12")
        a("s_lshl_b32 s48, s62, 12"); a("s_lshl_b32 s49, s5, 13"); a("s_add_u32 s48, s48, s49")
        a("v_add_u32 v12, s48, v12")
        for n, kap in enumerate((0, 1, 4, 5)):
            a("v_xor_b32 v15, %d, v13" % kap); a("v_lshl_add_u32 v%d, v15, 4, v12" % (76 + n))
        for r in range(16):
            aa, b = r // 4, r % 4
            kap = 4 * (aa & 1) | (b >> 1)
            n = (0, 1, None, None, 4, 5).index(kap) if False else {0: 0, 1: 1, 4: 2, 5: 3}[kap]
            a("ds_read_u16 v%d, v%d offset:%d" % (CACC + r, 76 + n, (8 * aa + b) * 128))
        a("s_cmp_eq_u32 s3, 4"); lz = a.newlabel("L_nz"); a("s_cbranch_scc0 %s" % lz)
        self.zero_counters()
        a.label(lz)
        a("s_waitcnt lgkmcnt(0)")
        a("s_barrier")
        self.stamp(8)
        a("s_setprio 3")
        a("v_lshlrev_b32 v115, 16, v115"); a("v_mul_f32 v115, 0.5, v115")
        for r in range(16):
            a("v_lshlrev_b32 v%d, 16, v%d" % (CACC + r, CACC + r)); a("v_mul_f32 v%d, v115, v%d" % (CACC + r, CACC + r))
            a("v_sub_f32 v%d, 1.0, v%d" % (G1 + r, G1 + r)); a("v_add_f32 v%d, v%d, v%d" % (G1 + r, G1 + r, G1 + r))
        for r in range(16, 64): a("v_mov_b32 v%d, 0" % (CACC + r))
        self.poll_nonce()
        self.stamp(9)
        def cmad(dr, di, ar, ai, mr, mi, er, ei):
            a("v_fma_f32 v%d, v%d, v%d, v%d" % (dr, ar, mr, er)); a("v_fma_f32 v%d, v%d, v%d, v%d" % (di, ai, mr, ei))
            a("v_fma_f32 v%d, -v%d, v%d, v%d" % (dr, ai, mi, dr)); a("v_fma_f32 v%d, v%d, v%d, v%d" % (di, ar, mi, di))
        e0, e1, e2, e3 = SEGV, SEGV + 2, SEGV + 4, SEGV + 6
        cmad(72, 73, e0, e0 + 1, L16R, L16I, e1, e1 + 1)
        cmad(74, 75, 72, 73, L16R, L16I, e2, e2 + 1)
        lne = a.newlabel("L_noE")
        a("s_cmp_eq_u32 s62, 0"); a("s_cbranch_scc0 %s" % lne)
        cmad(8, 9, 74, 75, L16R, L16I, e3, e3 + 1)
        a("v_mov_b32 v10, s%d" % S_NONCE); a("v_mov_b32 v11, s%d" % S_NONCE)
        a("s_mul_i32 s48, s4, 7168"); a("s_lshl_b32 s49, s5, 10"); a("s_add_u32 s48, s48, s49"); a("s_lshl_b32 s49, s63, 9"); a("s_add_u32 s48, s48, s49")
        a("s_add_u32 s48, s48, %d" % WS_E)
        a("s_mov_b32 exec_hi, 0")
        a("buffer_store_dwordx4 v[8:11], v%d, s[%d:%d], s48 offen sc1" % (V_L16, S_WS, S_WS + 3))
        a("s_mov_b64 exec, -1")
        a.label(lne)
        lr1 = a.newlabel("L_rt1"); lrd = a.newlabel("L_rtd")
        a("s_cmp_eq_u32 s62, 0"); a("s_cbranch_scc0 %s" % lr1)
        hi = "s[%d:%d]" % (S_HI, S_HI + 1)
        a("v_cndmask_b32 v76, v%d, v%d, %s" % (V_ZERO, e0, hi)); a("v_cndmask_b32 v77, v%d, v%d, %s" % (V_ZERO, e0 + 1, hi))
        a("v_mov_b32 v12, 1.0")
        a("v_cndmask_b32 v78, v12, v%d, %s" % (L16R, hi)); a("v_cndmask_b32 v79, v%d, v%d, %s" % (V_ZERO, L16I, hi))
        a("s_branch %s" % lrd)
        a.label(lr1)
        a("v_cndmask_b32 v76, v72, v74, %s" % hi); a("v_cndmask_b32 v77, v73, v75, %s" % hi)
        a("v_mul_f32 v12, v%d, v%d" % (L32R, L16R)); a("v_fma_f32 v12, -v%d, v%d, v12" % (L32I, L16I))
        a("v_mul_f32 v13, v%d, v%d" % (L32R, L16I)); a("v_fma_f32 v13, v%d, v%d, v13" % (L32I, L16R))
        a("v_cndmask_b32 v78, v%d, v12, %s" % (L32R, hi)); a("v_cndmask_b32 v79, v%d, v13, %s" % (L32I, hi))
        a.label(lrd)
        a("s_add_u32 s56, s4, 1"); a("s_lshr_b32 s56, s56, 1")
        a("v_mov_b32 v80, 0"); a("v_mov_b32 v81, 0")
        lnoh = a.newlabel("L_noH")
        a("s_cmp_eq_u32 s4, 0"); a("s_cbranch_scc1 %s" % lnoh)
        a("v_and_b32 v12, 31, v1"); a("v_lshlrev_b32 v12, 4, v12"); a("v_lshrrev_b32 v13, 5, v1"); a("v_mul_u32_u24 v13, 7168, v13"); a("v_add_u32 v82, v12, v13")
        a("s_lshl_b32 s54, s5, 10"); a("s_lshl_b32 s49, s63, 9"); a("s_add_u32 s54, s54, s49"); a("s_add_u32 s54, s54, %d" % WS_E)
        a("s_mov_b32 s55, 0x40000")
        lp = a.newlabel("L_pe"); lld = a.newlabel("L_pel"); lck = a.newlabel("L_pec"); lok = a.newlabel("L_peo")
        a.label(lp)
        a("s_mov_b32 s48, s54")
        for i in range(16):
            if i:
                a("s_cmp_le_u32 s56, %d" % i); a("s_cbranch_scc1 %s" % lld)
            a("buffer_load_dwordx4 v[%d:%d], v82, s[%d:%d], s48 offen sc1" % (self.E_reg(i), self.E_reg(i) + 3, S_WS, S_WS + 3))
            a("s_add_u32 s48, s48, 14336")
        a.label(lld)
        a("s_waitcnt vmcnt(0)")
        a("v_mov_b32 v83, 0")
        for i in range(16):
            if i:
                a("s_cmp_le_u32 s56, %d" % i); a("s_cbranch_scc1 %s" % lck)
            a("s_lshl_b32 s49, s56, 1"); a("s_sub_u32 s49, s49, 1")
            a("s_cmp_eq_u32 s49, s4"); a("s_cselect_b32 s50, %d, 99" % 0)
            a("s_cmp_eq_u32 s56, %d" % (i + 1)); a("s_cselect_b32 s51, s50, 99")
            a("s_cmp_eq_u32 s51, 0"); a("s_cselect_b32 exec_hi, 0, -1")
            a("v_xor_b32 v12, s%d, v%d" % (S_NONCE, self.E_reg(i) + 2)); a("v_or_b32 v83, v83, v12")
            a("s_mov_b32 exec_hi, -1")
        a.label(lck)
        a("v_cmp_ne_u32 vcc, 0, v83")
        a("s_sub_u32 s55, s55, 1"); a("s_cbranch_scc1 %s" % lok)
        a("s_nop 2")
        a("s_cbranch_vccz %s" % lok)
        a("s_sleep 2")
        a("s_branch %s" % lp)
        a.label(lok)
        self.stamp(10)
        lhd = a.newlabel("L_hd")
        for i in range(16):
            if i:
                a("s_cmp_le_u32 s56, %d" % i); a("s_cbranch_scc1 %s" % lhd)
            a("s_lshl_b32 s49, s56, 1"); a("s_sub_u32 s49, s49, 1")
            a("s_cmp_eq_u32 s49, s4"); a("s_cselect_b32 s50, 0, 99")
            a("s_cmp_eq_u32 s56, %d" % (i + 1)); a("s_cselect_b32 s51, s50, 99")
            a("s_cmp_eq_u32 s51, 0"); a("s_cselect_b32 exec_hi, 0, -1")
            e = self.E_reg(i)
            a("v_pk_fma_f32 v[84:85], v[%d:%d], v[80:81], v[%d:%d] op_sel:[0,0,0] op_sel_hi:[0,1,1]" % (M2R, M2I, e, e + 1))
            a("v_pk_fma_f32 v[80:81], v[%d:%d], v[80:81], v[84:85] op_sel:[1,1,0] op_sel_hi:[1,0,1] neg_lo:[1,0,0]" % (M2R, M2I))
            a("s_mov_b32 exec_hi, -1")
        a.label(lhd)
        a("v_mul_f32 v84, v%d, v80" % MUR); a("v_fma_f32 v84, -v%d, v81, v84" % MUI)
        a("v_mul_f32 v85, v%d, v81" % MUR); a("v_fma_f32 v85, v%d, v80, v85" % MUI)
        a("s_bitcmp1_b32 s4, 0")
        a("s_cselect_b32 s50, 0, -1"); a("s_cselect_b32 s51, -1, 0")
        a("v_cndmask_b32 v80, v80, v84, s[50:51]"); a("v_cndmask_b32 v81, v81, v85, s[50:51]")
        a("v_mov_b32 v84, v80"); a("v_mov_b32 v85, v81"); a("s_nop 1")
        a("v_permlane32_swap_b32 v80, v84"); a("v_permlane32_swap_b32 v81, v85"); a("s_nop 1")
        a("v_add_f32 v80, v80, v84"); a("v_add_f32 v81, v81, v85")
        a.label(lnoh)
        cmad(8, 9, 80, 81, 78, 79, 76, 77)
        RE, IM = 32, 48
        a("v_and_b32 v12, 31, v1"); a("v_lshrrev_b32 v13, 3, v12"); a("v_and_b32 v14, 7, v1"); a("v_lshlrev_b32 v14, 1, v14")
        a("v_lshrrev_b32 v15, 5, v1"); a("v_lshl_add_u32 v14, v15, 11, v14")
        a("s_lshl_b32 s48, s61, 13"); a("v_add_u32 v14, s48, v14")
        for jx in range(4):
            a("v_xor_b32 v15, %d, v13" % jx); a("v_lshl_add_u32 v%d, v15, 4, v14" % (86 + jx))
        for r in range(16):
            a("v_fma_f32 v10, v%d, v8, v%d" % (LR, RE + r)); a("v_fma_f32 v11, v%d, v9, v%d" % (LR, IM + r))
            a("v_fma_f32 v10, -v%d, v9, v10" % LI); a("v_fma_f32 v9, v%d, v8, v11" % LI)
            a("v_mov_b32 v8, v10")
            a("v_cvt_pk_bf16_f32 v%d, v10, -v9" % (RE + r))
            sw = r >> 1
            a("ds_write_b16 v%d, v%d offset:%d" % (86 + (sw & 3), RE + r, r * 128 + ((0 ^ (sw >> 2)) * 64)))
            a("ds_write_b16_d16_hi v%d, v%d offset:%d" % (86 + (sw & 3), RE + r, r * 128 + ((1 ^ (sw >> 2)) * 64)))
        a("v_and_b32 v13, 31, v1"); a("v_lshrrev_b32 v14, 5, v1")
        self.xfrag_addrs(90, None)
        a("s_lshl_b32 s48, s61, 13")
        for s in range(4): a("v_add_u32 v%d, s48, v%d" % (90 + s, 90 + s))
        a("s_waitcnt lgkmcnt(0)")
        for s in range(4): a("ds_read_b128 v[%d:%d], v%d" % (64 + 4*s, 64 + 4*s + 3, 90 + s))
        a("s_lshl_b32 s48, s4, 1"); a("s_add_u32 s48, s48, s62"); a("s_mul_i32 s48, s48, 56")
        a("s_lshl_b32 s49, s5, 2"); a("s_add_u32 s48, s48, s49"); a("s_lshl_b32 s49, s63, 1"); a("s_add_u32 s48, s48, s49")
        a("s_lshl_b32 s48, s48, 10"); a("s_add_u32 s48, s48, %d" % WS_H); a("s_add_u32 s49, s48, %d" % (28 * 1024))
        a("s_waitcnt lgkmcnt(0)")
        a("buffer_store_dwordx4 v[64:67], v%d, s[%d:%d], s48 offen sc1" % (V_L16, S_WS, S_WS + 3))
        a("buffer_store_dwordx4 v[68:71], v%d, s[%d:%d], s48 offen offset:1024 sc1" % (V_L16, S_WS, S_WS + 3))
        a("buffer_store_dwordx4 v[72:75], v%d, s[%d:%d], s49 offen sc1" % (V_L16, S_WS, S_WS + 3))
        a("buffer_store_dwordx4 v[76:79], v%d, s[%d:%d], s49 offen offset:1024 sc1" % (V_L16, S_WS, S_WS + 3))
        self.stamp(11)
        a("s_waitcnt vmcnt(0)")
        self.stamp(12)
        self.gstamp(4)
        a("s_lshl_b32 s52, s5, 2"); a("s_add_u32 s52, s52, s61")
        self.flag_store(WS_HF, 52)
        if self.stop_after == "h":
            a("s_waitcnt vmcnt(0)"); a("s_endpgm")
        for j in range(3):
            a("s_add_u32 s52, s61, %d" % (4 * j))
            a("s_cmp_ge_u32 s52, 7")
            a("s_cselect_b32 s%d, s%d, s%d" % (S_T, P_CIM, P_CRE)); a("s_cselect_b32 s%d, s%d, s%d" % (S_T + 1, P_CIM + 1, P_CRE + 1))
            a("s_cselect_b32 s53, 7, 0")
            a("s_mov_b32 s%d, 0x%x" % (S_T + 2, 448 * 896)); a("s_mov_b32 s%d, 0x20000" % (S_T + 3))
            a("s_sub_u32 s53, s52, s53"); a("s_lshl_b32 s53, s53, 7")
            a("s_mul_i32 s48, s5, %d" % (64 * 896)); a("s_add_u32 s53, s53, s48")
            a("s_lshl_b32 s52, s52, 13")
            for m in range(8):
                a("s_add_u32 s48, s53, %d" % (8 * m * 896))
                a("s_add_u32 m0, s52, %d" % (m * 1024)); a("s_nop 0")
                a("buffer_load_dwordx4 v%d, s[%d:%d], s48 offen lds" % (V_DE if m % 2 == 0 else V_DO, S_T, S_T + 3))
        srd(a, S_T2, P_CIM, 448 * 896)
        a("v_and_b32 v12, 31, v1"); a("v_mul_u32_u24 v12, 896, v12"); a("v_lshrrev_b32 v13, 5, v1"); a("v_lshl_add_u32 v12, v13, 4, v12")
        a("s_lshl_b32 s48, s61, 6"); a("s_add_u32 s48, s48, %d" % (20 * 32)); a("s_mul_i32 s49, s5, %d" % (64 * 896)); a("s_add_u32 s48, s48, s49")
        a("s_mul_i32 s49, s63, %d" % (32 * 896)); a("s_add_u32 s50, s48, s49")
        a("s_xor_b32 s49, s63, 1"); a("s_mul_i32 s49, s49, %d" % (32 * 896)); a("s_add_u32 s51, s48, s49")
        DC = 224
        for kk in range(2):
            a("buffer_load_dwordx4 v[%d:%d], v12, s[%d:%d], s50 offen offset:%d" % (DC + kk*8, DC + kk*8 + 3, S_T2, S_T2 + 3, kk * 32))
            a("buffer_load_dwordx4 v[%d:%d], v12, s[%d:%d], s51 offen offset:%d" % (DC + kk*8 + 4, DC + kk*8 + 7, S_T2, S_T2 + 3, kk * 32))
        self.poll_flags(WS_HF, 0x0fffffff)
        self.stamp(13)
        HF = 16
        for rtp in range(2):
            a("s_xor_b32 s48, s62, %d" % rtp); a("s_lshl_b32 s49, s4, 1"); a("s_add_u32 s48, s48, s49"); a("s_mul_i32 s48, s48, %d" % (56 * 1024))
            a("s_add_u32 s48, s48, %d" % WS_H)
            a("s_lshl_b32 s49, s61, 12"); a("s_add_u32 s50, s48, s49")
            for j in range(3):
                for s in range(4):
                    r = HF + ((j * 4 + s) * 2 + rtp) * 4
                    a("buffer_load_dwordx4 v[%d:%d], v%d, s[%d:%d], s50 offen offset:%d sc1" % (r, r + 3, V_L16, S_WS, S_WS + 3, s * 1024))
                a("s_add_u32 s50, s50, %d" % (16 * 1024))
            a("s_lshl_b32 s49, s61, 11"); a("s_add_u32 s50, s48, s49"); a("s_add_u32 s50, s50, %d" % (48 * 1024))
            for kk in range(2):
                r = HF + ((12 + kk) * 2 + rtp) * 4
                a("buffer_load_dwordx4 v[%d:%d], v%d, s[%d:%d], s50 offen offset:%d sc1" % (r, r + 3, V_L16, S_WS, S_WS + 3, kk * 1024))
        a("v_and_b32 v13, 31, v1"); a("v_lshrrev_b32 v14, 5, v1")
        self.xfrag_addrs(240, None)
        a("s_lshl_b32 s48, s61, 13"); a("s_lshl_b32 s49, s63, 12"); a("s_add_u32 s48, s48, s49")
        for s in range(4):
            a("v_add_u32 v%d, s48, v%d" % (240 + s, 240 + s)); a("v_xor_b32 v%d, 0x1000, v%d" % (244 + s, 240 + s))
        a("s_waitcnt vmcnt(0)")
        a("s_setprio 0")
        self.stamp(14)
        BT = 208
        for j in range(3):
            if j == 2:
                for s in range(8): a("v_add_u32 v%d, 0x10000, v%d" % (240 + s, 240 + s))
            off = (j * 32768) if j < 2 else 0
            for s in range(4):
                b = BT + (s % 2) * 8
                a("ds_read_b128 v[%d:%d], v%d offset:%d" % (b, b + 3, 240 + s, off))
                a("ds_read_b128 v[%d:%d], v%d offset:%d" % (b + 4, b + 7, 244 + s, off))
                a("s_waitcnt lgkmcnt(0)")
                for rtp in range(2):
                    for cp in range(2):
                        acc = CACC + (2 * rtp + cp) * 16
                        h = HF + ((j * 4 + s) * 2 + rtp) * 4
                        a("%s %s, %s, %s, %s" % (MF, vr(acc, 16), vr(h, 4), vr(b + 4 * cp, 4), vr(acc, 16)))
        for kk in range(2):
            for rtp in range(2):
                for cp in range(2):
                    acc = CACC + (2 * rtp + cp) * 16
                    h = HF + ((12 + kk) * 2 + rtp) * 4
                    a("%s %s, %s, %s, %s" % (MF, vr(acc, 16), vr(h, 4), vr(DC + kk * 8 + 4 * cp, 4), vr(acc, 16)))
        srd(a, S_T, P_WO, 448 * 896)
        a("v_lshrrev_b32 v12, 3, v1"); a("v_mul_u32_u24 v12, 896, v12"); a("v_and_b32 v13, 7, v1"); a("v_lshl_add_u32 v8, v13, 4, v12")
        for jj in range(2):
            lsk = a.newlabel("L_wosk")
            a("s_add_u32 s52, s61, %d" % (4 * jj))
            if jj == 1:
                a("s_cmp_ge_u32 s52, 7"); a("s_cbranch_scc1 %s" % lsk)
            a("s_mul_i32 s53, s52, %d" % (64 * 896)); a("s_lshl_b32 s48, s5, 7"); a("s_add_u32 s53, s53, s48")
            a("s_lshl_b32 s52, s52, 13")
            for m in range(8):
                a("s_add_u32 s48, s53, %d" % (8 * m * 896))
                a("s_add_u32 m0, s52, %d" % (m * 1024)); a("s_nop 0")
                a("buffer_load_dwordx4 v8, s[%d:%d], s48 offen lds" % (S_T, S_T + 3))
            if jj == 1: a.label(lsk)
        self.stamp(15)
        self.lds_wait(4, 4)
        self.stamp(16)
        a("s_nop 7"); a("s_nop 7")
        for u in range(1, 4):
            a("s_xor_b32 s48, s61, %d" % u); a("s_mul_i32 s48, s48, 12288"); a("s_add_u32 s48, s48, %d" % (L_RED + (u - 1) * 4096))
            a("v_add_u32 v12, s48, v%d" % V_L16)
            for k in range(4):
                a("ds_write_b128 v12, v[%d:%d] offset:%d" % (CACC + u*16 + 4*k, CACC + u*16 + 4*k + 3, k * 1024))
        a("s_waitcnt lgkmcnt(0)")
        self.lds_inc(1)
        self.lds_wait(1, 4)
        a("s_mul_i32 s48, s61, 12288"); a("s_add_u32 s48, s48, %d" % L_RED)
        a("v_add_u32 v12, s48, v%d" % V_L16)
        T = 16
        for s in range(3):
            for k in range(4):
                a("ds_read_b128 v[%d:%d], v12 offset:%d" % (T + s*16 + 4*k, T + s*16 + 4*k + 3, s * 4096 + k * 1024))
        for s in range(3):
            a("s_waitcnt lgkmcnt(%d)" % (8 - 4 * s))
            for r in range(0, 16, 2):
                a("v_pk_add_f32 v[%d:%d], v[%d:%d], v[%d:%d]" % (CACC + r, CACC + r + 1, CACC + r, CACC + r + 1, T + s*16 + r, T + s*16 + r + 1))
        for r in range(16): a("v_mul_f32 v%d, v%d, v%d" % (CACC + r, G1 + r, CACC + r))
        for r in range(16, 32): a("v_mov_b32 v%d, 0" % (CACC + r))
        a("s_waitcnt vmcnt(0)")
        self.lds_inc(2)
        self.lds_wait(2, 4)
        self.stamp(17)
        self.poll_flags(WS_OF, 0xffffffff)
        self.stamp(18)
        OF = 16
        a("s_lshl_b32 s48, s4, 1"); a("s_add_u32 s48, s48, s62"); a("s_lshl_b32 s48, s48, 4"); a("s_lshl_b32 s49, s63, 3"); a("s_add_u32 s48, s48, s49")
        a("s_lshl_b32 s48, s48, 11"); a("s_add_u32 s48, s48, %d" % WS_O)
        for hh in range(8):
            for f in range(2):
                r = OF + (hh * 2 + f) * 4
                a("buffer_load_dwordx4 v[%d:%d], v%d, s[%d:%d], s48 offen offset:%d sc1" % (r, r + 3, V_L16, S_WS, S_WS + 3, (hh % 2) * 2048 + f * 1024))
            if hh % 2 == 1: a("s_add_u32 s48, s48, 4096")
        a("v_lshrrev_b32 v12, 5, v1"); a("v_lshlrev_b32 v12, 2, v12"); a("v_bfe_u32 v13, v1, 2, 2"); a("v_add_u32 v12, v12, v13"); a("v_lshlrev_b32 v12, 7, v12")
        a("v_bfe_u32 v13, v1, 4, 1"); a("v_lshl_add_u32 v12, v13, 5, v12"); a("v_and_b32 v13, 3, v1"); a("v_lshl_add_u32 v12, v13, 3, v12")
        a("s_mul_i32 s48, s63, %d" % (8 * 28 * 128 + 64)); a("v_add_u32 v240, s48, v12"); a("v_xor_b32 v241, 64, v240")
        BT = 96
        for hh in range(8):
            for f in range(2):
                b = BT + ((hh * 2 + f) % 2) * 8
                off = (28 * hh + 16 * f) * 128
                for cp in range(2):
                    a("ds_read_b64_tr_b16 v[%d:%d], v%d offset:%d" % (b + 4*cp, b + 4*cp + 1, 240 + cp, off))
                    a("ds_read_b64_tr_b16 v[%d:%d], v%d offset:%d" % (b + 4*cp + 2, b + 4*cp + 3, 240 + cp, off + 8 * 128))
                a("s_waitcnt vmcnt(%d) lgkmcnt(0)" % (15 - (hh * 2 + f)))
                r = OF + (hh * 2 + f) * 4
                for cp in range(2):
                    acc = CACC + cp * 16
                    a("%s %s, %s, %s, %s" % (MF, vr(acc, 16), vr(r, 4), vr(b + 4 * cp, 4), vr(acc, 16)))
        a("s_nop 7"); a("s_nop 7")
        self.stamp(19)
        a("s_xor_b32 s48, s61, 1"); a("s_lshl_b32 s48, s48, 12"); a("s_add_u32 s48, s48, %d" % L_RED)
        a("v_add_u32 v12, s48, v%d" % V_L16)
        for k in range(4): a("ds_write_b128 v12, v[%d:%d] offset:%d" % (CACC + 16 + 4*k, CACC + 16 + 4*k + 3, k * 1024))
        a("s_waitcnt lgkmcnt(0)")
        self.lds_inc(3)
        self.lds_wait(3, 4)
        a("s_lshl_b32 s48, s61, 12"); a("s_add_u32 s48, s48, %d" % L_RED)
        a("v_add_u32 v12, s48, v%d" % V_L16)
        for k in range(4): a("ds_read_b128 v[%d:%d], v12 offset:%d" % (16 + 4*k, 16 + 4*k + 3, k * 1024))
        a("s_waitcnt lgkmcnt(0)")
        for r in range(0, 16, 2):
            a("v_pk_add_f32 v[%d:%d], v[%d:%d], v[%d:%d]" % (CACC + r, CACC + r + 1, CACC + r, CACC + r + 1, 16 + r, 16 + r + 1))
        srd(a, S_T, P_OUT, 2048 * 448 * 4)
        a("v_lshrrev_b32 v12, 5, v1"); a("v_mul_u32_u24 v12, %d, v12" % (4 * 1792)); a("v_and_b32 v13, 31, v1"); a("v_lshl_add_u32 v12, v13, 2, v12")
        a("s_lshl_b32 s48, s4, 6"); a("s_lshl_b32 s49, s62, 5"); a("s_add_u32 s48, s48, s49"); a("s_mul_i32 s48, s48, 1792")
        a("s_lshl_b32 s49, s5, 8"); a("s_add_u32 s48, s48, s49"); a("s_lshl_b32 s49, s63, 7"); a("s_add_u32 s48, s48, s49")
        for r in range(16):
            aa, b = r // 4, r % 4
            rowoff = (8 * aa + b) * 1792
            if b == 0 and aa > 0: a("s_add_u32 s48, s48, %d" % (8 * 1792))
            off = b * 1792
            if off > 4095:
                a("s_add_u32 s49, s48, %d" % off)
                a("buffer_store_dword v%d, v12, s[%d:%d], s49 offen" % (CACC + r, S_T, S_T + 3))
            else:
                a("buffer_store_dword v%d, v12, s[%d:%d], s48 offen offset:%d" % (CACC + r, S_T, S_T + 3, off))
        self.stamp(20)
        if self.gst:
            a("s_waitcnt vmcnt(0)"); self.gstamp(5)
        if self.stamps: a("s_waitcnt vmcnt(0)")
        self.stamp(21)
        self.stamp_flush()
        a("s_endpgm")

if __name__ == "__main__":
    k = K(debug=False, gst=("gst" in sys.argv))
    k.build()
    open("gated_mix__grouped_kv_mqa__ssm_conv_s5__prompt.s", "w").write(HEADER_COMMENT + k.text())
```

```python
import sys, math, struct
sys.path.insert(0, "gen")
from asmlib import *
import attn

NAME = "gated_mix__grouped_kv_mqa__ssm_conv_s5__prompt_kernel"

WS_KV = 0x0
WS_E  = 0x40000
WS_HF = 0x80000
WS_OF = 0x81000
WS_H  = 0x100000
WS_O  = 0x480000
WS_END = 0x680000
WS_DBG = 0x700000
WS_SIZE_DBG = 0x2000000

L_X = 0
L_RING = 57344
SLOT = 24576
L_MISC = 155648
L_G = L_MISC
L_SEG = L_MISC + 512
L_KM = L_MISC + 3072
L_QF = L_RING
L_TOTAL = 163840
L_CST = 0
L_CNT = 98304
L_RED = 114688

S_WG, S_WAVE, S_RBK, S_HP, S_NONCE = 2, 3, 4, 5, 6
S_X, S_WQ, S_BA, S_WS, S_DBG, S_T, S_T2 = 8, 12, 16, 24, 28, 32, 36
P_X, P_WQ, P_WK, P_WV, P_WO, P_LRE, P_LIM = 64, 66, 68, 70, 72, 76, 78
P_BRE, P_BIM, P_CRE, P_CIM, P_LDT, P_DSK, P_GW, P_OUT = 80, 82, 84, 86, 88, 90, 92, 94
P_DBG, P_WS = 96, 98
S_XOFF, S_BOFF, S_WOFF, S_MX, S_MB, S_HI = 40, 41, 42, 43, 44, 46
S_TMP = 48

V_LANE, V_L16, V_DE, V_DO, V_DW = 1, 2, 3, 4, 5
V_GATE, V_ZERO = 240, 247

LOG2E = 1.4426950408889634
QSCALE = 28 ** -0.5 * LOG2E
def f2u(x): return struct.unpack("<I", struct.pack("<f", x))[0]

def srd(a, s, p, nbytes):
    a("s_mov_b32 s%d, s%d" % (s, p)); a("s_mov_b32 s%d, s%d" % (s + 1, p + 1))
    a("s_mov_b32 s%d, 0x%x" % (s + 2, nbytes)); a("s_mov_b32 s%d, 0x20000" % (s + 3))

MF = "v_mfma_f32_32x32x16_bf16"
HEADER_COMMENT = "; Generated by gen/kern.py: persistent single-kernel implementation\n"

class K:
    def __init__(self, stop_after=None, debug=False, stamps=False, gst=False):
        self.gst = gst
        self.a = Asm()
        self.stop_after = stop_after
        self.debug = debug
        self.stamps = stamps

    def stamp(self, i):
        if not self.stamps: return
        a = self.a
        a("s_memrealtime s[100:101]"); a("s_waitcnt lgkmcnt(0)"); a("v_writelane_b32 v255, s100, %d" % i)
    def gstamp(self, i, neg=False):
        if not self.gst: return
        a = self.a
        lab = a.newlabel("L_gs")
        a("s_and_b32 s100, s2, 31"); a("s_and_b32 s101, s3, 3"); a("s_or_b32 s100, s100, s101"); a("s_cmp_eq_u32 s100, 0")
        a("s_cbranch_scc0 %s" % lab)
        a("s_memrealtime s[100:101]"); a("s_waitcnt lgkmcnt(0)")
        if neg: a("s_not_b32 s100, s100")
        a("v_mov_b32 v252, s100"); a("v_mov_b32 v253, %d" % (4 * i))
        a("s_mov_b64 s[100:101], exec"); a("s_mov_b64 exec, 1")
        a("buffer_atomic_umax v252, v253, s[%d:%d], 0 offen" % (S_DBG, S_DBG + 3))
        a("s_mov_b64 exec, s[100:101]")
        a.label(lab)
    def stampc(self, i):
        if not self.stamps: return
        a = self.a
        a("s_memtime s[100:101]"); a("s_waitcnt lgkmcnt(0)"); a("v_writelane_b32 v255, s100, %d" % i)
    def stamp_flush(self):
        if not self.stamps: return
        a = self.a
        a("s_lshl_b32 s58, s2, 3"); a("s_add_u32 s58, s58, s3"); a("s_lshl_b32 s58, s58, 8"); a("s_add_u32 s58, s58, %d" % (WS_DBG + 0x800000))
        a("v_lshlrev_b32 v254, 2, v1")
        a("buffer_store_dword v255, v254, s[%d:%d], s58 offen" % (S_WS, S_WS + 3))
        a("s_waitcnt vmcnt(0)")

    def prologue(self):
        a = self.a
        a("s_cmp_ge_u32 s2, 256")
        a("s_cbranch_scc1 L_exit")
        if self.gst: a("s_memrealtime s[62:63]")
        if self.stamps:
            a("v_mov_b32 v255, 0")
            self.stamp(0)
            self.stampc(32)
        a("s_load_dwordx16 s[64:79], s[0:1], 0")
        a("s_load_dwordx16 s[80:95], s[0:1], 64")
        a("s_load_dwordx4 s[96:99], s[0:1], 128")
        a("v_and_b32 v1, 63, v0")
        a("v_lshrrev_b32 v6, 6, v0")
        a("s_and_b32 s48, s2, 7")
        a("v_readfirstlane_b32 s3, v6")
        a("s_lshr_b32 s49, s2, 3")
        a("s_and_b32 s5, s49, 7")
        a("s_lshr_b32 s49, s49, 3")
        a("s_lshl_b32 s4, s48, 2")
        a("s_add_u32 s4, s4, s49")
        a("v_lshlrev_b32 v2, 4, v1")
        a("v_lshrrev_b32 v6, 3, v1")
        a("v_and_b32 v7, 7, v1")
        a("v_lshrrev_b32 v8, 4, v1")
        a("v_mul_u32_u24 v9, 896, v6")
        a("v_xor_b32 v10, v7, v8")
        a("v_lshl_add_u32 v3, v10, 4, v9")
        a("v_xor_b32 v10, 4, v10")
        a("v_lshl_add_u32 v4, v10, 4, v9")
        a("v_min_u32 v10, 6, v7")
        a("v_lshl_add_u32 v5, v10, 4, v9")
        a("v_mov_b32 v%d, 0" % V_ZERO)
        a("s_mov_b32 s%d, 0" % S_HI); a("s_mov_b32 s%d, -1" % (S_HI + 1))
        a("s_lshl_b32 s%d, s3, 10" % S_MX)
        a("s_lshl_b32 s48, s4, 6"); a("s_lshl_b32 s49, s3, 3"); a("s_add_u32 s48, s48, s49")
        a("s_mul_i32 s%d, s48, 896" % S_XOFF)
        a("s_mul_i32 s48, s49, 896"); a("s_mul_i32 s50, s5, 112"); a("s_add_u32 s%d, s48, s50" % S_WOFF)
        a("s_waitcnt lgkmcnt(0)")
        self.stamp(1)
        srd(a, S_X, P_X, 2048 * 896)
        srd(a, S_WQ, P_WQ, 448 * 896)
        srd(a, S_WS, P_WS, WS_SIZE_DBG if self.debug else WS_END)
        srd(a, S_DBG, P_DBG, 256)
        if self.gst:
            a("s_and_b32 s100, s2, 31"); a("s_and_b32 s101, s3, 3"); a("s_or_b32 s100, s100, s101"); a("s_cmp_eq_u32 s100, 0")
            a("s_cbranch_scc0 L_gs0")
            a("s_not_b32 s62, s62"); a("v_mov_b32 v252, s62"); a("v_mov_b32 v253, 0"); a("s_mov_b64 exec, 1")
            a("buffer_atomic_umax v252, v253, s[%d:%d], 0 offen" % (S_DBG, S_DBG + 3)); a("s_mov_b64 exec, -1")
            a.label("L_gs0")
            self.gstamp(7)
        a("s_or_b32 s48, s2, s3")
        a("s_cmp_lg_u32 s48, 0")
        a("s_cbranch_scc1 L_nononce")
        a("s_memrealtime s[50:51]")
        a("s_waitcnt lgkmcnt(0)")
        a("s_or_b32 s50, s50, 1")
        a("v_mov_b32 v6, s50")
        a("v_mov_b32 v7, 124")
        a("s_mov_b64 exec, 1")
        a("buffer_store_dword v6, v7, s[%d:%d], 0 offen sc1" % (S_DBG, S_DBG + 3))
        a("s_mov_b64 exec, -1")
        a.label("L_nononce")
        srd(a, S_T, P_GW, 896)
        a("v_lshrrev_b32 v6, 3, v1")
        a("s_lshl_b32 s48, s3, 3")
        a("v_add_lshl_u32 v6, v6, s48, 1")
        for c in range(7):
            a("buffer_load_ushort v%d, v6, s[%d:%d], 0 offen offset:%d" % (V_GATE + c, S_T, S_T + 3, 128 * c))

    def dma(self, vaddr, srdreg, soff_expr_reg, m0_base_reg, m0_const):
        a = self.a
        a("s_add_u32 m0, s%d, %d" % (m0_base_reg, m0_const))
        a("s_nop 0")
        a("buffer_load_dwordx4 v%d, s[%d:%d], s%d offen lds" % (vaddr, srdreg, srdreg + 3, soff_expr_reg))

    def issue_chunk(self, c, kv):
        a = self.a
        slot = L_RING + (c % 4) * SLOT
        a("s_add_u32 s48, s%d, %d" % (S_XOFF, 128 * c))
        self.dma(11, S_X, 48, S_MX, L_X + c * 8192)
        if not kv:
            a("s_add_u32 s48, s%d, %d" % (S_WOFF, 64 * c * 896))
            self.dma(V_DW, S_WQ, 48, S_MX, slot)
            a("s_add_u32 s48, s%d, %d" % (S_BOFF, 128 * c))
            self.dma(V_DE, S_BA, 48, S_MB, slot + 8192)
            a("s_add_u32 s48, s%d, %d" % (S_BOFF, 128 * c + 8 * 896))
            self.dma(V_DO, S_BA, 48, S_MB, slot + 8192 + 1024)
        else:
            a("s_add_u32 s48, s%d, %d" % (S_BOFF, 3584 * c))
            self.dma(V_L16, S_BA, 48, S_MB, slot + 8192)
            a("s_add_u32 s48, s%d, %d" % (S_WOFF, 64 * c * 896))
            self.dma(V_DW, S_WQ, 48, S_MX, slot)

    def gate_write(self, c):
        a = self.a
        slot = L_RING + (c % 4) * SLOT
        a("s_add_u32 s48, s%d, %d" % (S_MX, slot))
        a("v_add_u32 v12, s48, v%d" % V_L16)
        a("s_mov_b32 exec_lo, 0x80808080"); a("s_mov_b32 exec_hi, 0x80808080")
        a("ds_write2_b32 v12, v%d, v%d offset0:0 offset1:1" % (V_GATE + c, V_ZERO))
        a("s_mov_b64 exec, -1")

    def xfrag_addrs(self, base, rowexpr):
        a = self.a
        a("v_lshrrev_b32 v15, 1, v13"); a("v_and_b32 v15, 7, v15")
        for s in range(4):
            a("v_or_b32 v12, %d, v14" % (2 * s))
            a("v_xor_b32 v12, v12, v15")
            a("v_lshlrev_b32 v12, 4, v12")
            a("v_lshl_add_u32 v%d, v13, 7, v12" % (base + s))

    def tr_base(self, dst, pitch, colbytes_reg=None, colbytes_const=0):
        a = self.a
        a("v_lshrrev_b32 v12, 5, v1")
        a("v_lshlrev_b32 v12, 3, v12")
        a("v_bfe_u32 v13, v1, 2, 2")
        a("v_add_u32 v12, v12, v13")
        a("v_mul_u32_u24 v12, %d, v12" % pitch)
        a("v_bfe_u32 v13, v1, 4, 1")
        a("v_lshl_add_u32 v12, v13, 5, v12")
        a("v_and_b32 v13, 3, v1")
        a("v_lshl_add_u32 v%d, v13, 3, v12" % dst)
        if colbytes_reg is not None: a("v_add_u32 v%d, s%d, v%d" % (dst, colbytes_reg, dst))
        if colbytes_const: a("v_add_u32 v%d, %d, v%d" % (dst, colbytes_const, dst))

    def chunk_head(self, c, per):
        a = self.a
        later = min(6, c + 2) - c
        a("s_waitcnt vmcnt(%d)" % (per * later))
        self.gate_write(c)
        a("s_waitcnt lgkmcnt(0)")
        if c == 0: self.stamp(2)
        if c == 0: self.gstamp(6)
        a("s_barrier")
        if c in (0, 3, 6): self.stamp({0: 3, 3: 4, 6: 5}[c])

    def pipeline(self, per, kv, reads, mfmas, extra=None):
        a = self.a
        for c in range(8):
            rd, mm = [], []
            if c <= 6:
                self.chunk_head(c, per)
                rd = reads(c)
            else:
                a("s_waitcnt lgkmcnt(0)")
            if c >= 1: mm = mfmas(c - 1)
            pre = [x for x in rd if x.startswith("v_")]
            rd = [x for x in rd if not x.startswith("v_")]
            for x in pre: a(x)
            nper = (len(rd) + max(1, len(mm)) - 1) // max(1, len(mm)) if mm else len(rd)
            ri = 0
            dma_done = False
            for k, m in enumerate(mm):
                a(m)
                for x in rd[ri:ri + nper]: a(x)
                ri += nper
            for x in rd[ri:]: a(x)
            if c + 3 <= 6: self.issue_chunk(c + 3, kv)
            if extra and c in extra: extra[c]()

    def front_q(self, kv):
        XF, TR, TRA, ACC, FA, FB = 16, 20, 21, 32, 48, 64
        def reads(c):
            slot = L_RING + (c % 4) * SLOT
            st = 32 * (c % 2)
            o = ["v_add_u32 v%d, %d, v%d" % (TRA, slot, TR)]
            for s in range(4):
                o.append("ds_read_b64_tr_b16 v[%d:%d], v%d offset:%d" % (FA + st + 4*s, FA + st + 4*s + 1, TRA, 16 * s * 128))
                o.append("ds_read_b64_tr_b16 v[%d:%d], v%d offset:%d" % (FA + st + 4*s + 2, FA + st + 4*s + 3, TRA, 16 * s * 128 + 512))
                o.append("ds_read_b128 v[%d:%d], v%d offset:%d" % (FB + st + 4*s, FB + st + 4*s + 3, XF + s, L_X + c * 8192))
            return o
        def mfmas(c):
            st = 32 * (c % 2)
            return ["%s %s, %s, %s, %s" % (MF, vr(ACC, 16), vr(FA + st + 4*s, 4), vr(FB + st + 4*s, 4), "0" if (c == 0 and s == 0) else vr(ACC, 16)) for s in range(4)]
        self.pipeline(3 if kv else 4, kv, reads, mfmas)

    def front_h(self):
        XP, BF, BFA, RE, IM = 16, 20, 24, 32, 48
        def base(c): return 64 if c % 2 == 0 else 128
        def reads(c):
            slot = L_RING + (c % 4) * SLOT + 8192
            b = base(c)
            o = ["v_add_u32 v%d, %d, v%d" % (BFA + s, slot, BF + s) for s in range(4)]
            for s in range(4):
                o.append("ds_read_b128 v[%d:%d], v%d offset:%d" % (b + 4*s, b + 4*s + 3, XP + s, L_X + c * 8192))
                o.append("ds_read_b128 v[%d:%d], v%d" % (b + 16 + 4*s, b + 16 + 4*s + 3, BFA + s))
                o.append("ds_read_b128 v[%d:%d], v%d offset:8192" % (b + 32 + 4*s, b + 32 + 4*s + 3, BFA + s))
            return o
        def mfmas(c):
            b = base(c); o = []
            for s in range(4):
                z = (c == 0 and s == 0)
                o.append("%s %s, %s, %s, %s" % (MF, vr(RE, 16), vr(b + 4*s, 4), vr(b + 16 + 4*s, 4), "0" if z else vr(RE, 16)))
                o.append("%s %s, %s, %s, %s" % (MF, vr(IM, 16), vr(b + 4*s, 4), vr(b + 32 + 4*s, 4), "0" if z else vr(IM, 16)))
            return o
        self.pipeline(4, False, reads, mfmas, extra={2: self.params_compute})

    def front_kv(self, isv):
        XF, TR, TRA, ACC, FA, FB = 16, 20, 21, 32, 48, 64
        def reads(c):
            slot = L_RING + (c % 4) * SLOT + 8192 + (4096 if isv else 0)
            st = 32 * (c % 2)
            o = ["v_add_u32 v%d, %d, v%d" % (TRA, slot, TR)]
            for s in range(4):
                o.append("ds_read_b64_tr_b16 v[%d:%d], v%d offset:%d" % (FA + st + 4*s, FA + st + 4*s + 1, TRA, 16 * s * 56))
                o.append("ds_read_b64_tr_b16 v[%d:%d], v%d offset:%d" % (FA + st + 4*s + 2, FA + st + 4*s + 3, TRA, 16 * s * 56 + 4 * 56))
                o.append("ds_read_b128 v[%d:%d], v%d offset:%d" % (FB + st + 4*s, FB + st + 4*s + 3, XF + s, L_X + c * 8192))
            return o
        def mfmas(c):
            st = 32 * (c % 2); o = []
            for s in range(4):
                cc = "0" if (c == 0 and s == 0) else vr(ACC, 16)
                if isv: o.append("%s %s, %s, %s, %s" % (MF, vr(ACC, 16), vr(FB + st + 4*s, 4), vr(FA + st + 4*s, 4), cc))
                else:   o.append("%s %s, %s, %s, %s" % (MF, vr(ACC, 16), vr(FA + st + 4*s, 4), vr(FB + st + 4*s, 4), cc))
            return o
        self.pipeline(3, True, reads, mfmas)

    def pack_acc(self, acc, dst, scale=None):
        a = self.a
        if scale is not None:
            for r in range(16): a("v_mul_f32 v%d, s%d, v%d" % (acc + r, scale, acc + r))
        for i in range(8): a("v_cvt_pk_bf16_f32 v%d, v%d, v%d" % (dst + i, acc + 2*i, acc + 2*i + 1))

    def norm2(self, P, out, tmp):
        a = self.a
        a("v_dot2_f32_bf16 v%d, v%d, v%d, v%d" % (out, P, P, V_ZERO))
        for i in range(1, 8): a("v_dot2_f32_bf16 v%d, v%d, v%d, v%d" % (out, P + i, P + i, out))
        a("s_nop 2")
        a("v_mov_b32 v%d, v%d" % (tmp, out))
        a("s_nop 1")
        a("v_permlane32_swap_b32 v%d, v%d" % (out, tmp))
        a("s_nop 1")
        a("v_add_f32 v%d, v%d, v%d" % (out, out, tmp))

    def q_epilogue(self):
        a = self.a
        ACC, P = 32, 48
        a("s_nop 7"); a("s_nop 7")
        a("v_mov_b32 v60, v%d" % (ACC + 12))
        a("s_mov_b32 s48, 0x%x" % f2u(QSCALE))
        self.pack_acc(ACC, P, scale=48)
        a("v_cndmask_b32 v%d, v%d, v%d, s[%d:%d]" % (P + 6, P + 6, V_ZERO, S_HI, S_HI + 1))
        a("v_cndmask_b32 v%d, v%d, v%d, s[%d:%d]" % (P + 7, P + 7, V_ZERO, S_HI, S_HI + 1))
        self.norm2(P, 56, 57)
        a("v_sqrt_f32 v56, v56")
        a("s_mov_b32 s48, 0x%x" % f2u(1.0 + 2.0 ** -6))
        a("v_mul_f32 v56, s48, v56")
        a("v_cvt_pk_bf16_f32 v58, v56, v%d" % V_ZERO)
        a("v_cndmask_b32 v%d, v%d, v58, s[%d:%d]" % (P + 6, P + 6, S_HI, S_HI + 1))
        a("s_lshl_b32 s48, s3, 11"); a("s_add_u32 s48, s48, %d" % L_QF)
        a("v_add_u32 v12, s48, v%d" % V_L16)
        a("ds_write_b128 v12, v[%d:%d]" % (P, P + 3))
        a("ds_write_b128 v12, v[%d:%d] offset:1024" % (P + 4, P + 7))
        a("s_bitcmp1_b32 s3, 0")
        lab = a.newlabel("L_nog")
        a("s_cbranch_scc0 %s" % lab)
        a("s_mov_b32 s48, 0x%x" % f2u(-LOG2E))
        a("v_mul_f32 v60, s48, v60")
        a("v_exp_f32 v60, v60")
        a("s_nop 0")
        a("v_add_f32 v60, 1.0, v60")
        a("v_rcp_f32 v60, v60")
        a("s_lshr_b32 s48, s3, 1"); a("s_lshl_b32 s48, s48, 7"); a("s_add_u32 s48, s48, %d" % (L_G - 128))
        a("v_lshlrev_b32 v12, 2, v1"); a("v_add_u32 v12, s48, v12")
        a("s_mov_b64 exec, s[%d:%d]" % (S_HI, S_HI + 1))
        a("ds_write_b32 v12, v60")
        a("s_mov_b64 exec, -1")
        a.label(lab)

    def k_epilogue(self):
        a = self.a
        ACC, P = 32, 48
        a("s_nop 7"); a("s_nop 7")
        self.pack_acc(ACC, P)
        a("v_cndmask_b32 v%d, v%d, v%d, s[%d:%d]" % (P + 6, P + 6, V_ZERO, S_HI, S_HI + 1))
        a("v_cndmask_b32 v%d, v%d, v%d, s[%d:%d]" % (P + 7, P + 7, V_ZERO, S_HI, S_HI + 1))
        self.norm2(P, 56, 57)
        a("v_mov_b32 v58, 0x3f803f80"); a("v_mov_b32 v59, 0x3f80")
        a("v_cndmask_b32 v%d, v%d, v58, s[%d:%d]" % (P + 6, P + 6, S_HI, S_HI + 1))
        a("v_cndmask_b32 v%d, v%d, v59, s[%d:%d]" % (P + 7, P + 7, S_HI, S_HI + 1))
        self.kv_store(P, 0)
        for sh in (1, 2, 4, 8):
            a("s_nop 1")
            a("v_max_f32_dpp v56, v56, v56 row_shr:%d row_mask:0xf bank_mask:0xf" % sh)
        a("s_nop 1")
        a("v_readlane_b32 s48, v56, 15"); a("v_readlane_b32 s49, v56, 31")
        a("s_nop 3")
        a("s_max_u32 s48, s48, s49")
        a("v_mov_b32 v56, s48")
        a("s_sub_u32 s49, s3, 4"); a("s_lshr_b32 s49, s49, 1"); a("s_lshl_b32 s49, s49, 2"); a("s_add_u32 s49, s49, %d" % L_KM)
        a("v_mov_b32 v12, s49")
        a("ds_write_b32 v12, v56")

    def v_epilogue(self):
        a = self.a
        ACC, P = 32, 48
        a("s_nop 7"); a("s_nop 7")
        self.pack_acc(ACC, P)
        a("s_mov_b32 s48, 0x10000000"); a("s_mov_b32 s49, 0x10000000")
        a("s_mov_b32 s50, 0xe0000000"); a("s_mov_b32 s51, 0xe0000000")
        a("v_mov_b32 v58, 0x3f803f80")
        for i in range(8):
            a("v_cndmask_b32 v%d, v%d, v58, s[48:49]" % (P + i, P + i))
            a("v_cndmask_b32 v%d, v%d, v%d, s[50:51]" % (P + i, P + i, V_ZERO))
        self.kv_store(P, 2048)

    def kv_store(self, P, off):
        a = self.a
        a("s_sub_u32 s52, s3, 4"); a("s_lshr_b32 s52, s52, 1"); a("s_lshl_b32 s53, s4, 1"); a("s_add_u32 s52, s52, s53")
        a("s_lshl_b32 s52, s52, 12"); a("s_add_u32 s52, s52, %d" % (WS_KV + off))
        a("buffer_store_dwordx4 v[%d:%d], v%d, s[%d:%d], s52 offen sc1" % (P, P + 3, V_L16, S_WS, S_WS + 3))
        a("buffer_store_dwordx4 v[%d:%d], v%d, s[%d:%d], s52 offen offset:1024 sc1" % (P + 4, P + 7, V_L16, S_WS, S_WS + 3))

    def params_load(self):
        a = self.a
        a("s_and_b32 s48, s3, 1"); a("s_lshl_b32 s48, s48, 5"); a("s_lshl_b32 s49, s5, 6"); a("s_add_u32 s48, s48, s49")
        a("v_and_b32 v12, 31, v1"); a("v_add_lshl_u32 v12, v12, s48, 1")
        srd(a, S_T2, P_LRE, 896); a("buffer_load_ushort v112, v12, s[%d:%d], 0 offen" % (S_T2, S_T2 + 3))
        srd(a, S_T2, P_LIM, 896); a("buffer_load_ushort v113, v12, s[%d:%d], 0 offen" % (S_T2, S_T2 + 3))
        srd(a, S_T2, P_LDT, 896); a("buffer_load_ushort v114, v12, s[%d:%d], 0 offen" % (S_T2, S_T2 + 3))
        srd(a, S_T2, P_DSK, 896); a("buffer_load_ushort v115, v12, s[%d:%d], 0 offen" % (S_T2, S_T2 + 3))

    def csq(self, dr, di, sr_, si):
        a = self.a
        a("v_mul_f32 v%d, v%d, v%d" % (di, si, si))
        a("v_fma_f32 v%d, v%d, v%d, -v%d" % (dr, sr_, sr_, di))
        a("v_mul_f32 v%d, v%d, v%d" % (di, sr_, si))
        a("v_add_f32 v%d, v%d, v%d" % (di, di, di))

    def params_compute(self):
        a = self.a
        LR, LI, CR, CI, L16R, L16I, MUR, MUI, M2R, M2I, L32R, L32I = range(116, 128)
        a("v_lshlrev_b32 v112, 16, v112"); a("v_lshlrev_b32 v113, 16, v113"); a("v_lshlrev_b32 v114, 16, v114")
        a("s_mov_b32 s48, 0x%x" % f2u(LOG2E))
        a("v_mul_f32 v114, s48, v114"); a("v_exp_f32 v114, v114"); a("s_nop 0")
        a("v_cvt_pk_bf16_f32 v114, v114, v%d" % V_ZERO); a("v_lshlrev_b32 v114, 16, v114")
        a("v_mul_f32 v8, v114, v112"); a("v_mul_f32 v9, v114, v113")
        a("v_mul_f32 v8, s48, v8"); a("v_exp_f32 v8, v8")
        a("v_mul_f32 v9, 0.15915494, v9"); a("v_fract_f32 v9, v9")
        a("v_cos_f32 v10, v9"); a("v_sin_f32 v9, v9"); a("s_nop 0")
        a("v_mul_f32 v%d, v8, v10" % LR); a("v_mul_f32 v%d, v8, v9" % LI)
        a("v_add_f32 v8, -1.0, v%d" % LR)
        a("v_mul_f32 v9, v112, v112"); a("v_fma_f32 v9, v113, v113, v9"); a("v_rcp_f32 v9, v9")
        a("v_mul_f32 v10, v8, v112"); a("v_fma_f32 v10, v%d, v113, v10" % LI)
        a("v_mul_f32 v15, v%d, v112" % LI); a("v_fma_f32 v15, -v8, v113, v15")
        a("v_mul_f32 v%d, v10, v9" % CR); a("v_mul_f32 v%d, v15, v9" % CI)
        self.csq(8, 9, LR, LI)
        self.csq(10, 15, 8, 9)
        self.csq(8, 9, 10, 15)
        self.csq(L16R, L16I, 8, 9)
        self.csq(L32R, L32I, L16R, L16I)
        self.csq(MUR, MUI, L32R, L32I)
        self.csq(M2R, M2I, MUR, MUI)

    def h_epilogue_pass1(self):
        a = self.a
        RE, IM = 32, 48
        LR, LI, CR, CI = 116, 117, 118, 119
        a("s_nop 7"); a("s_nop 7")
        for r in range(16):
            a("v_mul_f32 v8, v%d, v%d" % (CI, IM + r)); a("v_mul_f32 v9, v%d, v%d" % (CI, RE + r))
            a("v_fma_f32 v%d, v%d, v%d, -v8" % (RE + r, CR, RE + r)); a("v_fma_f32 v%d, v%d, v%d, v9" % (IM + r, CR, IM + r))
        a("v_mov_b32 v8, v%d" % RE); a("v_mov_b32 v9, v%d" % IM)
        for r in range(1, 16):
            a("v_fma_f32 v10, v%d, v8, v%d" % (LR, RE + r)); a("v_fma_f32 v15, v%d, v9, v%d" % (LR, IM + r))
            a("v_fma_f32 v10, -v%d, v9, v10" % LI); a("v_fma_f32 v9, v%d, v8, v15" % LI)
            a("v_mov_b32 v8, v10")
        a("s_sub_u32 s48, s3, 4"); a("s_lshr_b32 s49, s48, 1"); a("s_and_b32 s48, s48, 1")
        a("s_lshl_b32 s49, s49, 10"); a("s_lshl_b32 s48, s48, 8"); a("s_add_u32 s48, s48, s49"); a("s_add_u32 s48, s48, %d" % L_SEG)
        a("v_lshrrev_b32 v12, 5, v1"); a("v_lshlrev_b32 v12, 9, v12"); a("v_and_b32 v13, 31, v1"); a("v_lshl_add_u32 v12, v13, 3, v12")
        a("v_add_u32 v12, s48, v12")
        a("ds_write_b64 v12, v[8:9]")

    def poll_nonce(self):
        a = self.a
        lab = a.newlabel("L_pn"); done = a.newlabel("L_pnd")
        a("v_mov_b32 v12, 124")
        a("s_mov_b32 s48, 0x100000")
        a.label(lab)
        a("buffer_load_dword v13, v12, s[%d:%d], 0 offen sc1" % (S_DBG, S_DBG + 3))
        a("s_waitcnt vmcnt(0)")
        a("v_readfirstlane_b32 s%d, v13" % S_NONCE)
        a("s_sub_u32 s48, s48, 1")
        a("s_cbranch_scc1 %s" % done)
        a("s_cmp_eq_u32 s%d, 0" % S_NONCE)
        a("s_cbranch_scc1 %s" % lab)
        a.label(done)

    def dump(self, base, nregs, slot_bytes, idx_sreg, off):
        a = self.a
        a("s_mul_i32 s58, s%d, %d" % (idx_sreg, slot_bytes)); a("s_add_u32 s58, s58, %d" % (WS_DBG + off))
        a("v_lshlrev_b32 v12, 2, v1")
        for r in range(nregs):
            if r % 16 == 0 and r: a("s_add_u32 s58, s58, 4096")
            a("buffer_store_dword v%d, v12, s[%d:%d], s58 offen offset:%d" % (base + r, S_WS, S_WS + 3, (r % 16) * 256))

    def text(self, lds=L_TOTAL):
        hdr = "; @launch grid=(256,1,1) block=(512,1,1) lds=%d\n" % lds
        hdr += '.amdgcn_target "amdgcn-amd-amdhsa--gfx950"\n' + kernel_header(NAME)
        return hdr + self.a.text() + kernel_footer(NAME, 256)

    def build(self):
        a = self.a
        self.prologue()
        a("s_bitcmp1_b32 s3, 0")
        a("s_cselect_b64 s[48:49], -1, 0")
        a("v_cndmask_b32 v11, v%d, v%d, s[48:49]" % (V_DE, V_DO))
        a("s_cmp_eq_u32 s5, 7")
        a("s_cbranch_scc1 L_hp7")
        a("s_cmp_lt_u32 s3, 4")
        a("s_cselect_b32 s%d, s%d, s%d" % (S_BA, P_BRE, P_BIM)); a("s_cselect_b32 s%d, s%d, s%d" % (S_BA + 1, P_BRE + 1, P_BIM + 1))
        a("s_mov_b32 s%d, 0x%x" % (S_BA + 2, 448 * 896)); a("s_mov_b32 s%d, 0x20000" % (S_BA + 3))
        a("s_and_b32 s48, s3, 3"); a("s_lshl_b32 s48, s48, 4"); a("s_lshl_b32 s49, s5, 6"); a("s_add_u32 s48, s48, s49")
        a("s_mul_i32 s%d, s48, 896" % S_BOFF)
        a("s_lshl_b32 s%d, s3, 11" % S_MB)
        a("s_cmp_ge_u32 s3, 4")
        a("s_cbranch_scc1 L_gen_helper")
        for c in range(3): self.issue_chunk(c, False)
        self.q_setup()
        self.front_q(False)
        self.q_epilogue()
        a("s_branch L_front_done")
        a.label("L_gen_helper")
        self.params_load()
        for c in range(3): self.issue_chunk(c, False)
        self.h_setup()
        self.front_h()
        self.h_epilogue_pass1()
        a("s_branch L_front_done")
        a.label("L_hp7")
        a("s_cmp_lt_u32 s3, 4")
        a("s_cselect_b32 s%d, s%d, s%d" % (S_BA, P_WK, P_WV)); a("s_cselect_b32 s%d, s%d, s%d" % (S_BA + 1, P_WK + 1, P_WV + 1))
        a("s_mov_b32 s%d, 0x%x" % (S_BA + 2, 448 * 56)); a("s_mov_b32 s%d, 0x20000" % (S_BA + 3))
        a("s_and_b32 s48, s3, 3"); a("s_lshl_b32 s%d, s48, 10" % S_BOFF)
        a("s_lshr_b32 s49, s3, 2"); a("s_lshl_b32 s49, s49, 12"); a("s_add_u32 s%d, s49, s%d" % (S_MB, S_BOFF))
        for c in range(3): self.issue_chunk(c, True)
        a("s_cmp_ge_u32 s3, 4")
        a("s_cbranch_scc1 L_hp7_helper")
        self.q_setup()
        self.front_q(True)
        self.q_epilogue()
        a("s_branch L_front_done")
        a.label("L_hp7_helper")
        a("s_sub_u32 s48, s3, 4"); a("s_lshr_b32 s48, s48, 1"); a("s_lshl_b32 s48, s48, 5")
        a("v_and_b32 v13, 31, v1"); a("v_add_u32 v13, s48, v13"); a("v_lshrrev_b32 v14, 5, v1")
        self.xfrag_addrs(16, None)
        self.tr_base(20, 56)
        a("s_bitcmp1_b32 s3, 0")
        a("s_cbranch_scc1 L_hp7_v")
        self.front_kv(False)
        self.k_epilogue()
        a("s_waitcnt vmcnt(0)")
        a("s_branch L_front_done")
        a.label("L_hp7_v")
        self.front_kv(True)
        self.v_epilogue()
        a("s_waitcnt vmcnt(0)")
        a.label("L_front_done")
        a("s_waitcnt lgkmcnt(0)")
        self.stamp(6)
        self.stampc(33)
        a("s_barrier")
        self.gstamp(1)
        self.stamp(7)
        self.after_front()
        a.label("L_exit")
        a("s_endpgm")

    def q_setup(self):
        a = self.a
        a("s_lshr_b32 s48, s3, 1"); a("s_lshl_b32 s48, s48, 5")
        a("v_and_b32 v13, 31, v1"); a("v_add_u32 v13, s48, v13"); a("v_lshrrev_b32 v14, 5, v1")
        self.xfrag_addrs(16, None)
        a("s_and_b32 s48, s3, 1"); a("s_mul_i32 s48, s48, 56")
        self.tr_base(20, 128, colbytes_reg=48)

    def h_setup(self):
        a = self.a
        a("v_and_b32 v12, 31, v1")
        a("v_bfe_u32 v13, v12, 2, 1"); a("v_lshlrev_b32 v13, 4, v13")
        a("v_lshrrev_b32 v14, 3, v12"); a("v_lshl_add_u32 v13, v14, 2, v13")
        a("v_and_b32 v14, 3, v12"); a("v_add_u32 v13, v13, v14")
        a("s_sub_u32 s48, s3, 4"); a("s_lshr_b32 s48, s48, 1"); a("s_lshl_b32 s48, s48, 5")
        a("v_add_u32 v13, s48, v13"); a("v_lshrrev_b32 v14, 5, v1")
        self.xfrag_addrs(16, None)
        a("s_and_b32 s48, s3, 1"); a("s_lshl_b32 s48, s48, 5")
        a("v_and_b32 v13, 31, v1"); a("v_add_u32 v13, s48, v13"); a("v_lshrrev_b32 v14, 5, v1")
        self.xfrag_addrs(20, None)

    def lds_inc(self, cnt):
        a = self.a
        a("v_mov_b32 v12, %d" % (L_CNT + 4 * cnt)); a("v_mov_b32 v13, 1")
        a("s_mov_b64 exec, 1")
        a("ds_add_u32 v12, v13")
        a("s_mov_b64 exec, -1")
    def lds_wait(self, cnt, target, sleep=0):
        a = self.a
        lab = a.newlabel("L_lw"); done = a.newlabel("L_lwd")
        a("v_mov_b32 v12, %d" % (L_CNT + 4 * cnt))
        a("s_mov_b32 s48, 0x400000")
        a.label(lab)
        a("ds_read_b32 v13, v12")
        a("s_waitcnt lgkmcnt(0)")
        a("v_readfirstlane_b32 s49, v13")
        a("s_sub_u32 s48, s48, 1")
        a("s_cbranch_scc1 %s" % done)
        a("s_cmp_ge_u32 s49, %d" % target)
        a("s_cbranch_scc1 %s" % done)
        if sleep: a("s_sleep %d" % sleep)
        a("s_branch %s" % lab)
        a.label(done)

    def poll_flags(self, ws_off, nflags_mask_lo, sleep=1):
        a = self.a
        lab = a.newlabel("L_pf"); done = a.newlabel("L_pfd")
        a("s_lshl_b32 s50, s4, 7"); a("s_add_u32 s50, s50, %d" % ws_off)
        a("v_lshlrev_b32 v12, 2, v1")
        a("s_mov_b32 s48, 0x100000")
        a("s_mov_b32 exec_lo, 0x%x" % nflags_mask_lo); a("s_mov_b32 exec_hi, 0")
        a.label(lab)
        a("buffer_load_dword v13, v12, s[%d:%d], s50 offen sc1" % (S_WS, S_WS + 3))
        a("s_waitcnt vmcnt(0)")
        a("v_cmp_ne_u32 vcc, s%d, v13" % S_NONCE)
        a("s_sub_u32 s48, s48, 1")
        a("s_cbranch_scc1 %s" % done)
        a("s_nop 2")
        a("s_cbranch_vccz %s" % done)
        a("s_sleep %d" % sleep)
        a("s_branch %s" % lab)
        a.label(done)
        a("s_mov_b64 exec, -1")

    def flag_store(self, ws_off, idx_sreg):
        a = self.a
        a("s_lshl_b32 s50, s4, 7"); a("s_lshl_b32 s51, s%d, 2" % idx_sreg); a("s_add_u32 s50, s50, s51"); a("s_add_u32 s50, s50, %d" % ws_off)
        a("v_mov_b32 v12, s50"); a("v_mov_b32 v13, s%d" % S_NONCE)
        a("s_mov_b64 exec, 1")
        a("buffer_store_dword v13, v12, s[%d:%d], 0 offen sc1" % (S_WS, S_WS + 3))
        a("s_mov_b64 exec, -1")

    def after_front(self):
        a = self.a
        a("s_cmp_ge_u32 s3, 4")
        a("s_cbranch_scc1 L_af_helper")
        self.attention_wave()
        a.label("L_af_helper")
        a("s_cmp_eq_u32 s5, 7")
        a("s_cbranch_scc0 L_af_gen")
        a("s_cmp_eq_u32 s3, 4"); a("s_cbranch_scc0 L_exit")
        a("v_mov_b32 v12, %d" % L_KM); a("ds_read_b64 v[14:15], v12"); a("s_waitcnt lgkmcnt(0)")
        a("v_max_f32 v14, v14, v15"); a("v_or_b32 v14, 1, v14")
        a("s_lshl_b32 s48, s4, 2"); a("v_mov_b32 v12, s48")
        a("s_mov_b64 exec, 1")
        a("buffer_store_dword v14, v12, s[%d:%d], 0 offen offset:128 sc1" % (S_DBG, S_DBG + 3))
        a("s_mov_b64 exec, -1")
        self.zero_counters()
        a("s_waitcnt lgkmcnt(0)")
        self.stamp(8)
        a("s_barrier")
        self.stamp_flush()
        a("s_endpgm")
        a.label("L_af_gen")
        self.helper_wave()

    def zero_counters(self):
        a = self.a
        a("v_lshlrev_b32 v12, 2, v1"); a("v_add_u32 v12, %d, v12" % L_CNT)
        a("ds_write_b32 v12, v%d" % V_ZERO)

    def attention_wave(self):
        a = self.a
        R = attn.AttnRegs(16)
        for s in range(4):
            a("s_xor_b32 s48, s3, %d" % ((s + 1) & 3)); a("s_lshl_b32 s48, s48, 11"); a("s_add_u32 s48, s48, %d" % L_QF)
            a("v_add_u32 v12, s48, v%d" % V_L16)
            a("ds_read_b128 v[%d:%d], v12" % (R.Q + s*8, R.Q + s*8 + 3))
            a("ds_read_b128 v[%d:%d], v12 offset:1024" % (R.Q + s*8 + 4, R.Q + s*8 + 7))
        a("s_lshr_b32 s48, s3, 1"); a("s_lshl_b32 s48, s48, 7"); a("s_add_u32 s48, s48, %d" % L_G)
        a("v_and_b32 v12, 31, v1"); a("v_lshlrev_b32 v12, 2, v12"); a("v_add_u32 v12, s48, v12")
        a("ds_read_b32 v10, v12")
        a("s_waitcnt lgkmcnt(0)")
        a("s_barrier")
        self.stamp(8)
        lab = a.newlabel("L_pkv"); done = a.newlabel("L_pkvd")
        a("v_lshlrev_b32 v12, 2, v1"); a("v_add_u32 v12, 128, v12"); a("v_mov_b32 v13, 124")
        a("v_cndmask_b32 v12, v12, v13, s[%d:%d]" % (S_HI, S_HI + 1))
        a("s_mov_b32 s48, 0x100000")
        a("s_mov_b32 exec_lo, -1"); a("s_mov_b32 exec_hi, 1")
        a.label(lab)
        a("buffer_load_dword v13, v12, s[%d:%d], 0 offen sc1" % (S_DBG, S_DBG + 3))
        a("s_waitcnt vmcnt(0)")
        a("v_cmp_eq_u32 vcc, 0, v13")
        a("s_sub_u32 s48, s48, 1")
        a("s_cbranch_scc1 %s" % done)
        a("s_nop 2")
        a("s_cbranch_vccz %s" % done)
        a("s_sleep 1")
        a("s_branch %s" % lab)
        a.label(done)
        a("s_mov_b64 exec, -1")
        a("v_readlane_b32 s%d, v13, 32" % S_NONCE)
        self.stamp(9)
        for sh in (1, 2, 4, 8):
            a("s_nop 1")
            a("v_max_f32_dpp v13, v13, v13 row_shr:%d row_mask:0xf bank_mask:0xf" % sh)
        a("s_nop 1")
        a("v_readlane_b32 s48, v13, 15"); a("v_readlane_b32 s49, v13, 31")
        a("s_nop 3")
        a("s_max_u32 s48, s48, s49")
        a("v_mov_b32 v13, s48")
        a("v_sqrt_f32 v13, v13")
        a("s_mov_b32 s48, 0x%x" % f2u(-(1.0 + 2.0 ** -6)))
        a("s_nop 0")
        a("v_mul_f32 v13, s48, v13")
        for s in range(4):
            q = R.Q + s*8 + 6
            a("v_lshlrev_b32 v12, 16, v%d" % q)
            a("v_mul_f32 v12, v12, v13")
            a("v_cvt_pk_bf16_f32 v12, v12, v%d" % V_ZERO)
            a("v_cndmask_b32 v%d, v%d, v12, s[%d:%d]" % (q, q, S_HI, S_HI + 1))
        if self.stop_after == "qpatch":
            a("s_lshl_b32 s57, s2, 2"); a("s_add_u32 s57, s57, s3")
            self.dump(R.Q, 32, 8192, 57, 0)
            a("s_waitcnt vmcnt(0)"); a("s_endpgm")
        a("s_lshl_b32 s60, s3, 16"); a("s_add_u32 s60, s60, %d" % WS_KV)
        a("s_setprio 1")
        self.gstamp(2)
        self.stamp(10)
        self.stampc(30)
        attn.attn_loop(a, R, V_L16, S_WS, 60)
        a("s_nop 7"); a("s_nop 7")
        self.stampc(31)
        self.gstamp(3)
        self.stamp(11)
        for s in range(3):
            a("s_xor_b32 s48, s3, %d" % (s + 1)); a("s_mul_i32 s48, s48, 12288"); a("s_add_u32 s48, s48, %d" % (L_RED + s * 4096))
            a("v_add_u32 v12, s48, v%d" % V_L16)
            for k in range(4):
                a("ds_write_b128 v12, v[%d:%d] offset:%d" % (R.O + s*16 + 4*k, R.O + s*16 + 4*k + 3, k * 1024))
        a("s_waitcnt lgkmcnt(0)")
        self.lds_inc(0)
        self.lds_wait(0, 4)
        a("s_mul_i32 s48, s3, 12288"); a("s_add_u32 s48, s48, %d" % L_RED)
        a("v_add_u32 v12, s48, v%d" % V_L16)
        T = R.KV
        for s in range(3):
            for k in range(4):
                a("ds_read_b128 v[%d:%d], v12 offset:%d" % (T + s*16 + 4*k, T + s*16 + 4*k + 3, s * 4096 + k * 1024))
        O = R.O + 48
        for s in range(3):
            a("s_waitcnt lgkmcnt(%d)" % (8 - 4 * s))
            for r in range(0, 16, 2):
                a("v_pk_add_f32 v[%d:%d], v[%d:%d], v[%d:%d]" % (O + r, O + r + 1, O + r, O + r + 1, T + s*16 + r, T + s*16 + r + 1))
        self.lds_inc(4)
        self.stamp(12)
        a("v_mov_b32 v12, v%d" % (O + 12)); a("v_mov_b32 v13, v%d" % (O + 12))
        a("s_nop 1")
        a("v_permlane32_swap_b32 v12, v13")
        a("s_nop 1")
        if self.debug: a("v_mov_b32 v14, v13")
        a("v_rcp_f32 v13, v13")
        a("s_nop 0")
        a("v_mul_f32 v13, v13, v10")
        for r in range(16): a("v_mul_f32 v%d, v13, v%d" % (O + r, O + r))
        P = R.P
        for i in range(8): a("v_cvt_pk_bf16_f32 v%d, v%d, v%d" % (P + i, O + 2*i, O + 2*i + 1))
        a("v_cndmask_b32 v%d, v%d, v%d, s[%d:%d]" % (P + 6, P + 6, V_ZERO, S_HI, S_HI + 1))
        a("v_cndmask_b32 v%d, v%d, v%d, s[%d:%d]" % (P + 7, P + 7, V_ZERO, S_HI, S_HI + 1))
        a("s_lshl_b32 s48, s4, 1"); a("s_lshr_b32 s49, s3, 1"); a("s_add_u32 s48, s48, s49"); a("s_lshl_b32 s48, s48, 4")
        a("s_lshl_b32 s49, s5, 1"); a("s_add_u32 s48, s48, s49"); a("s_and_b32 s49, s3, 1"); a("s_add_u32 s48, s48, s49")
        a("s_lshl_b32 s48, s48, 11"); a("s_add_u32 s48, s48, %d" % WS_O)
        a("buffer_store_dwordx4 v[%d:%d], v%d, s[%d:%d], s48 offen sc1" % (P, P + 3, V_L16, S_WS, S_WS + 3))
        a("buffer_store_dwordx4 v[%d:%d], v%d, s[%d:%d], s48 offen offset:1024 sc1" % (P + 4, P + 7, V_L16, S_WS, S_WS + 3))
        a("s_waitcnt vmcnt(0)")
        self.stamp(13)
        a("s_lshl_b32 s52, s5, 2"); a("s_add_u32 s52, s52, s3")
        self.flag_store(WS_OF, 52)
        self.stamp_flush()
        a("s_endpgm")

    def E_reg(self, i): return 208 + 4 * i if i < 12 else 96 + 4 * (i - 12)

    def helper_wave(self):
        a = self.a
        LR, LI, CR, CI, L16R, L16I, MUR, MUI, M2R, M2I, L32R, L32I = range(116, 128)
        SEGV, CACC, G1 = 64, 128, 192
        a("s_sub_u32 s61, s3, 4"); a("s_lshr_b32 s62, s61, 1"); a("s_and_b32 s63, s61, 1")
        a("s_lshl_b32 s48, s63, 8"); a("s_add_u32 s48, s48, %d" % L_SEG)
        a("v_and_b32 v13, 31, v1"); a("v_lshlrev_b32 v13, 3, v13"); a("v_add_u32 v13, s48, v13")
        for sg in range(4): a("ds_read_b64 v[%d:%d], v13 offset:%d" % (SEGV + 2*sg, SEGV + 2*sg + 1, sg * 512))
        a("s_lshl_b32 s48, s62, 7"); a("s_add_u32 s48, s48, %d" % L_G)
        a("v_lshrrev_b32 v14, 5, v1"); a("v_lshlrev_b32 v13, 4, v14"); a("v_add_u32 v13, s48, v13")
        for aa in range(4): a("ds_read_b128 v[%d:%d], v13 offset:%d" % (G1 + 4*aa, G1 + 4*aa + 3, aa * 32))
        a("v_and_b32 v12, 31, v1"); a("v_lshrrev_b32 v13, 3, v12")
        a("s_lshl_b32 s48, s63, 2"); a("v_add_u32 v13, s48, v13")
        a("v_lshlrev_b32 v15, 1, v14"); a("v_xor_b32 v13, v13, v15")
        a("v_and_b32 v12, 7, v1"); a("v_lshlrev_b32 v12, 1, v12")
        a("v_lshl_add_u32 v12, v14, 9, v12")
        a("s_lshl_b32 s48, s62, 12"); a("s_lshl_b32 s49, s5, 13"); a("s_add_u32 s48, s48, s49")
        a("v_add_u32 v12, s48, v12")
        for n, kap in enumerate((0, 1, 4, 5)):
            a("v_xor_b32 v15, %d, v13" % kap); a("v_lshl_add_u32 v%d, v15, 4, v12" % (76 + n))
        for r in range(16):
            aa, b = r // 4, r % 4
            kap = 4 * (aa & 1) | (b >> 1)
            n = (0, 1, None, None, 4, 5).index(kap) if False else {0: 0, 1: 1, 4: 2, 5: 3}[kap]
            a("ds_read_u16 v%d, v%d offset:%d" % (CACC + r, 76 + n, (8 * aa + b) * 128))
        a("s_cmp_eq_u32 s3, 4"); lz = a.newlabel("L_nz"); a("s_cbranch_scc0 %s" % lz)
        self.zero_counters()
        a.label(lz)
        a("s_waitcnt lgkmcnt(0)")
        a("s_barrier")
        self.stamp(8)
        a("s_setprio 3")
        a("v_lshlrev_b32 v115, 16, v115"); a("v_mul_f32 v115, 0.5, v115")
        for r in range(16):
            a("v_lshlrev_b32 v%d, 16, v%d" % (CACC + r, CACC + r)); a("v_mul_f32 v%d, v115, v%d" % (CACC + r, CACC + r))
            a("v_sub_f32 v%d, 1.0, v%d" % (G1 + r, G1 + r)); a("v_add_f32 v%d, v%d, v%d" % (G1 + r, G1 + r, G1 + r))
        for r in range(16, 64): a("v_mov_b32 v%d, 0" % (CACC + r))
        self.poll_nonce()
        self.stamp(9)
        def cmad(dr, di, ar, ai, mr, mi, er, ei):
            a("v_fma_f32 v%d, v%d, v%d, v%d" % (dr, ar, mr, er)); a("v_fma_f32 v%d, v%d, v%d, v%d" % (di, ai, mr, ei))
            a("v_fma_f32 v%d, -v%d, v%d, v%d" % (dr, ai, mi, dr)); a("v_fma_f32 v%d, v%d, v%d, v%d" % (di, ar, mi, di))
        e0, e1, e2, e3 = SEGV, SEGV + 2, SEGV + 4, SEGV + 6
        cmad(72, 73, e0, e0 + 1, L16R, L16I, e1, e1 + 1)
        cmad(74, 75, 72, 73, L16R, L16I, e2, e2 + 1)
        lne = a.newlabel("L_noE")
        a("s_cmp_eq_u32 s62, 0"); a("s_cbranch_scc0 %s" % lne)
        cmad(8, 9, 74, 75, L16R, L16I, e3, e3 + 1)
        a("v_mov_b32 v10, s%d" % S_NONCE); a("v_mov_b32 v11, s%d" % S_NONCE)
        a("s_mul_i32 s48, s4, 7168"); a("s_lshl_b32 s49, s5, 10"); a("s_add_u32 s48, s48, s49"); a("s_lshl_b32 s49, s63, 9"); a("s_add_u32 s48, s48, s49")
        a("s_add_u32 s48, s48, %d" % WS_E)
        a("s_mov_b32 exec_hi, 0")
        a("buffer_store_dwordx4 v[8:11], v%d, s[%d:%d], s48 offen sc1" % (V_L16, S_WS, S_WS + 3))
        a("s_mov_b64 exec, -1")
        a.label(lne)
        lr1 = a.newlabel("L_rt1"); lrd = a.newlabel("L_rtd")
        a("s_cmp_eq_u32 s62, 0"); a("s_cbranch_scc0 %s" % lr1)
        hi = "s[%d:%d]" % (S_HI, S_HI + 1)
        a("v_cndmask_b32 v76, v%d, v%d, %s" % (V_ZERO, e0, hi)); a("v_cndmask_b32 v77, v%d, v%d, %s" % (V_ZERO, e0 + 1, hi))
        a("v_mov_b32 v12, 1.0")
        a("v_cndmask_b32 v78, v12, v%d, %s" % (L16R, hi)); a("v_cndmask_b32 v79, v%d, v%d, %s" % (V_ZERO, L16I, hi))
        a("s_branch %s" % lrd)
        a.label(lr1)
        a("v_cndmask_b32 v76, v72, v74, %s" % hi); a("v_cndmask_b32 v77, v73, v75, %s" % hi)
        a("v_mul_f32 v12, v%d, v%d" % (L32R, L16R)); a("v_fma_f32 v12, -v%d, v%d, v12" % (L32I, L16I))
        a("v_mul_f32 v13, v%d, v%d" % (L32R, L16I)); a("v_fma_f32 v13, v%d, v%d, v13" % (L32I, L16R))
        a("v_cndmask_b32 v78, v%d, v12, %s" % (L32R, hi)); a("v_cndmask_b32 v79, v%d, v13, %s" % (L32I, hi))
        a.label(lrd)
        a("s_add_u32 s56, s4, 1"); a("s_lshr_b32 s56, s56, 1")
        a("v_mov_b32 v80, 0"); a("v_mov_b32 v81, 0")
        lnoh = a.newlabel("L_noH")
        a("s_cmp_eq_u32 s4, 0"); a("s_cbranch_scc1 %s" % lnoh)
        a("v_and_b32 v12, 31, v1"); a("v_lshlrev_b32 v12, 4, v12"); a("v_lshrrev_b32 v13, 5, v1"); a("v_mul_u32_u24 v13, 7168, v13"); a("v_add_u32 v82, v12, v13")
        a("s_lshl_b32 s54, s5, 10"); a("s_lshl_b32 s49, s63, 9"); a("s_add_u32 s54, s54, s49"); a("s_add_u32 s54, s54, %d" % WS_E)
        a("s_mov_b32 s55, 0x40000")
        lp = a.newlabel("L_pe"); lld = a.newlabel("L_pel"); lck = a.newlabel("L_pec"); lok = a.newlabel("L_peo")
        a.label(lp)
        a("s_mov_b32 s48, s54")
        for i in range(16):
            if i:
                a("s_cmp_le_u32 s56, %d" % i); a("s_cbranch_scc1 %s" % lld)
            a("buffer_load_dwordx4 v[%d:%d], v82, s[%d:%d], s48 offen sc1" % (self.E_reg(i), self.E_reg(i) + 3, S_WS, S_WS + 3))
            a("s_add_u32 s48, s48, 14336")
        a.label(lld)
        a("s_waitcnt vmcnt(0)")
        a("v_mov_b32 v83, 0")
        for i in range(16):
            if i:
                a("s_cmp_le_u32 s56, %d" % i); a("s_cbranch_scc1 %s" % lck)
            a("s_lshl_b32 s49, s56, 1"); a("s_sub_u32 s49, s49, 1")
            a("s_cmp_eq_u32 s49, s4"); a("s_cselect_b32 s50, %d, 99" % 0)
            a("s_cmp_eq_u32 s56, %d" % (i + 1)); a("s_cselect_b32 s51, s50, 99")
            a("s_cmp_eq_u32 s51, 0"); a("s_cselect_b32 exec_hi, 0, -1")
            a("v_xor_b32 v12, s%d, v%d" % (S_NONCE, self.E_reg(i) + 2)); a("v_or_b32 v83, v83, v12")
            a("s_mov_b32 exec_hi, -1")
        a.label(lck)
        a("v_cmp_ne_u32 vcc, 0, v83")
        a("s_sub_u32 s55, s55, 1"); a("s_cbranch_scc1 %s" % lok)
        a("s_nop 2")
        a("s_cbranch_vccz %s" % lok)
        a("s_sleep 8")
        a("s_branch %s" % lp)
        a.label(lok)
        self.stamp(10)
        lhd = a.newlabel("L_hd")
        for i in range(16):
            if i:
                a("s_cmp_le_u32 s56, %d" % i); a("s_cbranch_scc1 %s" % lhd)
            a("s_lshl_b32 s49, s56, 1"); a("s_sub_u32 s49, s49, 1")
            a("s_cmp_eq_u32 s49, s4"); a("s_cselect_b32 s50, 0, 99")
            a("s_cmp_eq_u32 s56, %d" % (i + 1)); a("s_cselect_b32 s51, s50, 99")
            a("s_cmp_eq_u32 s51, 0"); a("s_cselect_b32 exec_hi, 0, -1")
            e = self.E_reg(i)
            a("v_pk_fma_f32 v[84:85], v[%d:%d], v[80:81], v[%d:%d] op_sel:[0,0,0] op_sel_hi:[0,1,1]" % (M2R, M2I, e, e + 1))
            a("v_pk_fma_f32 v[80:81], v[%d:%d], v[80:81], v[84:85] op_sel:[1,1,0] op_sel_hi:[1,0,1] neg_lo:[1,0,0]" % (M2R, M2I))
            a("s_mov_b32 exec_hi, -1")
        a.label(lhd)
        a("v_mul_f32 v84, v%d, v80" % MUR); a("v_fma_f32 v84, -v%d, v81, v84" % MUI)
        a("v_mul_f32 v85, v%d, v81" % MUR); a("v_fma_f32 v85, v%d, v80, v85" % MUI)
        a("s_bitcmp1_b32 s4, 0")
        a("s_cselect_b32 s50, 0, -1"); a("s_cselect_b32 s51, -1, 0")
        a("v_cndmask_b32 v80, v80, v84, s[50:51]"); a("v_cndmask_b32 v81, v81, v85, s[50:51]")
        a("v_mov_b32 v84, v80"); a("v_mov_b32 v85, v81"); a("s_nop 1")
        a("v_permlane32_swap_b32 v80, v84"); a("v_permlane32_swap_b32 v81, v85"); a("s_nop 1")
        a("v_add_f32 v80, v80, v84"); a("v_add_f32 v81, v81, v85")
        a.label(lnoh)
        cmad(8, 9, 80, 81, 78, 79, 76, 77)
        RE, IM = 32, 48
        a("v_and_b32 v12, 31, v1"); a("v_lshrrev_b32 v13, 3, v12"); a("v_and_b32 v14, 7, v1"); a("v_lshlrev_b32 v14, 1, v14")
        a("v_lshrrev_b32 v15, 5, v1"); a("v_lshl_add_u32 v14, v15, 11, v14")
        a("s_lshl_b32 s48, s61, 13"); a("v_add_u32 v14, s48, v14")
        for jx in range(4):
            a("v_xor_b32 v15, %d, v13" % jx); a("v_lshl_add_u32 v%d, v15, 4, v14" % (86 + jx))
        for r in range(16):
            a("v_fma_f32 v10, v%d, v8, v%d" % (LR, RE + r)); a("v_fma_f32 v11, v%d, v9, v%d" % (LR, IM + r))
            a("v_fma_f32 v10, -v%d, v9, v10" % LI); a("v_fma_f32 v9, v%d, v8, v11" % LI)
            a("v_mov_b32 v8, v10")
            a("v_cvt_pk_bf16_f32 v%d, v10, -v9" % (RE + r))
            sw = r >> 1
            a("ds_write_b16 v%d, v%d offset:%d" % (86 + (sw & 3), RE + r, r * 128 + ((0 ^ (sw >> 2)) * 64)))
            a("ds_write_b16_d16_hi v%d, v%d offset:%d" % (86 + (sw & 3), RE + r, r * 128 + ((1 ^ (sw >> 2)) * 64)))
        a("v_and_b32 v13, 31, v1"); a("v_lshrrev_b32 v14, 5, v1")
        self.xfrag_addrs(90, None)
        a("s_lshl_b32 s48, s61, 13")
        for s in range(4): a("v_add_u32 v%d, s48, v%d" % (90 + s, 90 + s))
        a("s_waitcnt lgkmcnt(0)")
        for s in range(4): a("ds_read_b128 v[%d:%d], v%d" % (64 + 4*s, 64 + 4*s + 3, 90 + s))
        a("s_lshl_b32 s48, s4, 1"); a("s_add_u32 s48, s48, s62"); a("s_mul_i32 s48, s48, 56")
        a("s_lshl_b32 s49, s5, 2"); a("s_add_u32 s48, s48, s49"); a("s_lshl_b32 s49, s63, 1"); a("s_add_u32 s48, s48, s49")
        a("s_lshl_b32 s48, s48, 10"); a("s_add_u32 s48, s48, %d" % WS_H); a("s_add_u32 s49, s48, %d" % (28 * 1024))
        a("s_waitcnt lgkmcnt(0)")
        a("buffer_store_dwordx4 v[64:67], v%d, s[%d:%d], s48 offen sc1" % (V_L16, S_WS, S_WS + 3))
        a("buffer_store_dwordx4 v[68:71], v%d, s[%d:%d], s48 offen offset:1024 sc1" % (V_L16, S_WS, S_WS + 3))
        a("buffer_store_dwordx4 v[72:75], v%d, s[%d:%d], s49 offen sc1" % (V_L16, S_WS, S_WS + 3))
        a("buffer_store_dwordx4 v[76:79], v%d, s[%d:%d], s49 offen offset:1024 sc1" % (V_L16, S_WS, S_WS + 3))
        self.stamp(11)
        a("s_waitcnt vmcnt(0)")
        self.stamp(12)
        self.gstamp(4)
        a("s_lshl_b32 s52, s5, 2"); a("s_add_u32 s52, s52, s61")
        self.flag_store(WS_HF, 52)
        if self.stop_after == "h":
            a("s_waitcnt vmcnt(0)"); a("s_endpgm")
        for j in range(3):
            a("s_add_u32 s52, s61, %d" % (4 * j))
            a("s_cmp_ge_u32 s52, 7")
            a("s_cselect_b32 s%d, s%d, s%d" % (S_T, P_CIM, P_CRE)); a("s_cselect_b32 s%d, s%d, s%d" % (S_T + 1, P_CIM + 1, P_CRE + 1))
            a("s_cselect_b32 s53, 7, 0")
            a("s_mov_b32 s%d, 0x%x" % (S_T + 2, 448 * 896)); a("s_mov_b32 s%d, 0x20000" % (S_T + 3))
            a("s_sub_u32 s53, s52, s53"); a("s_lshl_b32 s53, s53, 7")
            a("s_mul_i32 s48, s5, %d" % (64 * 896)); a("s_add_u32 s53, s53, s48")
            a("s_lshl_b32 s52, s52, 13")
            for m in range(8):
                a("s_add_u32 s48, s53, %d" % (8 * m * 896))
                a("s_add_u32 m0, s52, %d" % (m * 1024)); a("s_nop 0")
                a("buffer_load_dwordx4 v%d, s[%d:%d], s48 offen lds" % (V_DE if m % 2 == 0 else V_DO, S_T, S_T + 3))
        srd(a, S_T2, P_CIM, 448 * 896)
        a("v_and_b32 v12, 31, v1"); a("v_mul_u32_u24 v12, 896, v12"); a("v_lshrrev_b32 v13, 5, v1"); a("v_lshl_add_u32 v12, v13, 4, v12")
        a("s_lshl_b32 s48, s61, 6"); a("s_add_u32 s48, s48, %d" % (20 * 32)); a("s_mul_i32 s49, s5, %d" % (64 * 896)); a("s_add_u32 s48, s48, s49")
        a("s_mul_i32 s49, s63, %d" % (32 * 896)); a("s_add_u32 s50, s48, s49")
        a("s_xor_b32 s49, s63, 1"); a("s_mul_i32 s49, s49, %d" % (32 * 896)); a("s_add_u32 s51, s48, s49")
        DC = 224
        for kk in range(2):
            a("buffer_load_dwordx4 v[%d:%d], v12, s[%d:%d], s50 offen offset:%d" % (DC + kk*8, DC + kk*8 + 3, S_T2, S_T2 + 3, kk * 32))
            a("buffer_load_dwordx4 v[%d:%d], v12, s[%d:%d], s51 offen offset:%d" % (DC + kk*8 + 4, DC + kk*8 + 7, S_T2, S_T2 + 3, kk * 32))
        self.poll_flags(WS_HF, 0x0fffffff, sleep=8)
        self.stamp(13)
        HF = 16
        for rtp in range(2):
            a("s_xor_b32 s48, s62, %d" % rtp); a("s_lshl_b32 s49, s4, 1"); a("s_add_u32 s48, s48, s49"); a("s_mul_i32 s48, s48, %d" % (56 * 1024))
            a("s_add_u32 s48, s48, %d" % WS_H)
            a("s_lshl_b32 s49, s61, 12"); a("s_add_u32 s50, s48, s49")
            for j in range(3):
                for s in range(4):
                    r = HF + ((j * 4 + s) * 2 + rtp) * 4
                    a("buffer_load_dwordx4 v[%d:%d], v%d, s[%d:%d], s50 offen offset:%d sc1" % (r, r + 3, V_L16, S_WS, S_WS + 3, s * 1024))
                a("s_add_u32 s50, s50, %d" % (16 * 1024))
            a("s_lshl_b32 s49, s61, 11"); a("s_add_u32 s50, s48, s49"); a("s_add_u32 s50, s50, %d" % (48 * 1024))
            for kk in range(2):
                r = HF + ((12 + kk) * 2 + rtp) * 4
                a("buffer_load_dwordx4 v[%d:%d], v%d, s[%d:%d], s50 offen offset:%d sc1" % (r, r + 3, V_L16, S_WS, S_WS + 3, kk * 1024))
        a("v_and_b32 v13, 31, v1"); a("v_lshrrev_b32 v14, 5, v1")
        self.xfrag_addrs(240, None)
        a("s_lshl_b32 s48, s61, 13"); a("s_lshl_b32 s49, s63, 12"); a("s_add_u32 s48, s48, s49")
        for s in range(4):
            a("v_add_u32 v%d, s48, v%d" % (240 + s, 240 + s)); a("v_xor_b32 v%d, 0x1000, v%d" % (244 + s, 240 + s))
        a("s_waitcnt vmcnt(0)")
        a("s_setprio 0")
        self.stamp(14)
        BT = 208
        for j in range(3):
            if j == 2:
                for s in range(8): a("v_add_u32 v%d, 0x10000, v%d" % (240 + s, 240 + s))
            off = (j * 32768) if j < 2 else 0
            for s in range(4):
                b = BT + (s % 2) * 8
                a("ds_read_b128 v[%d:%d], v%d offset:%d" % (b, b + 3, 240 + s, off))
                a("ds_read_b128 v[%d:%d], v%d offset:%d" % (b + 4, b + 7, 244 + s, off))
                a("s_waitcnt lgkmcnt(0)")
                for rtp in range(2):
                    for cp in range(2):
                        acc = CACC + (2 * rtp + cp) * 16
                        h = HF + ((j * 4 + s) * 2 + rtp) * 4
                        a("%s %s, %s, %s, %s" % (MF, vr(acc, 16), vr(h, 4), vr(b + 4 * cp, 4), vr(acc, 16)))
        for kk in range(2):
            for rtp in range(2):
                for cp in range(2):
                    acc = CACC + (2 * rtp + cp) * 16
                    h = HF + ((12 + kk) * 2 + rtp) * 4
                    a("%s %s, %s, %s, %s" % (MF, vr(acc, 16), vr(h, 4), vr(DC + kk * 8 + 4 * cp, 4), vr(acc, 16)))
        srd(a, S_T, P_WO, 448 * 896)
        a("v_lshrrev_b32 v12, 3, v1"); a("v_mul_u32_u24 v12, 896, v12"); a("v_and_b32 v13, 7, v1"); a("v_lshl_add_u32 v8, v13, 4, v12")
        for jj in range(2):
            lsk = a.newlabel("L_wosk")
            a("s_add_u32 s52, s61, %d" % (4 * jj))
            if jj == 1:
                a("s_cmp_ge_u32 s52, 7"); a("s_cbranch_scc1 %s" % lsk)
            a("s_mul_i32 s53, s52, %d" % (64 * 896)); a("s_lshl_b32 s48, s5, 7"); a("s_add_u32 s53, s53, s48")
            a("s_lshl_b32 s52, s52, 13")
            for m in range(8):
                a("s_add_u32 s48, s53, %d" % (8 * m * 896))
                a("s_add_u32 m0, s52, %d" % (m * 1024)); a("s_nop 0")
                a("buffer_load_dwordx4 v8, s[%d:%d], s48 offen lds" % (S_T, S_T + 3))
            if jj == 1: a.label(lsk)
        self.stamp(15)
        self.lds_wait(4, 4, sleep=4)
        self.stamp(16)
        a("s_nop 7"); a("s_nop 7")
        for u in range(1, 4):
            a("s_xor_b32 s48, s61, %d" % u); a("s_mul_i32 s48, s48, 12288"); a("s_add_u32 s48, s48, %d" % (L_RED + (u - 1) * 4096))
            a("v_add_u32 v12, s48, v%d" % V_L16)
            for k in range(4):
                a("ds_write_b128 v12, v[%d:%d] offset:%d" % (CACC + u*16 + 4*k, CACC + u*16 + 4*k + 3, k * 1024))
        a("s_waitcnt lgkmcnt(0)")
        self.lds_inc(1)
        self.lds_wait(1, 4)
        a("s_mul_i32 s48, s61, 12288"); a("s_add_u32 s48, s48, %d" % L_RED)
        a("v_add_u32 v12, s48, v%d" % V_L16)
        T = 16
        for s in range(3):
            for k in range(4):
                a("ds_read_b128 v[%d:%d], v12 offset:%d" % (T + s*16 + 4*k, T + s*16 + 4*k + 3, s * 4096 + k * 1024))
        for s in range(3):
            a("s_waitcnt lgkmcnt(%d)" % (8 - 4 * s))
            for r in range(0, 16, 2):
                a("v_pk_add_f32 v[%d:%d], v[%d:%d], v[%d:%d]" % (CACC + r, CACC + r + 1, CACC + r, CACC + r + 1, T + s*16 + r, T + s*16 + r + 1))
        for r in range(16): a("v_mul_f32 v%d, v%d, v%d" % (CACC + r, G1 + r, CACC + r))
        for r in range(16, 32): a("v_mov_b32 v%d, 0" % (CACC + r))
        a("s_waitcnt vmcnt(0)")
        self.lds_inc(2)
        self.lds_wait(2, 4)
        self.stamp(17)
        self.poll_flags(WS_OF, 0xffffffff)
        self.stamp(18)
        OF = 16
        a("s_lshl_b32 s48, s4, 1"); a("s_add_u32 s48, s48, s62"); a("s_lshl_b32 s48, s48, 4"); a("s_lshl_b32 s49, s63, 3"); a("s_add_u32 s48, s48, s49")
        a("s_lshl_b32 s48, s48, 11"); a("s_add_u32 s48, s48, %d" % WS_O)
        for hh in range(8):
            for f in range(2):
                r = OF + (hh * 2 + f) * 4
                a("buffer_load_dwordx4 v[%d:%d], v%d, s[%d:%d], s48 offen offset:%d sc1" % (r, r + 3, V_L16, S_WS, S_WS + 3, (hh % 2) * 2048 + f * 1024))
            if hh % 2 == 1: a("s_add_u32 s48, s48, 4096")
        a("v_lshrrev_b32 v12, 5, v1"); a("v_lshlrev_b32 v12, 2, v12"); a("v_bfe_u32 v13, v1, 2, 2"); a("v_add_u32 v12, v12, v13"); a("v_lshlrev_b32 v12, 7, v12")
        a("v_bfe_u32 v13, v1, 4, 1"); a("v_lshl_add_u32 v12, v13, 5, v12"); a("v_and_b32 v13, 3, v1"); a("v_lshl_add_u32 v12, v13, 3, v12")
        a("s_mul_i32 s48, s63, %d" % (8 * 28 * 128 + 64)); a("v_add_u32 v240, s48, v12"); a("v_xor_b32 v241, 64, v240")
        BT = 96
        for hh in range(8):
            for f in range(2):
                b = BT + ((hh * 2 + f) % 2) * 8
                off = (28 * hh + 16 * f) * 128
                for cp in range(2):
                    a("ds_read_b64_tr_b16 v[%d:%d], v%d offset:%d" % (b + 4*cp, b + 4*cp + 1, 240 + cp, off))
                    a("ds_read_b64_tr_b16 v[%d:%d], v%d offset:%d" % (b + 4*cp + 2, b + 4*cp + 3, 240 + cp, off + 8 * 128))
                a("s_waitcnt vmcnt(%d) lgkmcnt(0)" % (15 - (hh * 2 + f)))
                r = OF + (hh * 2 + f) * 4
                for cp in range(2):
                    acc = CACC + cp * 16
                    a("%s %s, %s, %s, %s" % (MF, vr(acc, 16), vr(r, 4), vr(b + 4 * cp, 4), vr(acc, 16)))
        a("s_nop 7"); a("s_nop 7")
        self.stamp(19)
        a("s_xor_b32 s48, s61, 1"); a("s_lshl_b32 s48, s48, 12"); a("s_add_u32 s48, s48, %d" % L_RED)
        a("v_add_u32 v12, s48, v%d" % V_L16)
        for k in range(4): a("ds_write_b128 v12, v[%d:%d] offset:%d" % (CACC + 16 + 4*k, CACC + 16 + 4*k + 3, k * 1024))
        a("s_waitcnt lgkmcnt(0)")
        self.lds_inc(3)
        self.lds_wait(3, 4)
        a("s_lshl_b32 s48, s61, 12"); a("s_add_u32 s48, s48, %d" % L_RED)
        a("v_add_u32 v12, s48, v%d" % V_L16)
        for k in range(4): a("ds_read_b128 v[%d:%d], v12 offset:%d" % (16 + 4*k, 16 + 4*k + 3, k * 1024))
        a("s_waitcnt lgkmcnt(0)")
        for r in range(0, 16, 2):
            a("v_pk_add_f32 v[%d:%d], v[%d:%d], v[%d:%d]" % (CACC + r, CACC + r + 1, CACC + r, CACC + r + 1, 16 + r, 16 + r + 1))
        srd(a, S_T, P_OUT, 2048 * 448 * 4)
        a("v_lshrrev_b32 v12, 5, v1"); a("v_mul_u32_u24 v12, %d, v12" % (4 * 1792)); a("v_and_b32 v13, 31, v1"); a("v_lshl_add_u32 v12, v13, 2, v12")
        a("s_lshl_b32 s48, s4, 6"); a("s_lshl_b32 s49, s62, 5"); a("s_add_u32 s48, s48, s49"); a("s_mul_i32 s48, s48, 1792")
        a("s_lshl_b32 s49, s5, 8"); a("s_add_u32 s48, s48, s49"); a("s_lshl_b32 s49, s63, 7"); a("s_add_u32 s48, s48, s49")
        for r in range(16):
            aa, b = r // 4, r % 4
            rowoff = (8 * aa + b) * 1792
            if b == 0 and aa > 0: a("s_add_u32 s48, s48, %d" % (8 * 1792))
            off = b * 1792
            if off > 4095:
                a("s_add_u32 s49, s48, %d" % off)
                a("buffer_store_dword v%d, v12, s[%d:%d], s49 offen" % (CACC + r, S_T, S_T + 3))
            else:
                a("buffer_store_dword v%d, v12, s[%d:%d], s48 offen offset:%d" % (CACC + r, S_T, S_T + 3, off))
        self.stamp(20)
        if self.gst:
            a("s_waitcnt vmcnt(0)"); self.gstamp(5)
        if self.stamps: a("s_waitcnt vmcnt(0)")
        self.stamp(21)
        self.stamp_flush()
        a("s_endpgm")

if __name__ == "__main__":
    k = K(debug=False, gst=("gst" in sys.argv))
    k.build()
    open("gated_mix__grouped_kv_mqa__ssm_conv_s5__prompt.s", "w").write(HEADER_COMMENT + k.text())
```

```python
from asmlib import *

class AttnRegs:
    def __init__(self, base):
        self.Q = base
        self.O = base + 32
        self.KV = base + 96
        self.S = base + 160
        self.P = base + 192
        self.end = base + 208

def attn_loop(a, R, voff, srd, soff, NT=16, ld_flags="sc1", tile_bytes=4096, stamp=None, tripstamps=None, place="c", zero_o=True, pre=None, progress=None):
    nsteps = NT * 4
    def load_one(m, i):
        b = m % 4
        a("buffer_load_dwordx4 %s, %s, %s, %s offen offset:%d %s" % (vr(R.KV + b*16 + i*4, 4), vr(voff), sr(srd, 4), sr(soff), i*1024, ld_flags))
    def bump(): a("s_add_u32 %s, %s, %d" % (sr(soff), sr(soff), tile_bytes))
    def load_tile(m):
        for i in range(4): load_one(m, i)
        bump()
    def A(i, which):
        kt, qt = i // 4, i % 4
        S = R.S + (i % 2) * 16
        K = R.KV + (kt % 4) * 16 + which * 4
        Q = R.Q + qt * 8 + which * 4
        c = "0" if which == 0 else vr(S, 16)
        a("v_mfma_f32_32x32x16_bf16 %s, %s, %s, %s" % (vr(S, 16), vr(K, 4), vr(Q, 4), c))
    def C(i, which):
        kt, qt = i // 4, i % 4
        O = R.O + qt * 16
        V = R.KV + (kt % 4) * 16 + 8 + which * 4
        P = R.P + (i % 2) * 8 + which * 4
        c = vr(O, 16)
        a("v_mfma_f32_32x32x16_bf16 %s, %s, %s, %s" % (vr(O, 16), vr(V, 4), vr(P, 4), c))
    def Bgrp(i, g):
        S = R.S + (i % 2) * 16 + g * 4
        P = R.P + (i % 2) * 8 + g * 2
        for e in range(4): a("v_exp_f32 %s, %s" % (vr(S + e), vr(S + e)))
        a("v_cvt_pk_bf16_f32 %s, %s, %s" % (vr(P), vr(S), vr(S + 1)))
        a("v_cvt_pk_bf16_f32 %s, %s, %s" % (vr(P + 1), vr(S + 2), vr(S + 3)))
    def wait_for(mp):
        later = min(NT - 1, mp + 2) - mp
        return later
    def iteration(j, first_tile_c0=False):
        doA = j + 1 < nsteps
        doB = j < nsteps
        doC = j - 1 >= 0
        after = [[], [], [], []]
        before = []
        if place == "a":
            if j % 4 == 1 and (j - 1) // 4 + 3 < NT: before.append(lambda: load_tile((j - 1) // 4 + 3))
            if doA and (j + 1) % 4 == 0: before.append(lambda: a("s_waitcnt vmcnt(%d)" % (4 * wait_for((j + 1) // 4))))
        elif place == "b":
            if j % 4 == 1 and (j - 1) // 4 + 3 < NT:
                m = (j - 1) // 4 + 3
                for g in range(4): after[g].append(lambda g=g: load_one(m, g))
            if j % 4 == 2 and (j - 2) // 4 + 3 < NT: after[0].append(bump)
            if (j + 2) % 4 == 0 and j + 2 < nsteps:
                after[3].append(lambda: a("s_waitcnt vmcnt(%d)" % (4 * wait_for((j + 2) // 4))))
        elif place == "c":
            if j >= 1:
                m = (j - 1) // 4 + 3; i = (j - 1) % 4
                if m < NT:
                    after[0].append(lambda: load_one(m, i))
                    if i == 3: after[1].append(bump)
            if (j + 2) % 4 == 0 and j + 2 < nsteps:
                mp = (j + 2) // 4
                n_after = 0
                if mp + 1 < NT: n_after += 4
                if mp + 2 < NT: n_after += 2
                after[3].append(lambda: a("s_waitcnt vmcnt(%d)" % n_after))
        for f in before: f()
        ops = []
        if doA: ops += [lambda: A(j + 1, 0), lambda: A(j + 1, 1)]
        else: ops += [None, None]
        if doC: ops += [lambda: C(j - 1, 0), lambda: C(j - 1, 1)]
        else: ops += [None, None]
        for g in range(4):
            if ops[g] is not None: ops[g]()
            for f in after[g]: f()
            if doB: Bgrp(j, g)
            elif g == 1: a("s_nop 1")
    if zero_o:
        for r in range(64): a("v_mov_b32 %s, 0" % vr(R.O + r))
    for m in range(3): load_tile(m)
    if pre is not None: pre()
    a("s_waitcnt vmcnt(8)")
    if stamp is not None: a("s_memtime %s" % sr(stamp, 2))
    A(0, 0); A(0, 1)
    a("s_nop 7"); a("s_nop 7")
    iteration(0)
    ntrips = NT // 4
    if True:
        if ntrips > 1:
            cnt = soff + 1
            a("s_mov_b32 %s, %d" % (sr(cnt), ntrips - 1))
            L = a.newlabel("L_attn")
            a.raw(".p2align 6")
            a.label(L)
            for j in range(1, 17):
                iteration(j)
                if progress is not None and j == 16: a(progress)
            if tripstamps is not None:
                a("s_memtime %s" % sr(tripstamps, 2)); a("s_waitcnt lgkmcnt(0)")
                for n in range(1, ntrips):
                    a("s_cmp_eq_u32 %s, %d" % (sr(cnt), n)); a("s_cselect_b32 %s, %s, %s" % (sr(tripstamps + 2 + n), sr(tripstamps), sr(tripstamps + 2 + n)))
            a("s_sub_u32 %s, %s, 1" % (sr(cnt), sr(cnt)))
            a("s_cmp_lg_u32 %s, 0" % sr(cnt))
            a("s_cbranch_scc1 %s" % L)
        base = (ntrips - 1) * 16
        for j in range(base + 1, base + 17):
            iteration(j)
            if progress is not None and j == base + 4: a(progress)
```

```python
import sys, math, struct
sys.path.insert(0, "gen")
from asmlib import *
import attn

NAME = "gated_mix__grouped_kv_mqa__ssm_conv_s5__prompt_kernel"

WS_KV = 0x0
WS_E  = 0x40000
WS_HF = 0x80000
WS_OF = 0x81000
WS_H  = 0x100000
WS_O  = 0x480000
WS_END = 0x680000
WS_DBG = 0x700000
WS_SIZE_DBG = 0x2000000

L_X = 0
L_RING = 57344
SLOT = 24576
L_MISC = 155648
L_G = L_MISC
L_SEG = L_MISC + 512
L_KM = L_MISC + 3072
L_QF = L_RING
L_TOTAL = 163840
L_CNT = 98304
L_RED = 114688

S_RBK, S_HP, S_NONCE = 4, 5, 6
S_D, S_WS, S_DBG, S_T, S_T2 = 8, 24, 28, 32, 36
P_X, P_WQ, P_WK, P_WV, P_WO, P_LRE, P_LIM = 64, 66, 68, 70, 72, 76, 78
P_BRE, P_BIM, P_CRE, P_CIM, P_LDT, P_DSK, P_GW, P_OUT = 80, 82, 84, 86, 88, 90, 92, 94
P_DBG, P_WS = 96, 98
S_SO, S_STEP, S_M0, S_ISX, S_DM, S_HI = 40, 41, 42, 43, 44, 46

V_LANE, V_L16 = 1, 2
V_D = 4
V_DE, V_DO = 8, 9
V_GATE, V_ZERO = 240, 247

LOG2E = 1.4426950408889634
QSCALE = 28 ** -0.5 * LOG2E
def f2u(x): return struct.unpack("<I", struct.pack("<f", x))[0]
MF = "v_mfma_f32_32x32x16_bf16"
HEADER_COMMENT = "; Generated by gen/kern2.py: persistent single-kernel implementation\n"

def srd(a, s, p, nbytes):
    a("s_mov_b32 s%d, s%d" % (s, p)); a("s_mov_b32 s%d, s%d" % (s + 1, p + 1))
    a("s_mov_b32 s%d, 0x%x" % (s + 2, nbytes)); a("s_mov_b32 s%d, 0x20000" % (s + 3))

def interleave(a, mains, extras, per=None):
    n = len(mains)
    if n == 0:
        for x in extras: a(x)
        return
    per = per or (len(extras) + n - 1) // n
    k = 0
    for m in mains:
        a(m)
        for x in extras[k:k + per]: a(x)
        k += per
    for x in extras[k:]: a(x)

class K:
    def __init__(self, stop_after=None, debug=False, stamps=False, gst=False, fine=False):
        self.fine = fine; self.gst = gst; self.a = Asm(); self.spread = 6; self.hstop = None
        self.stop_after = stop_after; self.debug = debug; self.stamps = stamps

    def stamp(self, i):
        if not self.stamps: return
        a = self.a
        a("s_memrealtime s[100:101]"); a("s_waitcnt lgkmcnt(0)"); a("v_writelane_b32 v3, s100, %d" % i)
    def stampc(self, i):
        if not self.stamps: return
        a = self.a
        a("s_memtime s[100:101]"); a("s_waitcnt lgkmcnt(0)"); a("v_writelane_b32 v3, s100, %d" % i)
    def gstamp(self, i):
        if not self.gst: return
        a = self.a
        lab = a.newlabel("L_gs")
        a("s_and_b32 s100, s2, 31"); a("s_and_b32 s101, s3, 3"); a("s_or_b32 s100, s100, s101"); a("s_cmp_eq_u32 s100, 0")
        a("s_cbranch_scc0 %s" % lab)
        a("s_memrealtime s[100:101]"); a("s_waitcnt lgkmcnt(0)")
        a("v_mov_b32 v14, s100"); a("v_mov_b32 v15, %d" % (4 * i))
        a("s_mov_b64 s[100:101], exec"); a("s_mov_b64 exec, 1")
        a("buffer_atomic_umax v14, v15, s[%d:%d], 0 offen" % (S_DBG, S_DBG + 3))
        a("s_mov_b64 exec, s[100:101]")
        a.label(lab)
    def stamp_flush(self):
        if not self.stamps: return
        a = self.a
        a("s_lshl_b32 s58, s2, 3"); a("s_add_u32 s58, s58, s3"); a("s_lshl_b32 s58, s58, 8"); a("s_add_u32 s58, s58, %d" % (WS_DBG + 0x800000))
        a("v_lshlrev_b32 v14, 2, v1")
        a("buffer_store_dword v3, v14, s[%d:%d], s58 offen" % (S_WS, S_WS + 3))
        a("s_waitcnt vmcnt(0)")
    def dump(self, base, nregs, slot_bytes, idx_sreg, off):
        a = self.a
        a("s_mul_i32 s58, s%d, %d" % (idx_sreg, slot_bytes)); a("s_add_u32 s58, s58, %d" % (WS_DBG + off))
        a("v_lshlrev_b32 v12, 2, v1")
        for r in range(nregs):
            if r % 16 == 0 and r: a("s_add_u32 s58, s58, 4096")
            a("buffer_store_dword v%d, v12, s[%d:%d], s58 offen offset:%d" % (base + r, S_WS, S_WS + 3, (r % 16) * 256))

    def prologue(self):
        a = self.a
        a("s_cmp_ge_u32 s2, 256")
        a("s_cbranch_scc1 L_exit")
        a("s_load_dwordx16 s[64:79], s[0:1], 0")
        a("s_load_dwordx16 s[80:95], s[0:1], 64")
        a("s_load_dwordx4 s[96:99], s[0:1], 128")
        if self.gst: a("s_memrealtime s[62:63]")
        if self.stamps:
            a("v_mov_b32 v3, 0"); self.stamp(0); self.stampc(32)
        a("v_lshrrev_b32 v12, 6, v0")
        a("v_and_b32 v1, 63, v0")
        a("s_and_b32 s48, s2, 7")
        a("v_readfirstlane_b32 s3, v12")
        a("s_lshr_b32 s49, s2, 3"); a("s_and_b32 s5, s49, 7"); a("s_lshr_b32 s49, s49, 3"); a("s_lshl_b32 s4, s48, 2"); a("s_add_u32 s4, s4, s49")
        a("v_lshlrev_b32 v2, 4, v1")
        a("v_lshrrev_b32 v12, 3, v1"); a("v_and_b32 v13, 7, v1"); a("v_lshrrev_b32 v14, 4, v1")
        a("v_mul_u32_u24 v15, 896, v12")
        a("v_xor_b32 v14, v13, v14")
        a("v_lshl_add_u32 v%d, v14, 4, v15" % V_DE)
        a("v_xor_b32 v14, 4, v14")
        a("v_lshl_add_u32 v%d, v14, 4, v15" % V_DO)
        a("v_lshl_add_u32 v11, v13, 4, v15")
        a("s_and_b32 s50, s3, 1")
        a("s_lshr_b32 s51, s3, 1")
        a("s_cmp_eq_u32 s51, 1")
        a("s_cselect_b64 s[52:53], -1, 0")
        a("s_cselect_b32 s%d, 0x7f7f7f7f, -1" % S_DM); a("s_cselect_b32 s%d, 0x7f7f7f7f, -1" % (S_DM + 1))
        a("v_cndmask_b32 v%d, v%d, v11, s[52:53]" % (V_D, V_DE))
        a("v_cndmask_b32 v%d, v%d, v11, s[52:53]" % (V_D + 1, V_DO))
        a("v_add_u32 v%d, %d, v%d" % (V_D + 2, 2 * 6144, V_D)); a("v_add_u32 v%d, %d, v%d" % (V_D + 3, 3 * 6144, V_D + 1))
        a("v_add_u32 v%d, %d, v%d" % (V_D + 1, 6144, V_D + 1))
        a("s_mov_b32 s%d, 0" % S_HI); a("s_mov_b32 s%d, -1" % (S_HI + 1))
        a("v_mov_b32 v%d, 0" % V_ZERO)
        a("s_lshl_b32 s54, s50, 5")
        a("s_lshl_b32 s55, s4, 6"); a("s_add_u32 s55, s55, s54"); a("s_mul_i32 s55, s55, 896")
        a("s_mul_i32 s56, s54, 896"); a("s_mul_i32 s57, s5, 112"); a("s_add_u32 s56, s56, s57")
        a("s_lshl_b32 s57, s5, 6"); a("s_add_u32 s57, s57, s54"); a("s_mul_i32 s57, s57, 896")
        a("s_lshl_b32 s58, s50, 12")
        a("s_cmp_eq_u32 s51, 0")
        a("s_mov_b32 s59, %d" % (64 * 896))
        a("s_cselect_b32 s%d, s55, s56" % S_SO); a("s_cselect_b32 s%d, 128, s59" % S_STEP)
        a("s_mov_b32 s59, %d" % SLOT); a("s_cselect_b32 s%d, 0x2000, s59" % S_ISX)
        a("s_mov_b32 s59, %d" % (L_RING + 4 * SLOT)); a("s_cselect_b32 s7, 0x7fffffff, s59")
        a("s_cselect_b32 s59, 0, %d" % L_RING); a("s_add_u32 s%d, s58, s59" % S_M0)
        a("s_cmp_ge_u32 s51, 2")
        lab = a.newlabel("L_pa")
        a("s_cbranch_scc0 %s" % lab)
        a("s_mov_b32 s%d, s57" % S_SO); a("s_mov_b32 s%d, 128" % S_STEP)
        a("s_sub_u32 s59, s3, 4"); a("s_lshl_b32 s59, s59, 12"); a("s_add_u32 s%d, s59, %d" % (S_M0, L_RING + 8192))
        a("s_cmp_eq_u32 s5, 7"); a("s_cbranch_scc0 %s" % lab)
        a("s_lshl_b32 s%d, s50, 11" % S_SO); a("s_mov_b32 s%d, 3584" % S_STEP)
        a("s_and_b32 s59, s51, 1"); a("s_lshl_b32 s59, s59, 12"); a("s_lshl_b32 s60, s50, 11"); a("s_add_u32 s59, s59, s60"); a("s_add_u32 s%d, s59, %d" % (S_M0, L_RING + 8192))
        a("v_mov_b32 v%d, v2" % V_D); a("v_mov_b32 v%d, v2" % (V_D + 1))
        a.label(lab)
        a("s_waitcnt lgkmcnt(0)")
        self.stamp(1)
        a("s_cmp_eq_u32 s5, 7")
        a("s_cselect_b32 s54, s%d, s%d" % (P_WK, P_BRE)); a("s_cselect_b32 s55, s%d, s%d" % (P_WK + 1, P_BRE + 1))
        a("s_cselect_b32 s56, s%d, s%d" % (P_WV, P_BIM)); a("s_cselect_b32 s57, s%d, s%d" % (P_WV + 1, P_BIM + 1))
        a("s_mov_b32 s59, 0x%x" % (448 * 896)); a("s_cselect_b32 s58, 0x%x, s59" % (448 * 56))
        a("s_cmp_eq_u32 s51, 3")
        a("s_cselect_b32 s54, s56, s54"); a("s_cselect_b32 s55, s57, s55")
        a("s_cmp_eq_u32 s51, 1")
        a("s_cselect_b32 s54, s%d, s54" % P_WQ); a("s_cselect_b32 s55, s%d, s55" % (P_WQ + 1)); a("s_cselect_b32 s58, 0x%x, s58" % (448 * 896))
        a("s_cmp_eq_u32 s51, 0")
        a("s_cselect_b32 s%d, s%d, s54" % (S_D, P_X)); a("s_cselect_b32 s%d, s%d, s55" % (S_D + 1, P_X + 1)); a("s_cselect_b32 s%d, 0x%x, s58" % (S_D + 2, 2048 * 896))
        a("s_mov_b32 s%d, 0x20000" % (S_D + 3))

    def dma_group(self, c, n, masked=True):
        o = []
        lds = ["buffer_load_dwordx4 v%d, s[%d:%d], s%d offen offset:%d lds" % (V_D + i, S_D, S_D + 3, S_SO, 1024 * i) for i in range(n)]
        if masked:
            o.append("\n".join(["s_mov_b32 m0, s%d" % S_M0, "s_mov_b64 exec, s[%d:%d]" % (S_DM, S_DM + 1)] + lds + ["s_mov_b64 exec, -1"]))
        else:
            o.append("s_mov_b32 m0, s%d\ns_nop 0\n%s" % (S_M0, lds[0]))
            o += lds[1:]
        o.append("s_add_u32 s%d, s%d, s%d\ns_add_u32 s%d, s%d, s%d" % (S_SO, S_SO, S_STEP, S_M0, S_M0, S_ISX))
        o.append("s_cmp_ge_u32 s%d, s7\ns_cselect_b32 s48, %d, 0\ns_sub_u32 s%d, s%d, s48" % (S_M0, 4 * SLOT, S_M0, S_M0))
        return o

    def gate_write(self, c):
        slotoff = L_RING + (c % 4) * SLOT
        return ["\n".join(["v_add_u32 v11, %d, v10" % slotoff, "s_mov_b64 exec, s[60:61]",
                "ds_write2_b32 v11, v%d, v%d offset0:0 offset1:1" % (V_GATE + c, V_ZERO), "s_mov_b64 exec, -1"])]

    def rest_setup(self):
        a = self.a
        srd(a, S_WS, P_WS, WS_SIZE_DBG if self.debug else WS_END)
        srd(a, S_DBG, P_DBG, 256)
        if self.gst:
            a("s_and_b32 s100, s2, 31"); a("s_and_b32 s101, s3, 3"); a("s_or_b32 s100, s100, s101"); a("s_cmp_eq_u32 s100, 0")
            a("s_cbranch_scc0 L_gs0")
            a("s_not_b32 s62, s62"); a("v_mov_b32 v14, s62"); a("v_mov_b32 v15, 0"); a("s_mov_b64 exec, 1")
            a("buffer_atomic_umax v14, v15, s[%d:%d], 0 offen" % (S_DBG, S_DBG + 3)); a("s_mov_b64 exec, -1")
            a.label("L_gs0")

    def nonce_store(self):
        a = self.a
        a("s_cmp_lg_u32 s2, 0"); a("s_cbranch_scc1 L_nononce")
        a("s_cmp_lg_u32 s3, 0"); a("s_cbranch_scc1 L_nononce")
        a("s_memrealtime s[50:51]"); a("s_waitcnt lgkmcnt(0)"); a("s_or_b32 s50, s50, 1")
        a("v_mov_b32 v12, s50"); a("v_mov_b32 v13, 124"); a("s_mov_b64 exec, 1")
        a("buffer_store_dword v12, v13, s[%d:%d], 0 offen sc1" % (S_DBG, S_DBG + 3))
        a("s_mov_b64 exec, -1")
        a.label("L_nononce")

    def xfrag_addrs(self, base, add_sreg=None, add_const=0):
        a = self.a
        a("v_lshrrev_b32 v15, 1, v13"); a("v_and_b32 v15, 7, v15")
        a("v_lshlrev_b32 v12, 7, v13")
        if add_sreg is not None: a("v_add_u32 v12, s%d, v12" % add_sreg)
        if add_const: a("v_add_u32 v12, %d, v12" % add_const)
        a("v_xor_b32 v15, v15, v14")
        for s in range(4):
            a("v_xor_b32 v11, %d, v15" % (2 * s))
            a("v_lshl_add_u32 v%d, v11, 4, v12" % (base + s))

    def tr_base(self, dst, pitch, rows_per_hf=8):
        a = self.a
        a("v_lshrrev_b32 v12, 5, v1"); a("v_mul_u32_u24 v12, %d, v12" % rows_per_hf)
        a("v_bfe_u32 v13, v1, 2, 2"); a("v_add_u32 v12, v12, v13"); a("v_mul_u32_u24 v12, %d, v12" % pitch)
        a("v_bfe_u32 v13, v1, 4, 1"); a("v_lshl_add_u32 v12, v13, 5, v12")
        a("v_and_b32 v13, 3, v1"); a("v_lshl_add_u32 v%d, v13, 3, v12" % dst)

    def pipeline(self, ndma, reads, mfmas, gate=False, extra=None):
        a = self.a
        for c in range(8):
            rd, mm, ex = [], [], []
            if c <= 6:
                later = min(6, c + 2) - c
                if self.fine: self.stampc(34 + 3 * c)
                a("s_waitcnt vmcnt(%d)" % (ndma * later))
                if c == 0 and gate:
                    for cc in range(3):
                        for x in self.gate_write(cc): a(x)
                if self.fine: self.stampc(35 + 3 * c)
                a("s_waitcnt lgkmcnt(0)")
                if c == 0: self.stamp(2); self.gstamp(6)
                a("s_barrier")
                if self.fine: self.stampc(36 + 3 * c)
                if c in (0, 3, 6): self.stamp({0: 3, 3: 4, 6: 5}[c])
                rd = reads(c)
                if c + 3 <= 6:
                    ex = self.dma_group(c + 3, ndma, masked=gate)
                    if gate: ex = ex + self.gate_write(c + 3)
            else:
                a("s_waitcnt lgkmcnt(0)")
            if c >= 1: mm = mfmas(c - 1)
            interleave(a, mm, rd + ex)
            if extra and c in extra: extra[c]()

    def front_q(self, ):
        XF, TR, ACC, FA, FB = 16, 20, 32, 48, 64
        def reads(c):
            sl = c % 4; tr = TR + sl // 2; off = (sl % 2) * SLOT
            st = 32 * (c % 2); o = []
            for s in range(4):
                o.append("ds_read_b64_tr_b16 v[%d:%d], v%d offset:%d" % (FA + st + 4*s, FA + st + 4*s + 1, tr, off + 16 * s * 128))
                o.append("ds_read_b64_tr_b16 v[%d:%d], v%d offset:%d" % (FA + st + 4*s + 2, FA + st + 4*s + 3, tr, off + 16 * s * 128 + 512))
                o.append("ds_read_b128 v[%d:%d], v%d offset:%d" % (FB + st + 4*s, FB + st + 4*s + 3, XF + s, L_X + c * 8192))
            return o
        def mfmas(c):
            st = 32 * (c % 2)
            return ["%s %s, %s, %s, %s" % (MF, vr(ACC, 16), vr(FA + st + 4*s, 4), vr(FB + st + 4*s, 4), "0" if (c == 0 and s == 0) else vr(ACC, 16)) for s in range(4)]
        self.pipeline(4, reads, mfmas, gate=True)

    def front_h(self):
        XP, BF, RE, IM = 16, 20, 32, 48
        def base(c): return 64 if c % 2 == 0 else 128
        def reads(c):
            sl = c % 4; bf = BF + 4 * (sl // 2); off = (sl % 2) * SLOT
            b = base(c); o = []
            for s in range(4):
                o.append("ds_read_b128 v[%d:%d], v%d offset:%d" % (b + 4*s, b + 4*s + 3, XP + s, L_X + c * 8192))
                o.append("ds_read_b128 v[%d:%d], v%d offset:%d" % (b + 16 + 4*s, b + 16 + 4*s + 3, bf + s, off))
                o.append("ds_read_b128 v[%d:%d], v%d offset:%d" % (b + 32 + 4*s, b + 32 + 4*s + 3, bf + s, off + 8192))
            return o
        def mfmas(c):
            b = base(c); o = []
            for s in range(4):
                z = (c == 0 and s == 0)
                o.append("%s %s, %s, %s, %s" % (MF, vr(RE, 16), vr(b + 4*s, 4), vr(b + 16 + 4*s, 4), "0" if z else vr(RE, 16)))
                o.append("%s %s, %s, %s, %s" % (MF, vr(IM, 16), vr(b + 4*s, 4), vr(b + 32 + 4*s, 4), "0" if z else vr(IM, 16)))
            return o
        self.pipeline(4, reads, mfmas, extra={0: self.params_compute})

    def front_kv(self, isv):
        XF, TR, ACC, FA, FB = 16, 20, 32, 48, 64
        def reads(c):
            sl = c % 4; tr = TR + sl // 2; off = (sl % 2) * SLOT
            st = 32 * (c % 2); o = []
            for s in range(4):
                o.append("ds_read_b64_tr_b16 v[%d:%d], v%d offset:%d" % (FA + st + 4*s, FA + st + 4*s + 1, tr, off + 16 * s * 56))
                o.append("ds_read_b64_tr_b16 v[%d:%d], v%d offset:%d" % (FA + st + 4*s + 2, FA + st + 4*s + 3, tr, off + 16 * s * 56 + 4 * 56))
                o.append("ds_read_b128 v[%d:%d], v%d offset:%d" % (FB + st + 4*s, FB + st + 4*s + 3, XF + s, L_X + c * 8192))
            return o
        def mfmas(c):
            st = 32 * (c % 2); o = []
            for s in range(4):
                cc = "0" if (c == 0 and s == 0) else vr(ACC, 16)
                if isv: o.append("%s %s, %s, %s, %s" % (MF, vr(ACC, 16), vr(FB + st + 4*s, 4), vr(FA + st + 4*s, 4), cc))
                else:   o.append("%s %s, %s, %s, %s" % (MF, vr(ACC, 16), vr(FA + st + 4*s, 4), vr(FB + st + 4*s, 4), cc))
            return o
        self.pipeline(2, reads, mfmas)

    def pack_acc(self, acc, dst):
        for i in range(8): self.a("v_cvt_pk_bf16_f32 v%d, v%d, v%d" % (dst + i, acc + 2*i, acc + 2*i + 1))

    def norm2(self, P, out, tmp):
        a = self.a
        a("v_dot2_f32_bf16 v%d, v%d, v%d, v%d" % (out, P, P, V_ZERO))
        a("v_dot2_f32_bf16 v%d, v%d, v%d, v%d" % (tmp, P + 1, P + 1, V_ZERO))
        for i in range(2, 8, 2):
            a("v_dot2_f32_bf16 v%d, v%d, v%d, v%d" % (out, P + i, P + i, out))
            a("v_dot2_f32_bf16 v%d, v%d, v%d, v%d" % (tmp, P + i + 1, P + i + 1, tmp))
        a("s_nop 2")
        a("v_add_f32 v%d, v%d, v%d" % (out, out, tmp))
        a("v_mov_b32 v%d, v%d" % (tmp, out))
        a("s_nop 1")
        a("v_permlane32_swap_b32 v%d, v%d" % (out, tmp))
        a("s_nop 1")
        a("v_add_f32 v%d, v%d, v%d" % (out, out, tmp))

    def q_epilogue(self):
        a = self.a
        ACC, P = 32, 48
        hi = "s[%d:%d]" % (S_HI, S_HI + 1)
        a("s_mov_b32 s48, 0x%x" % f2u(QSCALE)); a("s_mov_b32 s49, s48")
        a("s_nop 7"); a("s_nop 5")
        a("v_mov_b32 v60, v%d" % (ACC + 12))
        for r in range(0, 16, 2): a("v_pk_mul_f32 v[%d:%d], s[48:49], v[%d:%d]" % (ACC + r, ACC + r + 1, ACC + r, ACC + r + 1))
        self.pack_acc(ACC, P)
        a("v_cndmask_b32 v%d, v%d, v%d, %s" % (P + 6, P + 6, V_ZERO, hi))
        a("v_cndmask_b32 v%d, v%d, v%d, %s" % (P + 7, P + 7, V_ZERO, hi))
        a("s_lshl_b32 s48, s3, 11"); a("s_add_u32 s48, s48, %d" % L_QF)
        a("v_add_u32 v12, s48, v2")
        a("ds_write_b128 v12, v[%d:%d]" % (P, P + 3))
        a("s_mov_b32 s50, 0x%x" % f2u(-LOG2E))
        a("v_mul_f32 v60, s50, v60"); a("v_exp_f32 v60, v60")
        self.norm2(P, 56, 57)
        a("v_add_f32 v60, 1.0, v60")
        a("v_sqrt_f32 v56, v56")
        a("v_rcp_f32 v60, v60")
        a("s_mov_b32 s48, 0x%x" % f2u(1.0 + 2.0 ** -6))
        a("v_mul_f32 v56, s48, v56")
        a("v_cvt_pk_bf16_f32 v58, v56, v%d" % V_ZERO)
        a("v_cndmask_b32 v%d, v%d, v58, %s" % (P + 6, P + 6, hi))
        a("ds_write_b128 v12, v[%d:%d] offset:1024" % (P + 4, P + 7))
        a("s_bitcmp1_b32 s3, 0")
        lab = a.newlabel("L_nog")
        a("s_cbranch_scc0 %s" % lab)
        a("s_lshr_b32 s48, s3, 1"); a("s_lshl_b32 s48, s48, 7"); a("s_add_u32 s48, s48, %d" % (L_G - 128))
        a("v_lshlrev_b32 v13, 2, v1"); a("v_add_u32 v13, s48, v13")
        a("s_mov_b64 exec, %s" % hi)
        a("ds_write_b32 v13, v60")
        a("s_mov_b64 exec, -1")
        a.label(lab)

    def kv_store(self, P, off):
        a = self.a
        a("s_sub_u32 s52, s3, 4"); a("s_lshr_b32 s52, s52, 1"); a("s_lshl_b32 s53, s4, 1"); a("s_add_u32 s52, s52, s53")
        a("s_lshl_b32 s52, s52, 12"); a("s_add_u32 s52, s52, %d" % (WS_KV + off))
        a("buffer_store_dwordx4 v[%d:%d], v2, s[%d:%d], s52 offen sc1" % (P, P + 3, S_WS, S_WS + 3))
        a("buffer_store_dwordx4 v[%d:%d], v2, s[%d:%d], s52 offen offset:1024 sc1" % (P + 4, P + 7, S_WS, S_WS + 3))

    def k_epilogue(self):
        a = self.a
        ACC, P = 32, 48
        hi = "s[%d:%d]" % (S_HI, S_HI + 1)
        a("v_mov_b32 v58, 0x3f803f80"); a("v_mov_b32 v59, 0x3f80")
        a("s_nop 7"); a("s_nop 5")
        self.pack_acc(ACC, P)
        a("v_cndmask_b32 v62, v%d, v%d, %s" % (P + 6, V_ZERO, hi)); a("v_cndmask_b32 v63, v%d, v%d, %s" % (P + 7, V_ZERO, hi))
        a("v_cndmask_b32 v%d, v%d, v58, %s" % (P + 6, P + 6, hi)); a("v_cndmask_b32 v%d, v%d, v59, %s" % (P + 7, P + 7, hi))
        self.kv_store(P, 0)
        a("v_dot2_f32_bf16 v56, v62, v62, v%d" % V_ZERO); a("v_dot2_f32_bf16 v57, v63, v63, v%d" % V_ZERO)
        for i in range(0, 6, 2):
            a("v_dot2_f32_bf16 v56, v%d, v%d, v56" % (P + i, P + i)); a("v_dot2_f32_bf16 v57, v%d, v%d, v57" % (P + i + 1, P + i + 1))
        a("s_nop 2"); a("v_add_f32 v56, v56, v57"); a("v_mov_b32 v57, v56"); a("s_nop 1")
        a("v_permlane32_swap_b32 v56, v57"); a("s_nop 1"); a("v_add_f32 v56, v56, v57")
        for sh in (1, 2, 4, 8):
            a("s_nop 1"); a("v_max_f32_dpp v56, v56, v56 row_shr:%d row_mask:0xf bank_mask:0xf" % sh)
        a("s_nop 1")
        a("v_readlane_b32 s48, v56, 15"); a("v_readlane_b32 s49, v56, 31"); a("s_nop 3")
        a("s_max_u32 s48, s48, s49"); a("v_mov_b32 v56, s48")
        a("s_sub_u32 s49, s3, 4"); a("s_lshr_b32 s49, s49, 1"); a("s_lshl_b32 s49, s49, 2"); a("s_add_u32 s49, s49, %d" % L_KM)
        a("v_mov_b32 v12, s49"); a("ds_write_b32 v12, v56")

    def v_epilogue(self):
        a = self.a
        ACC, P = 32, 48
        a("s_mov_b32 s48, 0x10000000"); a("s_mov_b32 s49, 0x10000000"); a("s_mov_b32 s50, 0xe0000000"); a("s_mov_b32 s51, 0xe0000000")
        a("v_mov_b32 v58, 0x3f803f80")
        a("s_nop 7"); a("s_nop 5")
        self.pack_acc(ACC, P)
        for i in range(8):
            a("v_cndmask_b32 v%d, v%d, v58, s[48:49]" % (P + i, P + i))
            a("v_cndmask_b32 v%d, v%d, v%d, s[50:51]" % (P + i, P + i, V_ZERO))
        self.kv_store(P, 2048)

    def params_load(self):
        a = self.a
        a("s_and_b32 s48, s3, 1"); a("s_lshl_b32 s48, s48, 5"); a("s_lshl_b32 s49, s5, 6"); a("s_add_u32 s48, s48, s49")
        a("v_and_b32 v12, 31, v1"); a("v_add_lshl_u32 v12, v12, s48, 1")
        for reg, p in ((112, P_LRE), (113, P_LIM), (114, P_LDT), (115, P_DSK)):
            srd(a, S_T2, p, 896); a("buffer_load_ushort v%d, v12, s[%d:%d], 0 offen" % (reg, S_T2, S_T2 + 3))

    def csq(self, dr, di, sr_, si):
        a = self.a
        a("v_mul_f32 v%d, v%d, v%d" % (di, si, si)); a("v_fma_f32 v%d, v%d, v%d, -v%d" % (dr, sr_, sr_, di))
        a("v_mul_f32 v%d, v%d, v%d" % (di, sr_, si)); a("v_add_f32 v%d, v%d, v%d" % (di, di, di))

    def params_compute(self):
        a = self.a
        LR, LI, CR, CI, L16R, L16I, MUR, MUI, M2R, M2I, L32R, L32I = range(116, 128)
        T = 176
        a("v_lshlrev_b32 v112, 16, v112"); a("v_lshlrev_b32 v113, 16, v113"); a("v_lshlrev_b32 v114, 16, v114")
        a("s_mov_b32 s48, 0x%x" % f2u(LOG2E))
        a("v_mul_f32 v114, s48, v114"); a("v_exp_f32 v114, v114"); a("s_nop 0")
        a("v_cvt_pk_bf16_f32 v114, v114, v%d" % V_ZERO); a("v_lshlrev_b32 v114, 16, v114")
        a("v_mul_f32 v%d, v114, v112" % T); a("v_mul_f32 v%d, v114, v113" % (T + 1))
        a("v_mul_f32 v%d, s48, v%d" % (T, T)); a("v_exp_f32 v%d, v%d" % (T, T))
        a("v_mul_f32 v%d, 0.15915494, v%d" % (T + 1, T + 1)); a("v_fract_f32 v%d, v%d" % (T + 1, T + 1))
        a("v_cos_f32 v%d, v%d" % (T + 2, T + 1)); a("v_sin_f32 v%d, v%d" % (T + 1, T + 1)); a("s_nop 0")
        a("v_mul_f32 v%d, v%d, v%d" % (LR, T, T + 2)); a("v_mul_f32 v%d, v%d, v%d" % (LI, T, T + 1))
        a("v_add_f32 v%d, -1.0, v%d" % (T, LR))
        a("v_mul_f32 v%d, v112, v112" % (T + 1)); a("v_fma_f32 v%d, v113, v113, v%d" % (T + 1, T + 1)); a("v_rcp_f32 v%d, v%d" % (T + 1, T + 1))
        a("v_mul_f32 v%d, v%d, v112" % (T + 2, T)); a("v_fma_f32 v%d, v%d, v113, v%d" % (T + 2, LI, T + 2))
        a("v_mul_f32 v%d, v%d, v112" % (T + 3, LI)); a("v_fma_f32 v%d, -v%d, v113, v%d" % (T + 3, T, T + 3))
        a("v_mul_f32 v%d, v%d, v%d" % (CR, T + 2, T + 1)); a("v_mul_f32 v%d, v%d, v%d" % (CI, T + 3, T + 1))
        a("v_lshlrev_b32 v9, 16, v115"); a("v_mul_f32 v9, 0.5, v9"); a("v_mov_b32 v8, v9")
        self.csq(T, T + 1, LR, LI); self.csq(T + 2, T + 3, T, T + 1); self.csq(T, T + 1, T + 2, T + 3)
        self.csq(L16R, L16I, T, T + 1); self.csq(L32R, L32I, L16R, L16I); self.csq(MUR, MUI, L32R, L32I); self.csq(M2R, M2I, MUR, MUI)

    def scan_step(self, er, ur, ui, dst):
        a = self.a
        a("v_fma_f32 v10, v116, v%d, v%d" % (er, ur)); a("v_fma_f32 v11, v116, v%d, v%d" % (er + 1, ui))
        a("v_pk_fma_f32 v[%d:%d], v[116:117], v[%d:%d], v[10:11] op_sel:[1,1,0] op_sel_hi:[1,0,1] neg_lo:[1,0,0]" % (dst, dst + 1, er, er + 1))

    def h_epilogue_pass1(self):
        a = self.a
        RE, IM = 32, 48
        a("s_nop 7"); a("s_nop 5")
        for r in range(0, 16, 2):
            a("v_pk_mul_f32 v[12:13], v[118:119], v[%d:%d] op_sel:[1,0] op_sel_hi:[1,1]" % (IM + r, IM + r + 1))
            a("v_pk_mul_f32 v[14:15], v[118:119], v[%d:%d] op_sel:[1,0] op_sel_hi:[1,1]" % (RE + r, RE + r + 1))
            a("v_pk_fma_f32 v[%d:%d], v[118:119], v[%d:%d], v[12:13] op_sel:[0,0,0] op_sel_hi:[0,1,1] neg_lo:[0,0,1] neg_hi:[0,0,1]" % (RE + r, RE + r + 1, RE + r, RE + r + 1))
            a("v_pk_fma_f32 v[%d:%d], v[118:119], v[%d:%d], v[14:15] op_sel:[0,0,0] op_sel_hi:[0,1,1]" % (IM + r, IM + r + 1, IM + r, IM + r + 1))
        a("v_mov_b32 v12, v%d" % RE); a("v_mov_b32 v13, v%d" % IM)
        for r in range(1, 16): self.scan_step(12, RE + r, IM + r, 12)
        a("s_sub_u32 s48, s3, 4"); a("s_lshr_b32 s49, s48, 1"); a("s_and_b32 s48, s48, 1")
        a("s_lshl_b32 s49, s49, 10"); a("s_lshl_b32 s48, s48, 8"); a("s_add_u32 s48, s48, s49"); a("s_add_u32 s48, s48, %d" % L_SEG)
        a("v_lshrrev_b32 v14, 5, v1"); a("v_lshlrev_b32 v14, 9, v14"); a("v_and_b32 v15, 31, v1"); a("v_lshl_add_u32 v14, v15, 3, v14")
        a("v_add_u32 v14, s48, v14")
        a("ds_write_b64 v14, v[12:13]")

    def poll_nonce(self):
        a = self.a
        lab = a.newlabel("L_pn"); done = a.newlabel("L_pnd")
        a("v_mov_b32 v12, 124"); a("s_mov_b32 s48, 0x100000")
        a.label(lab)
        a("buffer_load_dword v13, v12, s[%d:%d], 0 offen sc1" % (S_DBG, S_DBG + 3))
        a("s_waitcnt vmcnt(0)")
        a("v_readfirstlane_b32 s%d, v13" % S_NONCE)
        a("s_sub_u32 s48, s48, 1"); a("s_cbranch_scc1 %s" % done)
        a("s_cmp_eq_u32 s%d, 0" % S_NONCE); a("s_cbranch_scc1 %s" % lab)
        a.label(done)
    def lds_inc(self, cnt):
        a = self.a
        a("v_mov_b32 v12, %d" % (L_CNT + 4 * cnt)); a("v_mov_b32 v13, 1"); a("s_mov_b64 exec, 1")
        a("ds_add_u32 v12, v13"); a("s_mov_b64 exec, -1")
    def lds_wait(self, cnt, target, sleep=0):
        a = self.a
        lab = a.newlabel("L_lw"); done = a.newlabel("L_lwd")
        a("v_mov_b32 v12, %d" % (L_CNT + 4 * cnt)); a("s_mov_b32 s48, 0x400000")
        a.label(lab)
        a("ds_read_b32 v13, v12"); a("s_waitcnt lgkmcnt(0)"); a("v_readfirstlane_b32 s49, v13")
        a("s_sub_u32 s48, s48, 1"); a("s_cbranch_scc1 %s" % done)
        a("s_cmp_ge_u32 s49, %d" % target); a("s_cbranch_scc1 %s" % done)
        if sleep: a("s_sleep %d" % sleep)
        a("s_branch %s" % lab)
        a.label(done)
    def poll_flags(self, ws_off, mask_lo, sleep=1):
        a = self.a
        lab = a.newlabel("L_pf"); done = a.newlabel("L_pfd")
        a("s_lshl_b32 s50, s4, 7"); a("s_add_u32 s50, s50, %d" % ws_off)
        a("v_lshlrev_b32 v12, 2, v1"); a("s_mov_b32 s48, 0x100000")
        a("s_mov_b32 exec_lo, 0x%x" % mask_lo); a("s_mov_b32 exec_hi, 0")
        a.label(lab)
        a("buffer_load_dword v13, v12, s[%d:%d], s50 offen sc1" % (S_WS, S_WS + 3))
        a("s_waitcnt vmcnt(0)")
        a("v_cmp_ne_u32 vcc, s%d, v13" % S_NONCE)
        a("s_sub_u32 s48, s48, 1"); a("s_cbranch_scc1 %s" % done)
        a("s_nop 2"); a("s_cbranch_vccz %s" % done)
        a("s_sleep %d" % sleep); a("s_branch %s" % lab)
        a.label(done)
        a("s_mov_b64 exec, -1")
    def flag_store(self, ws_off, idx_sreg):
        a = self.a
        a("s_lshl_b32 s50, s4, 7"); a("s_lshl_b32 s51, s%d, 2" % idx_sreg); a("s_add_u32 s50, s50, s51"); a("s_add_u32 s50, s50, %d" % ws_off)
        a("v_mov_b32 v12, s50"); a("v_mov_b32 v13, s%d" % S_NONCE); a("s_mov_b64 exec, 1")
        a("buffer_store_dword v13, v12, s[%d:%d], 0 offen sc1" % (S_WS, S_WS + 3))
        a("s_mov_b64 exec, -1")
    def hexit(self, k):
        if self.hstop == k:
            a = self.a
            if k < 3: self.lds_inc(5)
            a("s_waitcnt vmcnt(0) lgkmcnt(0)"); self.stamp_flush(); a("s_endpgm")
    def zero_counters(self):
        a = self.a
        a("v_lshlrev_b32 v12, 2, v1"); a("v_add_u32 v12, %d, v12" % L_CNT); a("ds_write_b32 v12, v%d" % V_ZERO)

    def text(self, lds=L_TOTAL):
        hdr = "; @launch grid=(256,1,1) block=(512,1,1) lds=%d\n" % lds
        hdr += '.amdgcn_target "amdgcn-amd-amdhsa--gfx950"\n' + kernel_header(NAME)
        return hdr + self.a.text() + kernel_footer(NAME, 256)

    def build(self):
        a = self.a
        self.prologue()
        a("s_cmp_ge_u32 s3, 4"); a("s_cbranch_scc1 L_hw")
        srd(a, S_T, P_GW, 896)
        a("s_and_b32 s48, s3, 1"); a("s_lshl_b32 s48, s48, 5"); a("v_and_b32 v12, 31, v1"); a("v_add_u32 v12, s48, v12")
        a("v_lshlrev_b32 v10, 7, v12"); a("v_add_u32 v10, 112, v10"); a("v_lshlrev_b32 v12, 1, v12")
        a("s_cmp_ge_u32 s3, 2"); a("s_cselect_b32 s60, -1, 0"); a("s_mov_b32 s61, 0")
        for c in range(7): a("buffer_load_ushort v%d, v12, s[%d:%d], 0 offen offset:%d" % (V_GATE + c, S_T, S_T + 3, 128 * c))
        for c in range(3):
            for x in self.dma_group(c, 4): a(x)
        self.rest_setup(); self.nonce_store()
        a("s_lshr_b32 s48, s3, 1"); a("s_lshl_b32 s48, s48, 5")
        a("v_and_b32 v13, 31, v1"); a("v_add_u32 v13, s48, v13"); a("v_lshrrev_b32 v14, 5, v1")
        self.xfrag_addrs(16)
        self.tr_base(20, 128)
        a("s_and_b32 s48, s3, 1"); a("s_mul_i32 s48, s48, 56"); a("s_add_u32 s48, s48, %d" % L_RING)
        a("v_add_u32 v20, s48, v20"); a("v_add_u32 v21, %d, v20" % (2 * SLOT))
        self.front_q()
        self.q_epilogue()
        a("s_waitcnt lgkmcnt(0)"); self.stamp(6); self.stampc(33)
        a("s_barrier")
        self.gstamp(1); self.stamp(7)
        self.attention_wave()
        a.label("L_hw")
        a("s_cmp_eq_u32 s5, 7"); a("s_cbranch_scc1 L_hw7")
        self.params_load()
        for c in range(3):
            for x in self.dma_group(c, 4, masked=False): a(x)
        srd(a, S_WS, P_WS, WS_SIZE_DBG if self.debug else WS_END); srd(a, S_DBG, P_DBG, 256)
        a("v_and_b32 v12, 31, v1"); a("v_bfe_u32 v13, v12, 2, 1"); a("v_lshlrev_b32 v13, 4, v13")
        a("v_lshrrev_b32 v14, 3, v12"); a("v_lshl_add_u32 v13, v14, 2, v13"); a("v_and_b32 v14, 3, v12"); a("v_add_u32 v13, v13, v14")
        a("s_sub_u32 s48, s3, 4"); a("s_lshr_b32 s48, s48, 1"); a("s_lshl_b32 s48, s48, 5")
        a("v_add_u32 v13, s48, v13"); a("v_lshrrev_b32 v14, 5, v1")
        self.xfrag_addrs(16)
        a("s_and_b32 s48, s3, 1"); a("s_lshl_b32 s48, s48, 5")
        a("v_and_b32 v13, 31, v1"); a("v_add_u32 v13, s48, v13"); a("v_lshrrev_b32 v14, 5, v1")
        self.xfrag_addrs(20, add_const=L_RING + 8192)
        for s in range(4): a("v_add_u32 v%d, %d, v%d" % (24 + s, 2 * SLOT, 20 + s))
        self.front_h()
        self.h_epilogue_pass1()
        a("s_waitcnt lgkmcnt(0)"); self.stamp(6)
        a("s_barrier")
        self.stamp(7)
        self.helper_wave()
        a.label("L_hw7")
        for c in range(3):
            for x in self.dma_group(c, 2, masked=False): a(x)
        srd(a, S_WS, P_WS, WS_SIZE_DBG if self.debug else WS_END); srd(a, S_DBG, P_DBG, 256)
        a("s_sub_u32 s48, s3, 4"); a("s_lshr_b32 s48, s48, 1"); a("s_lshl_b32 s48, s48, 5")
        a("v_and_b32 v13, 31, v1"); a("v_add_u32 v13, s48, v13"); a("v_lshrrev_b32 v14, 5, v1")
        self.xfrag_addrs(16)
        self.tr_base(20, 56)
        a("s_and_b32 s48, s3, 1"); a("s_lshl_b32 s48, s48, 12"); a("s_add_u32 s48, s48, %d" % (L_RING + 8192))
        a("v_add_u32 v20, s48, v20"); a("v_add_u32 v21, %d, v20" % (2 * SLOT))
        a("s_bitcmp1_b32 s3, 0"); a("s_cbranch_scc1 L_hw7v")
        self.front_kv(False); self.k_epilogue()
        a("s_branch L_hw7d")
        a.label("L_hw7v")
        self.front_kv(True); self.v_epilogue()
        a.label("L_hw7d")
        a("s_waitcnt vmcnt(0)")
        a("s_waitcnt lgkmcnt(0)"); self.stamp(6)
        a("s_barrier")
        self.stamp(7)
        a("s_cmp_eq_u32 s3, 4"); a("s_cbranch_scc0 L_bf2h")
        a("v_mov_b32 v12, %d" % L_KM); a("ds_read_b64 v[14:15], v12"); a("s_waitcnt lgkmcnt(0)")
        a("v_max_f32 v14, v14, v15"); a("v_or_b32 v14, 1, v14")
        a("s_lshl_b32 s48, s4, 2"); a("v_mov_b32 v12, s48"); a("s_mov_b64 exec, 1")
        a("buffer_store_dword v14, v12, s[%d:%d], 0 offen offset:128 sc1" % (S_DBG, S_DBG + 3))
        a("s_mov_b64 exec, -1")
        self.zero_counters()
        self.lds_inc(5); self.lds_inc(5); self.lds_inc(5); self.lds_inc(5)
        a("s_waitcnt lgkmcnt(0)"); self.stamp(8)
        a.label("L_bf2h")
        a("s_barrier")
        a("s_and_b32 s48, s4, 3"); a("s_lshl_b32 s48, s48, 2"); a("s_add_u32 s48, s48, s3"); a("s_sub_u32 s48, s48, 4")
        a("s_mul_i32 s48, s48, %d" % (196 * 128))
        a("v_lshlrev_b32 v12, 7, v1")
        for n, p in enumerate((P_CRE, P_CIM, P_WO)):
            srd(a, S_T, p, 448 * 896)
            for i in range(4):
                if i == 3: a("s_mov_b64 exec, 0xf")
                a("s_add_u32 s49, s48, %d" % (i * 8192))
                a("buffer_load_dword v%d, v12, s[%d:%d], s49 offen" % (100 + n * 4 + i, S_T, S_T + 3))
            a("s_mov_b64 exec, -1")
        self.stamp_flush()
        a.label("L_exit")
        a("s_endpgm")

    def attention_wave(self):
        a = self.a
        R = attn.AttnRegs(16)
        hi = "s[%d:%d]" % (S_HI, S_HI + 1)
        for s in range(4):
            a("s_xor_b32 s48, s3, %d" % ((s + 1) & 3)); a("s_lshl_b32 s48, s48, 11"); a("s_add_u32 s48, s48, %d" % L_QF)
            a("v_add_u32 v12, s48, v2")
            a("ds_read_b128 v[%d:%d], v12" % (R.Q + s*8, R.Q + s*8 + 3))
            a("ds_read_b128 v[%d:%d], v12 offset:1024" % (R.Q + s*8 + 4, R.Q + s*8 + 7))
        a("s_lshr_b32 s48, s3, 1"); a("s_lshl_b32 s48, s48, 7"); a("s_add_u32 s48, s48, %d" % L_G)
        a("v_and_b32 v12, 31, v1"); a("v_lshlrev_b32 v12, 2, v12"); a("v_add_u32 v12, s48, v12")
        a("ds_read_b32 v10, v12")
        for r in range(64): a("v_mov_b32 v%d, 0" % (R.O + r))
        a("v_lshlrev_b32 v12, 2, v1"); a("v_add_u32 v12, 128, v12"); a("v_mov_b32 v13, 124")
        a("v_cndmask_b32 v11, v12, v13, %s" % hi)
        a("s_waitcnt lgkmcnt(0)")
        a("s_barrier")
        self.stamp(8)
        lab = a.newlabel("L_pkv"); done = a.newlabel("L_pkvd")
        a("s_mov_b32 s48, 0x100000")
        a("s_mov_b32 exec_lo, -1"); a("s_mov_b32 exec_hi, 1")
        a.label(lab)
        a("buffer_load_dword v13, v11, s[%d:%d], 0 offen sc1" % (S_DBG, S_DBG + 3))
        a("s_waitcnt vmcnt(0)")
        a("v_cmp_eq_u32 vcc, 0, v13")
        a("s_sub_u32 s48, s48, 1"); a("s_cbranch_scc1 %s" % done)
        a("s_nop 2"); a("s_cbranch_vccz %s" % done)
        a("s_sleep 1"); a("s_branch %s" % lab)
        a.label(done)
        a("s_mov_b64 exec, -1")
        a("s_lshl_b32 s60, s3, 16"); a("s_add_u32 s60, s60, %d" % WS_KV)
        def patch():
            a("v_readlane_b32 s%d, v13, 32" % S_NONCE)
            for sh in (1, 2, 4, 8):
                a("s_nop 1"); a("v_max_f32_dpp v13, v13, v13 row_shr:%d row_mask:0xf bank_mask:0xf" % sh)
            a("s_nop 1")
            a("v_readlane_b32 s48, v13, 15"); a("v_readlane_b32 s49, v13, 31"); a("s_nop 3")
            a("s_max_u32 s48, s48, s49"); a("v_mov_b32 v13, s48"); a("v_sqrt_f32 v13, v13")
            a("s_mov_b32 s48, 0x%x" % f2u(-(1.0 + 2.0 ** -6))); a("s_nop 0")
            a("v_mul_f32 v13, s48, v13")
            for s in range(4):
                q = R.Q + s*8 + 6
                a("v_lshlrev_b32 v12, 16, v%d" % q); a("v_mul_f32 v12, v12, v13")
                a("v_cvt_pk_bf16_f32 v12, v12, v%d" % V_ZERO)
                a("v_cndmask_b32 v%d, v%d, v12, %s" % (q, q, hi))
        self.stamp(9)
        a("s_setprio 1")
        self.gstamp(2); self.stamp(10); self.stampc(30)
        a("v_mov_b32 v8, %d" % (L_CNT + 28)); a("v_mov_b32 v9, 1")
        attn.attn_loop(a, R, 2, S_WS, 60, zero_o=False, pre=patch, progress="ds_add_u32 v8, v9")
        a("s_nop 7"); a("s_nop 5")
        self.lds_inc(6)
        self.stampc(31); self.gstamp(3); self.stamp(11)
        self.lds_wait(5, 4)
        for s in range(3):
            a("s_xor_b32 s48, s3, %d" % (s + 1)); a("s_mul_i32 s48, s48, 12288"); a("s_add_u32 s48, s48, %d" % (L_RED + s * 4096))
            a("v_add_u32 v12, s48, v2")
            for k in range(4):
                a("ds_write_b128 v12, v[%d:%d] offset:%d" % (R.O + s*16 + 4*k, R.O + s*16 + 4*k + 3, k * 1024))
        a("s_waitcnt lgkmcnt(0)")
        self.lds_inc(0)
        self.lds_wait(0, 4)
        a("s_mul_i32 s48, s3, 12288"); a("s_add_u32 s48, s48, %d" % L_RED)
        a("v_add_u32 v12, s48, v2")
        T = R.KV
        for s in range(3):
            for k in range(4):
                a("ds_read_b128 v[%d:%d], v12 offset:%d" % (T + s*16 + 4*k, T + s*16 + 4*k + 3, s * 4096 + k * 1024))
        O = R.O + 48
        for s in range(3):
            a("s_waitcnt lgkmcnt(%d)" % (8 - 4 * s))
            for r in range(0, 16, 2):
                a("v_pk_add_f32 v[%d:%d], v[%d:%d], v[%d:%d]" % (O + r, O + r + 1, O + r, O + r + 1, T + s*16 + r, T + s*16 + r + 1))
        self.lds_inc(4)
        self.stamp(12)
        a("v_mov_b32 v12, v%d" % (O + 12)); a("v_mov_b32 v13, v%d" % (O + 12)); a("s_nop 1")
        a("v_permlane32_swap_b32 v12, v13"); a("s_nop 1")
        a("v_rcp_f32 v13, v13"); a("s_nop 0")
        a("v_mul_f32 v12, v13, v10"); a("v_mul_f32 v13, v13, v10")
        for r in range(0, 16, 2): a("v_pk_mul_f32 v[%d:%d], v[12:13], v[%d:%d]" % (O + r, O + r + 1, O + r, O + r + 1))
        P = R.P
        for i in range(8): a("v_cvt_pk_bf16_f32 v%d, v%d, v%d" % (P + i, O + 2*i, O + 2*i + 1))
        a("v_cndmask_b32 v%d, v%d, v%d, %s" % (P + 6, P + 6, V_ZERO, hi)); a("v_cndmask_b32 v%d, v%d, v%d, %s" % (P + 7, P + 7, V_ZERO, hi))
        a("s_lshl_b32 s48, s4, 1"); a("s_lshr_b32 s49, s3, 1"); a("s_add_u32 s48, s48, s49"); a("s_lshl_b32 s48, s48, 4")
        a("s_lshl_b32 s49, s5, 1"); a("s_add_u32 s48, s48, s49"); a("s_and_b32 s49, s3, 1"); a("s_add_u32 s48, s48, s49")
        a("s_lshl_b32 s48, s48, 11"); a("s_add_u32 s48, s48, %d" % WS_O)
        a("buffer_store_dwordx4 v[%d:%d], v2, s[%d:%d], s48 offen sc1" % (P, P + 3, S_WS, S_WS + 3))
        a("buffer_store_dwordx4 v[%d:%d], v2, s[%d:%d], s48 offen offset:1024 sc1" % (P + 4, P + 7, S_WS, S_WS + 3))
        a("s_waitcnt vmcnt(0)")
        self.stamp(13)
        a("s_lshl_b32 s52, s5, 2"); a("s_add_u32 s52, s52, s3")
        self.flag_store(WS_OF, 52)
        self.stamp_flush()
        a("s_endpgm")

    def helper_wave(self):
        a = self.a
        LR, LI, CR, CI, L16R, L16I, MUR, MUI, M2R, M2I, L32R, L32I = range(116, 128)
        SEGV, CACC, GR, DC, XR = 64, 128, 192, 208, 224
        hi = "s[%d:%d]" % (S_HI, S_HI + 1)
        a("s_sub_u32 s61, s3, 4"); a("s_lshr_b32 s62, s61, 1"); a("s_and_b32 s63, s61, 1")
        a("s_lshl_b32 s48, s63, 8"); a("s_add_u32 s48, s48, %d" % L_SEG)
        a("v_and_b32 v13, 31, v1"); a("v_lshlrev_b32 v13, 3, v13"); a("v_add_u32 v13, s48, v13")
        for sg in range(4): a("ds_read_b64 v[%d:%d], v13 offset:%d" % (SEGV + 2*sg, SEGV + 2*sg + 1, sg * 512))
        a("s_lshl_b32 s48, s62, 7"); a("s_add_u32 s48, s48, %d" % L_G)
        a("v_lshrrev_b32 v14, 5, v1"); a("v_lshlrev_b32 v13, 4, v14"); a("v_add_u32 v13, s48, v13")
        for aa in range(4): a("ds_read_b128 v[%d:%d], v13 offset:%d" % (GR + 4*aa, GR + 4*aa + 3, aa * 32))
        a("v_and_b32 v12, 31, v1"); a("v_lshrrev_b32 v13, 3, v12")
        a("s_lshl_b32 s48, s63, 2"); a("v_add_u32 v13, s48, v13")
        a("v_lshlrev_b32 v15, 1, v14"); a("v_xor_b32 v13, v13, v15")
        a("v_and_b32 v12, 7, v1"); a("v_lshlrev_b32 v12, 1, v12"); a("v_lshl_add_u32 v12, v14, 9, v12")
        a("s_lshl_b32 s48, s62, 12"); a("s_lshl_b32 s49, s5, 13"); a("s_add_u32 s48, s48, s49"); a("v_add_u32 v12, s48, v12")
        for n, kap in enumerate((0, 1, 4, 5)):
            a("v_xor_b32 v15, %d, v13" % kap); a("v_lshl_add_u32 v%d, v15, 4, v12" % (76 + n))
        for r in range(16):
            aa, b = r // 4, r % 4
            n = {0: 0, 1: 1, 4: 2, 5: 3}[4 * (aa & 1) | (b >> 1)]
            a("ds_read_u16 v%d, v%d offset:%d" % (XR + r, 76 + n, (8 * aa + b) * 128))
        lz = a.newlabel("L_nz")
        a("s_cmp_eq_u32 s3, 4"); a("s_cbranch_scc0 %s" % lz)
        self.zero_counters()
        a.label(lz)
        a("s_waitcnt lgkmcnt(0)")
        a("s_barrier")
        a("s_setprio 3")
        self.stamp(8)
        self.hexit(0)
        def cmad(dr, di, ar, ai, mr, mi, er, ei):
            a("v_fma_f32 v%d, v%d, v%d, v%d" % (dr, ar, mr, er)); a("v_fma_f32 v%d, v%d, v%d, v%d" % (di, ai, mr, ei))
            a("v_fma_f32 v%d, -v%d, v%d, v%d" % (dr, ai, mi, dr)); a("v_fma_f32 v%d, v%d, v%d, v%d" % (di, ar, mi, di))
        e0, e1, e2, e3 = SEGV, SEGV + 2, SEGV + 4, SEGV + 6
        cmad(72, 73, e0, e0 + 1, L16R, L16I, e1, e1 + 1)
        cmad(74, 75, 72, 73, L16R, L16I, e2, e2 + 1)
        cmad(80, 81, 74, 75, L16R, L16I, e3, e3 + 1)
        self.poll_nonce()
        self.stamp(9)
        a("v_mov_b32 v82, s%d" % S_NONCE); a("v_mov_b32 v83, s%d" % S_NONCE)
        a("s_lshl_b32 s54, s5, 10"); a("s_lshl_b32 s49, s63, 9"); a("s_add_u32 s54, s54, s49"); a("s_add_u32 s54, s54, %d" % WS_E)
        lne = a.newlabel("L_noE"); lz0 = a.newlabel("L_z0")
        a("s_mov_b32 exec_hi, 0")
        a("s_cmp_eq_u32 s62, 0"); a("s_cbranch_scc0 %s" % lz0)
        a("s_add_u32 s48, s4, 1"); a("s_mul_i32 s48, s48, 7168"); a("s_add_u32 s48, s48, s54")
        a("buffer_store_dwordx4 v[80:83], v2, s[%d:%d], s48 offen sc1" % (S_WS, S_WS + 3))
        a("s_branch %s" % lne)
        a.label(lz0)
        a("s_cmp_eq_u32 s4, 0"); a("s_cbranch_scc0 %s" % lne)
        a("v_mov_b32 v80, 0"); a("v_mov_b32 v81, 0")
        a("buffer_store_dwordx4 v[80:83], v2, s[%d:%d], s54 offen sc1" % (S_WS, S_WS + 3))
        a.label(lne)
        a("s_mov_b64 exec, -1")
        self.hexit(1)
        for j in range(3):
            a("s_add_u32 s52, s61, %d" % (4 * j)); a("s_cmp_ge_u32 s52, 7")
            a("s_cselect_b32 s%d, s%d, s%d" % (S_T, P_CIM, P_CRE)); a("s_cselect_b32 s%d, s%d, s%d" % (S_T + 1, P_CIM + 1, P_CRE + 1))
            a("s_cselect_b32 s53, 7, 0")
            a("s_mov_b32 s%d, 0x%x" % (S_T + 2, 448 * 896)); a("s_mov_b32 s%d, 0x20000" % (S_T + 3))
            a("s_sub_u32 s53, s52, s53"); a("s_lshl_b32 s53, s53, 7"); a("s_mul_i32 s48, s5, %d" % (64 * 896)); a("s_add_u32 s53, s53, s48")
            a("s_lshl_b32 s52, s52, 13")
            for g in range(2):
                a("s_add_u32 m0, s52, %d" % (g * 4096))
                if g: a("s_add_u32 s53, s53, %d" % (4 * 7168))
                else: a("s_nop 0")
                for i in range(4): a("buffer_load_dwordx4 v%d, s[%d:%d], s53 offen offset:%d lds" % (V_D + i, S_T, S_T + 3, 1024 * i))
                a("s_sleep %d" % self.spread)
        srd(a, S_T2, P_CIM, 448 * 896)
        a("v_and_b32 v12, 31, v1"); a("v_mul_u32_u24 v12, 896, v12"); a("v_lshrrev_b32 v13, 5, v1"); a("v_lshl_add_u32 v12, v13, 4, v12")
        a("s_lshl_b32 s48, s61, 6"); a("s_add_u32 s48, s48, %d" % (20 * 32)); a("s_mul_i32 s49, s5, %d" % (64 * 896)); a("s_add_u32 s48, s48, s49")
        a("s_mul_i32 s49, s63, %d" % (32 * 896)); a("s_add_u32 s50, s48, s49")
        a("s_xor_b32 s49, s63, 1"); a("s_mul_i32 s49, s49, %d" % (32 * 896)); a("s_add_u32 s51, s48, s49")
        for kk in range(2):
            a("buffer_load_dwordx4 v[%d:%d], v12, s[%d:%d], s50 offen offset:%d" % (DC + kk*8, DC + kk*8 + 3, S_T2, S_T2 + 3, kk * 32))
            a("buffer_load_dwordx4 v[%d:%d], v12, s[%d:%d], s51 offen offset:%d" % (DC + kk*8 + 4, DC + kk*8 + 7, S_T2, S_T2 + 3, kk * 32))
        self.hexit(2)
        lr1 = a.newlabel("L_rt1"); lrd = a.newlabel("L_rtd")
        a("s_cmp_eq_u32 s62, 0"); a("s_cbranch_scc0 %s" % lr1)
        a("v_cndmask_b32 v76, v%d, v%d, %s" % (V_ZERO, e0, hi)); a("v_cndmask_b32 v77, v%d, v%d, %s" % (V_ZERO, e0 + 1, hi))
        a("v_mov_b32 v12, 1.0")
        a("v_cndmask_b32 v78, v12, v%d, %s" % (L16R, hi)); a("v_cndmask_b32 v79, v%d, v%d, %s" % (V_ZERO, L16I, hi))
        a("s_branch %s" % lrd)
        a.label(lr1)
        a("v_cndmask_b32 v76, v72, v74, %s" % hi); a("v_cndmask_b32 v77, v73, v75, %s" % hi)
        a("v_mul_f32 v12, v%d, v%d" % (L32R, L16R)); a("v_fma_f32 v12, -v%d, v%d, v12" % (L32I, L16I))
        a("v_mul_f32 v13, v%d, v%d" % (L32R, L16I)); a("v_fma_f32 v13, v%d, v%d, v13" % (L32I, L16R))
        a("v_cndmask_b32 v78, v%d, v12, %s" % (L32R, hi)); a("v_cndmask_b32 v79, v%d, v13, %s" % (L32I, hi))
        a.label(lrd)
        a("v_and_b32 v12, 31, v1"); a("v_lshrrev_b32 v13, 3, v12"); a("v_and_b32 v14, 7, v1"); a("v_lshlrev_b32 v14, 1, v14")
        a("v_lshrrev_b32 v15, 5, v1"); a("v_lshl_add_u32 v14, v15, 11, v14")
        a("s_lshl_b32 s55, s61, 12"); a("s_add_u32 s55, s55, %d" % L_RED); a("v_add_u32 v14, s55, v14")
        for jx in range(4):
            a("v_xor_b32 v15, %d, v13" % jx); a("v_lshl_add_u32 v%d, v15, 4, v14" % (86 + jx))
        a("v_and_b32 v13, 31, v1"); a("v_lshrrev_b32 v14, 5, v1")
        self.xfrag_addrs(90, add_sreg=55)
        a("v_mov_b32 v80, 0"); a("v_mov_b32 v81, 0")
        lnoh = a.newlabel("L_noH")
        a("s_cmp_eq_u32 s4, 0"); a("s_cbranch_scc1 %s" % lnoh)
        a("s_add_u32 s56, s4, 1"); a("s_lshr_b32 s56, s56, 1")
        a("v_and_b32 v12, 31, v1"); a("v_lshlrev_b32 v12, 4, v12"); a("v_mov_b32 v13, 7168"); a("v_cndmask_b32 v13, v13, v%d, %s" % (V_ZERO, hi)); a("v_add_u32 v82, v12, v13")
        a("s_sub_u32 s57, s4, 1"); a("s_mul_i32 s57, s57, 7168"); a("s_add_u32 s57, s57, s54")
        a("s_mov_b32 s58, 0x40000")
        EB = 128
        lp = a.newlabel("L_pe"); lld = a.newlabel("L_pel"); lck = a.newlabel("L_pec"); lok = a.newlabel("L_peo")
        self.lds_wait(7, 256, sleep=4)
        lq = a.newlabel("L_pq"); lqd = a.newlabel("L_pqd")
        a.label(lq)
        a("buffer_load_dwordx4 v[%d:%d], v82, s[%d:%d], s57 offen sc1" % (EB, EB + 3, S_WS, S_WS + 3))
        a("s_waitcnt vmcnt(0)")
        a("v_cmp_ne_u32 vcc, s%d, v%d" % (S_NONCE, EB + 2))
        a("s_sub_u32 s58, s58, 1"); a("s_cbranch_scc1 %s" % lqd)
        a("s_nop 2"); a("s_cbranch_vccz %s" % lqd)
        a("s_sleep 6"); a("s_branch %s" % lq)
        a.label(lqd)
        a.label(lp)
        a("s_mov_b32 s48, s57")
        for i in range(16):
            if i: a("s_cmp_le_u32 s56, %d" % i); a("s_cbranch_scc1 %s" % lld) if i else None
            a("buffer_load_dwordx4 v[%d:%d], v82, s[%d:%d], s48 offen sc1" % (EB + 4*i, EB + 4*i + 3, S_WS, S_WS + 3))
            a("s_sub_u32 s48, s48, 14336")
        a.label(lld)
        a("s_waitcnt vmcnt(0)")
        a("v_mov_b32 v83, v%d" % (EB + 2)); a("v_mov_b32 v84, v%d" % (EB + 2))
        for i in range(1, 16):
            a("s_cmp_le_u32 s56, %d" % i); a("s_cbranch_scc1 %s" % lck)
            a("v_min_u32 v83, v83, v%d" % (EB + 4*i + 2)); a("v_max_u32 v84, v84, v%d" % (EB + 4*i + 2))
        a.label(lck)
        a("v_xor_b32 v83, s%d, v83" % S_NONCE); a("v_xor_b32 v84, s%d, v84" % S_NONCE); a("v_or_b32 v83, v83, v84")
        a("v_cmp_ne_u32 vcc, 0, v83")
        a("s_sub_u32 s58, s58, 1"); a("s_cbranch_scc1 %s" % lok)
        a("s_nop 2"); a("s_cbranch_vccz %s" % lok)
        a("s_sleep 6"); a("s_branch %s" % lp)
        a.label(lok)
        self.stamp(10)
        for i in range(15, -1, -1):
            ls = a.newlabel("L_hs")
            if i: a("s_cmp_le_u32 s56, %d" % i); a("s_cbranch_scc1 %s" % ls) if i else None
            e = EB + 4 * i
            a("v_pk_fma_f32 v[84:85], v[%d:%d], v[80:81], v[%d:%d] op_sel:[0,0,0] op_sel_hi:[0,1,1]" % (M2R, M2I, e, e + 1))
            a("v_pk_fma_f32 v[80:81], v[%d:%d], v[80:81], v[84:85] op_sel:[1,1,0] op_sel_hi:[1,0,1] neg_lo:[1,0,0]" % (M2R, M2I))
            if i: a.label(ls)
        a("v_mul_f32 v84, v%d, v80" % MUR); a("v_fma_f32 v84, -v%d, v81, v84" % MUI)
        a("v_mul_f32 v85, v%d, v81" % MUR); a("v_fma_f32 v85, v%d, v80, v85" % MUI)
        a("v_cndmask_b32 v80, v80, v84, %s" % hi); a("v_cndmask_b32 v81, v81, v85, %s" % hi)
        a("v_mov_b32 v84, v80"); a("v_mov_b32 v85, v81"); a("s_nop 1")
        a("v_permlane32_swap_b32 v80, v84"); a("v_permlane32_swap_b32 v81, v85"); a("s_nop 1")
        a("v_add_f32 v80, v80, v84"); a("v_add_f32 v81, v81, v85")
        a.label(lnoh)
        cmad(12, 13, 80, 81, 78, 79, 76, 77)
        RE, IM = 32, 48
        for r in range(16):
            self.scan_step(12, RE + r, IM + r, 12)
            a("v_cvt_pk_bf16_f32 v%d, v12, -v13" % (RE + r))
            sw = r >> 1
            a("ds_write_b16 v%d, v%d offset:%d" % (86 + (sw & 3), RE + r, r * 128 + ((0 ^ (sw >> 2)) * 64)))
            a("ds_write_b16_d16_hi v%d, v%d offset:%d" % (86 + (sw & 3), RE + r, r * 128 + ((1 ^ (sw >> 2)) * 64)))
        a("s_lshl_b32 s48, s4, 1"); a("s_add_u32 s48, s48, s62"); a("s_mul_i32 s48, s48, 56")
        a("s_lshl_b32 s49, s5, 2"); a("s_add_u32 s48, s48, s49"); a("s_lshl_b32 s49, s63, 1"); a("s_add_u32 s48, s48, s49")
        a("s_lshl_b32 s48, s48, 10"); a("s_add_u32 s48, s48, %d" % WS_H); a("s_add_u32 s49, s48, %d" % (28 * 1024))
        a("s_waitcnt lgkmcnt(0)")
        for s in range(4): a("ds_read_b128 v[%d:%d], v%d" % (64 + 4*s, 64 + 4*s + 3, 90 + s))
        a("s_waitcnt lgkmcnt(0)")
        a("buffer_store_dwordx4 v[64:67], v2, s[%d:%d], s48 offen sc1" % (S_WS, S_WS + 3))
        a("buffer_store_dwordx4 v[68:71], v2, s[%d:%d], s48 offen offset:1024 sc1" % (S_WS, S_WS + 3))
        a("buffer_store_dwordx4 v[72:75], v2, s[%d:%d], s49 offen sc1" % (S_WS, S_WS + 3))
        a("buffer_store_dwordx4 v[76:79], v2, s[%d:%d], s49 offen offset:1024 sc1" % (S_WS, S_WS + 3))
        self.lds_inc(5)
        self.stamp(11)
        a("s_waitcnt vmcnt(0)")
        self.stamp(12); self.gstamp(4)
        a("s_lshl_b32 s52, s5, 2"); a("s_add_u32 s52, s52, s61")
        self.flag_store(WS_HF, 52)
        self.hexit(3)
        self.lds_wait(7, 1024, sleep=4)
        self.poll_flags(WS_HF, 0x0fffffff, sleep=8)
        self.stamp(13)
        self.hexit(4)
        HF = 16
        for rtp in range(2):
            a("s_xor_b32 s48, s62, %d" % rtp); a("s_lshl_b32 s49, s4, 1"); a("s_add_u32 s48, s48, s49"); a("s_mul_i32 s48, s48, %d" % (56 * 1024))
            a("s_add_u32 s48, s48, %d" % WS_H)
            a("s_lshl_b32 s49, s61, 12"); a("s_add_u32 s50, s48, s49")
            for j in range(3):
                for s in range(4):
                    r = HF + ((j * 4 + s) * 2 + rtp) * 4
                    a("buffer_load_dwordx4 v[%d:%d], v2, s[%d:%d], s50 offen offset:%d sc1" % (r, r + 3, S_WS, S_WS + 3, s * 1024))
                a("s_add_u32 s50, s50, %d" % (16 * 1024))
            a("s_lshl_b32 s49, s61, 11"); a("s_add_u32 s50, s48, s49"); a("s_add_u32 s50, s50, %d" % (48 * 1024))
            for kk in range(2):
                r = HF + ((12 + kk) * 2 + rtp) * 4
                a("buffer_load_dwordx4 v[%d:%d], v2, s[%d:%d], s50 offen offset:%d sc1" % (r, r + 3, S_WS, S_WS + 3, kk * 1024))
        self.hexit(5)
        self.lds_wait(6, 4, sleep=3)
        self.stamp(14)
        self.hexit(6)
        a("s_lshl_b32 s48, s61, 13"); a("s_lshl_b32 s49, s63, 12"); a("s_add_u32 s48, s48, s49")
        a("v_and_b32 v13, 31, v1"); a("v_lshrrev_b32 v14, 5, v1")
        self.xfrag_addrs(240, add_sreg=48)
        for s in range(4): a("v_xor_b32 v%d, 0x1000, v%d" % (244 + s, 240 + s))
        for r in range(16): a("v_lshlrev_b32 v%d, 16, v%d" % (XR + r, XR + r))
        for r in range(0, 16, 2): a("v_pk_mul_f32 v[%d:%d], v[8:9], v[%d:%d]" % (XR + r, XR + r + 1, XR + r, XR + r + 1))
        a("s_waitcnt vmcnt(0)")
        def breads(n, buf):
            j, s = n // 4, n % 4
            off = (j * 32768) if j < 2 else 0
            return ["ds_read_b128 v[%d:%d], v%d offset:%d" % (buf, buf + 3, 240 + s, off), "ds_read_b128 v[%d:%d], v%d offset:%d" % (buf + 4, buf + 7, 244 + s, off)]
        srd(a, S_T, P_WO, 448 * 896)
        a("v_lshrrev_b32 v12, 3, v1"); a("v_mul_u32_u24 v12, 896, v12"); a("v_and_b32 v13, 7, v1"); a("v_lshl_add_u32 v4, v13, 4, v12")
        for i in range(1, 4): a("v_add_u32 v%d, %d, v4" % (4 + i, 6144 * i))
        def wo_group(jj):
            o = ["s_add_u32 s52, s61, %d\ns_mul_i32 s53, s52, %d\ns_lshl_b32 s48, s5, 7\ns_add_u32 s53, s53, s48\ns_lshl_b32 s52, s52, 13" % (4 * jj, 64 * 896)]
            for g in range(2):
                o.append("s_add_u32 m0, s52, %d\n%s" % (g * 4096, ("s_add_u32 s53, s53, %d" % (4 * 7168)) if g else "s_nop 0"))
                for i in range(4): o.append("buffer_load_dwordx4 v%d, s[%d:%d], s53 offen offset:%d lds" % (V_D + i, S_T, S_T + 3, 1024 * i))
            return o
        bufs = [248, DC, DC + 8]
        for x in breads(0, bufs[0]): a(x)
        first = True
        for kk in range(2):
            for rtp in range(2):
                for cp in range(2):
                    acc = CACC + (2 * rtp + cp) * 16
                    h = HF + ((12 + kk) * 2 + rtp) * 4
                    c = vr(acc, 16) if kk else (vr(XR, 16) if (rtp == 0 and cp == 0) else "0")
                    a("%s %s, %s, %s, %s" % (MF, vr(acc, 16), vr(h, 4), vr(DC + kk * 8 + 4 * cp, 4), c))
        for n in range(12):
            j, s = n // 4, n % 4
            if n == 7:
                for q in range(8): a("v_add_u32 v%d, 0x10000, v%d" % (240 + q, 240 + q))
            nxt = breads(n + 1, bufs[(n + 1) % 3]) if n + 1 < 12 else []
            for x in nxt: a(x)
            a("s_waitcnt lgkmcnt(%d)" % len(nxt))
            b = bufs[n % 3]
            mm = []
            for rtp in range(2):
                for cp in range(2):
                    acc = CACC + (2 * rtp + cp) * 16
                    h = HF + ((j * 4 + s) * 2 + rtp) * 4
                    mm.append("%s %s, %s, %s, %s" % (MF, vr(acc, 16), vr(h, 4), vr(b + 4 * cp, 4), vr(acc, 16)))
            ex = []
            if n == 4: ex = wo_group(0)
            if n == 8: ex = wo_group(1)
            interleave(a, mm, ex)
        self.stamp(15)
        self.lds_wait(4, 4)
        self.stamp(16)
        a("s_nop 7")
        for u in range(1, 4):
            a("s_xor_b32 s48, s61, %d" % u); a("s_mul_i32 s48, s48, 12288"); a("s_add_u32 s48, s48, %d" % (L_RED + (u - 1) * 4096))
            a("v_add_u32 v12, s48, v2")
            for k in range(4):
                a("ds_write_b128 v12, v[%d:%d] offset:%d" % (CACC + u*16 + 4*k, CACC + u*16 + 4*k + 3, k * 1024))
        for r in range(16): a("v_sub_f32 v%d, 1.0, v%d" % (GR + r, GR + r))
        a("s_waitcnt lgkmcnt(0)")
        self.lds_inc(1)
        self.lds_wait(1, 4)
        a("s_mul_i32 s48, s61, 12288"); a("s_add_u32 s48, s48, %d" % L_RED)
        a("v_add_u32 v12, s48, v2")
        T = 16
        for s in range(3):
            for k in range(4):
                a("ds_read_b128 v[%d:%d], v12 offset:%d" % (T + s*16 + 4*k, T + s*16 + 4*k + 3, s * 4096 + k * 1024))
        for s in range(3):
            a("s_waitcnt lgkmcnt(%d)" % (8 - 4 * s))
            for r in range(0, 16, 2):
                a("v_pk_add_f32 v[%d:%d], v[%d:%d], v[%d:%d]" % (CACC + r, CACC + r + 1, CACC + r, CACC + r + 1, T + s*16 + r, T + s*16 + r + 1))
        for r in range(0, 16, 2):
            a("v_pk_add_f32 v[%d:%d], v[%d:%d], v[%d:%d]" % (CACC + r, CACC + r + 1, CACC + r, CACC + r + 1, CACC + r, CACC + r + 1))
            a("v_pk_mul_f32 v[%d:%d], v[%d:%d], v[%d:%d]" % (CACC + r, CACC + r + 1, GR + r, GR + r + 1, CACC + r, CACC + r + 1))
        a("s_waitcnt vmcnt(0)")
        self.lds_inc(2)
        self.lds_wait(2, 4)
        def wreg(ks, cp):
            if cp == 0: return 16 + 4 * ks
            return 80 + 4 * ks if ks < 12 else 208 + 4 * (ks - 12)
        self.tr_base(14, 128, rows_per_hf=4)
        a("s_mul_i32 s48, s63, %d" % (8 * 28 * 128 + 64)); a("v_add_u32 v240, s48, v14"); a("v_xor_b32 v241, 64, v240")
        for ks in range(16):
            hh, f = ks // 2, ks % 2
            off = (28 * hh + 16 * f) * 128
            for cp in range(2):
                r = wreg(ks, cp)
                a("ds_read_b64_tr_b16 v[%d:%d], v%d offset:%d" % (r, r + 1, 240 + cp, off))
                a("ds_read_b64_tr_b16 v[%d:%d], v%d offset:%d" % (r + 2, r + 3, 240 + cp, off + 8 * 128))
            if ks % 2 == 1: a("s_waitcnt lgkmcnt(4)")
        self.stamp(17)
        self.poll_flags(WS_OF, 0xffffffff, sleep=1)
        self.stamp(18)
        def oreg(ks): return 160 + 4 * ks if ks < 12 else 224 + 4 * (ks - 12)
        a("s_lshl_b32 s48, s4, 1"); a("s_add_u32 s48, s48, s62"); a("s_lshl_b32 s48, s48, 4"); a("s_lshl_b32 s49, s63, 3"); a("s_add_u32 s48, s48, s49")
        a("s_lshl_b32 s48, s48, 11"); a("s_add_u32 s48, s48, %d" % WS_O)
        for ks in range(16):
            r = oreg(ks)
            a("buffer_load_dwordx4 v[%d:%d], v2, s[%d:%d], s48 offen offset:%d sc1" % (r, r + 3, S_WS, S_WS + 3, (ks % 4) * 1024))
            if ks % 4 == 3: a("s_add_u32 s48, s48, 4096")
        srd(a, S_T, P_OUT, 2048 * 448 * 4)
        a("v_lshrrev_b32 v12, 5, v1"); a("v_mul_u32_u24 v12, %d, v12" % (4 * 1792)); a("v_and_b32 v13, 31, v1"); a("v_lshl_add_u32 v11, v13, 2, v12")
        a("s_waitcnt lgkmcnt(0)")
        for ks in range(16):
            a("s_waitcnt vmcnt(%d)" % (15 - ks))
            a("%s %s, %s, %s, %s" % (MF, vr(CACC + 16, 16), vr(oreg(ks), 4), vr(wreg(ks, 1), 4), vr(CACC + 16, 16) if ks else "0"))
            a("%s %s, %s, %s, %s" % (MF, vr(CACC, 16), vr(oreg(ks), 4), vr(wreg(ks, 0), 4), vr(CACC, 16)))
        a("s_xor_b32 s48, s61, 1"); a("s_lshl_b32 s48, s48, 12"); a("s_add_u32 s48, s48, %d" % L_RED)
        a("v_add_u32 v12, s48, v2")
        a("s_nop 7"); a("s_nop 3")
        self.stamp(19)
        for k in range(4): a("ds_write_b128 v12, v[%d:%d] offset:%d" % (CACC + 16 + 4*k, CACC + 16 + 4*k + 3, k * 1024))
        a("s_waitcnt lgkmcnt(0)")
        self.lds_inc(3)
        a("s_lshl_b32 s52, s4, 6"); a("s_lshl_b32 s49, s62, 5"); a("s_add_u32 s52, s52, s49"); a("s_mul_i32 s52, s52, 1792")
        a("s_lshl_b32 s49, s5, 8"); a("s_add_u32 s52, s52, s49"); a("s_lshl_b32 s49, s63, 7"); a("s_add_u32 s52, s52, s49")
        self.lds_wait(3, 4)
        a("s_lshl_b32 s48, s61, 12"); a("s_add_u32 s48, s48, %d" % L_RED)
        a("v_add_u32 v12, s48, v2")
        for k in range(4): a("ds_read_b128 v[%d:%d], v12 offset:%d" % (16 + 4*k, 16 + 4*k + 3, k * 1024))
        for k in range(4):
            a("s_waitcnt lgkmcnt(%d)" % (3 - k))
            for r in range(4 * k, 4 * k + 4, 2):
                a("v_pk_add_f32 v[%d:%d], v[%d:%d], v[%d:%d]" % (CACC + r, CACC + r + 1, CACC + r, CACC + r + 1, 16 + r, 16 + r + 1))
            for r in range(4 * k, 4 * k + 4):
                aa, b = r // 4, r % 4
                if b == 0 and aa > 0: a("s_add_u32 s52, s52, %d" % (8 * 1792))
                off = b * 1792
                if off > 4095:
                    a("s_add_u32 s49, s52, %d" % off)
                    a("buffer_store_dword v%d, v11, s[%d:%d], s49 offen" % (CACC + r, S_T, S_T + 3))
                else:
                    a("buffer_store_dword v%d, v11, s[%d:%d], s52 offen offset:%d" % (CACC + r, S_T, S_T + 3, off))
        self.stamp(20)
        if self.gst:
            a("s_waitcnt vmcnt(0)"); self.gstamp(5)
        if self.stamps: a("s_waitcnt vmcnt(0)")
        self.stamp(21)
        self.stamp_flush()
        a("s_endpgm")

if __name__ == "__main__":
    k = K(debug=False, gst=("gst" in sys.argv))
    k.build()
    open("gated_mix__grouped_kv_mqa__ssm_conv_s5__prompt.s", "w").write(HEADER_COMMENT + k.text())
```

```python
import sys, math, struct
sys.path.insert(0, "gen")
from asmlib import *
import attn

NAME = "gated_mix__grouped_kv_mqa__ssm_conv_s5__prompt_kernel"

WS_KV = 0x0
WS_E  = 0x40000
WS_HF = 0x80000
WS_OF = 0x81000
WS_KF = 0x84000
WS_H  = 0x100000
WS_O  = 0x480000
WS_END = 0x680000
WS_DBG = 0x700000
WS_SIZE_DBG = 0x2000000

L_X = 0
L_RING = 57344
SLOT = 24576
L_MISC = 155648
L_G = L_MISC
L_SEG = L_MISC + 512
L_KM = L_MISC + 3072
L_NON = L_MISC + 3584
L_QF = L_RING
L_TOTAL = 163840
L_CNT = 98304
L_RED = 114688

S_RBK, S_HP, S_NONCE = 4, 5, 6
S_D, S_WS, S_DBG, S_T, S_T2 = 8, 24, 28, 32, 36
P_X, P_WQ, P_WK, P_WV, P_WO, P_LRE, P_LIM = 64, 66, 68, 70, 72, 76, 78
P_BRE, P_BIM, P_CRE, P_CIM, P_LDT, P_DSK, P_GW, P_OUT = 80, 82, 84, 86, 88, 90, 92, 94
P_DBG, P_WS = 96, 98
S_SO, S_STEP, S_M0, S_ISX, S_DM, S_HI = 40, 41, 42, 43, 44, 46
S_D2, S_SO2, S_STEP2, S_M02, S_CK, S_7S, S_7S2, S_C0 = 12, 16, 17, 18, 19, 20, 21, 22
V_D2 = 248

V_LANE, V_L16 = 1, 2
V_D = 4
V_DE, V_DO = 8, 9
V_GATE, V_ZERO = 240, 247

LOG2E = 1.4426950408889634
QSCALE = 28 ** -0.5 * LOG2E
def f2u(x): return struct.unpack("<I", struct.pack("<f", x))[0]
MF = "v_mfma_f32_32x32x16_bf16"
HEADER_COMMENT = "; Generated by gen/kern3.py: persistent single-kernel implementation\n"

def srd(a, s, p, nbytes):
    a("s_mov_b32 s%d, s%d" % (s, p)); a("s_mov_b32 s%d, s%d" % (s + 1, p + 1))
    a("s_mov_b32 s%d, 0x%x" % (s + 2, nbytes)); a("s_mov_b32 s%d, 0x20000" % (s + 3))

def interleave(a, mains, extras, per=None):
    n = len(mains)
    if n == 0:
        for x in extras: a(x)
        return
    per = per or (len(extras) + n - 1) // n
    k = 0
    for m in mains:
        a(m)
        for x in extras[k:k + per]: a(x)
        k += per
    for x in extras[k:]: a(x)

class K:
    def __init__(self, stop_after=None, debug=False, stamps=False, gst=False, fine=False, rot=False):
        self.fine = fine; self.gst = gst; self.a = Asm(); self.spread = 6; self.hstop = None; self.rot = rot; self.pdelay = 0; self.probe = False; self.tlbwarm = True; self.force_redo = False
        self.stop_after = stop_after; self.debug = debug; self.stamps = stamps

    def stamp(self, i):
        if not self.stamps: return
        a = self.a
        a("s_memrealtime s[100:101]"); a("s_waitcnt lgkmcnt(0)"); a("v_writelane_b32 v3, s100, %d" % i)
    def stampc(self, i):
        if not self.stamps: return
        a = self.a
        a("s_memtime s[100:101]"); a("s_waitcnt lgkmcnt(0)"); a("v_writelane_b32 v3, s100, %d" % i)
    def gstamp(self, i):
        if not self.gst: return
        a = self.a
        lab = a.newlabel("L_gs")
        a("s_and_b32 s100, s2, 31"); a("s_and_b32 s101, s3, 3"); a("s_or_b32 s100, s100, s101"); a("s_cmp_eq_u32 s100, 0")
        a("s_cbranch_scc0 %s" % lab)
        a("s_memrealtime s[100:101]"); a("s_waitcnt lgkmcnt(0)")
        a("v_mov_b32 v14, s100"); a("v_mov_b32 v15, %d" % (4 * i))
        a("s_mov_b64 s[100:101], exec"); a("s_mov_b64 exec, 1")
        a("buffer_atomic_umax v14, v15, s[%d:%d], 0 offen" % (S_DBG, S_DBG + 3))
        a("s_mov_b64 exec, s[100:101]")
        a.label(lab)
    def stamp_flush(self):
        if not self.stamps: return
        a = self.a
        a("s_lshl_b32 s58, s2, 3"); a("s_add_u32 s58, s58, s3"); a("s_lshl_b32 s58, s58, 8"); a("s_add_u32 s58, s58, %d" % (WS_DBG + 0x800000))
        a("v_lshlrev_b32 v14, 2, v1")
        a("buffer_store_dword v3, v14, s[%d:%d], s58 offen" % (S_WS, S_WS + 3))
        a("s_waitcnt vmcnt(0)")
    def dump(self, base, nregs, slot_bytes, idx_sreg, off):
        a = self.a
        a("s_mul_i32 s58, s%d, %d" % (idx_sreg, slot_bytes)); a("s_add_u32 s58, s58, %d" % (WS_DBG + off))
        a("v_lshlrev_b32 v12, 2, v1")
        for r in range(nregs):
            if r % 16 == 0 and r: a("s_add_u32 s58, s58, 4096")
            a("buffer_store_dword v%d, v12, s[%d:%d], s58 offen offset:%d" % (base + r, S_WS, S_WS + 3, (r % 16) * 256))

    def prologue(self):
        a = self.a
        a("s_cmp_ge_u32 s2, 256")
        a("s_cbranch_scc1 L_exit")
        a("s_load_dwordx16 s[64:79], s[0:1], 0")
        a("s_load_dwordx16 s[80:95], s[0:1], 64")
        a("s_load_dwordx4 s[96:99], s[0:1], 128")
        if self.gst: a("s_memrealtime s[62:63]")
        if self.stamps:
            a("v_mov_b32 v3, 0"); self.stamp(0); self.stampc(32)
        a("v_lshrrev_b32 v12, 6, v0")
        a("v_and_b32 v1, 63, v0")
        a("s_and_b32 s48, s2, 7")
        a("v_readfirstlane_b32 s3, v12")
        a("s_lshr_b32 s49, s2, 3"); a("s_and_b32 s5, s49, 7"); a("s_lshr_b32 s49, s49, 3"); a("s_lshl_b32 s4, s48, 2"); a("s_add_u32 s4, s4, s49")
        a("v_lshlrev_b32 v2, 4, v1")
        a("s_mov_b32 s%d, 0" % S_HI); a("s_mov_b32 s%d, -1" % (S_HI + 1))
        a("v_mov_b32 v%d, 0" % V_ZERO)
        a("s_lshl_b32 s50, s49, 1"); a("s_add_u32 s50, s50, s5"); a("s_cmp_ge_u32 s50, 7"); a("s_cselect_b32 s51, 7, 0"); a("s_sub_u32 s50, s50, s51")
        a("s_cmp_ge_u32 s50, 7"); a("s_cselect_b32 s51, 7, 0"); a("s_sub_u32 s%d, s50, s51" % S_C0)
        if not self.rot: a("s_mov_b32 s%d, 0" % S_C0)
        a("v_lshrrev_b32 v12, 3, v1"); a("v_and_b32 v13, 7, v1"); a("v_lshrrev_b32 v14, 4, v1")
        a("v_mul_u32_u24 v15, 896, v12")
        a("v_xor_b32 v14, v13, v14")
        a("v_lshl_add_u32 v%d, v14, 4, v15" % V_D)
        a("v_xor_b32 v14, 4, v14")
        a("v_lshl_add_u32 v%d, v14, 4, v15" % (V_D + 1))
        a("v_lshl_add_u32 v11, v13, 4, v15")
        a("v_add_u32 v%d, %d, v%d" % (V_D + 2, 2 * 6144, V_D)); a("v_add_u32 v%d, %d, v%d" % (V_D + 3, 3 * 6144, V_D + 1))
        a("v_add_u32 v%d, %d, v%d" % (V_D + 1, 6144, V_D + 1))
        a("s_cmp_ge_u32 s3, 4"); a("s_cbranch_scc1 L_hw")

    def a_setup(self):
        a = self.a
        for i in range(4): a("v_mov_b32 v%d, v%d" % (V_D2 + i, V_D + i))
        a("s_and_b32 s50, s3, 1"); a("s_lshr_b32 s51, s3, 1")
        a("s_cmp_eq_u32 s51, 1")
        a("s_cselect_b64 s[52:53], -1, 0")
        a("s_cselect_b32 s%d, 0x7f7f7f7f, -1" % S_DM); a("s_cselect_b32 s%d, 0x7f7f7f7f, -1" % (S_DM + 1))
        for i in range(4):
            a("v_add_u32 v12, %d, v11" % (6144 * i)) if i else a("v_mov_b32 v12, v11")
            a("v_cndmask_b32 v%d, v%d, v12, s[52:53]" % (V_D + i, V_D + i))
        a("s_lshl_b32 s54, s50, 5")
        a("s_lshl_b32 s55, s4, 6"); a("s_add_u32 s55, s55, s54"); a("s_mul_i32 s55, s55, 896")
        a("s_mul_i32 s56, s54, 896"); a("s_mul_i32 s57, s5, 112"); a("s_add_u32 s56, s56, s57")
        a("s_lshl_b32 s58, s50, 12")
        a("s_cmp_eq_u32 s51, 0")
        a("s_mov_b32 s59, %d" % (64 * 896))
        a("s_cselect_b32 s%d, s55, s56" % S_SO); a("s_cselect_b32 s%d, 128, s59" % S_STEP)
        a("s_mov_b32 s59, %d" % SLOT); a("s_cselect_b32 s%d, 0x2000, s59" % S_ISX)
        a("s_mov_b32 s59, %d" % (L_RING + 4 * SLOT)); a("s_cselect_b32 s7, 0x7fffffff, s59")
        a("s_cselect_b32 s59, 0, %d" % L_RING); a("s_add_u32 s%d, s58, s59" % S_M0)
        a("s_lshl_b32 s57, s5, 6"); a("s_add_u32 s57, s57, s54"); a("s_mul_i32 s%d, s57, 896" % S_SO2); a("s_mov_b32 s%d, 128" % S_STEP2)
        a("s_lshl_b32 s59, s3, 12"); a("s_add_u32 s%d, s59, %d" % (S_M02, L_RING + 8192))
        lab = a.newlabel("L_pa")
        a("s_cmp_eq_u32 s5, 7"); a("s_cbranch_scc0 %s" % lab)
        a("s_lshl_b32 s%d, s50, 11" % S_SO2); a("s_mov_b32 s%d, 3584" % S_STEP2)
        a("s_lshl_b32 s59, s51, 12"); a("s_lshl_b32 s60, s50, 11"); a("s_add_u32 s59, s59, s60"); a("s_add_u32 s%d, s59, %d" % (S_M02, L_RING + 8192))
        a("v_mov_b32 v%d, v2" % V_D2); a("v_mov_b32 v%d, v2" % (V_D2 + 1))
        a.label(lab)
        a("s_mul_i32 s59, s%d, s%d" % (S_C0, S_STEP)); a("s_add_u32 s%d, s%d, s59" % (S_SO, S_SO))
        a("s_mul_i32 s59, s%d, s%d" % (S_C0, S_STEP2)); a("s_add_u32 s%d, s%d, s59" % (S_SO2, S_SO2))
        a("s_mul_i32 s%d, s%d, 7" % (S_7S, S_STEP)); a("s_mul_i32 s%d, s%d, 7" % (S_7S2, S_STEP2)); a("s_mov_b32 s%d, s%d" % (S_CK, S_C0))
        a("s_waitcnt lgkmcnt(0)")
        self.stamp(1)
        a("s_cmp_eq_u32 s51, 0")
        a("s_cselect_b32 s%d, s%d, s%d" % (S_D, P_X, P_WQ)); a("s_cselect_b32 s%d, s%d, s%d" % (S_D + 1, P_X + 1, P_WQ + 1))
        a("s_mov_b32 s59, 0x%x" % (448 * 896)); a("s_cselect_b32 s%d, 0x%x, s59" % (S_D + 2, 2048 * 896)); a("s_mov_b32 s%d, 0x20000" % (S_D + 3))
        a("s_cmp_eq_u32 s5, 7")
        a("s_cselect_b32 s54, s%d, s%d" % (P_WK, P_BRE)); a("s_cselect_b32 s55, s%d, s%d" % (P_WK + 1, P_BRE + 1))
        a("s_cselect_b32 s56, s%d, s%d" % (P_WV, P_BIM)); a("s_cselect_b32 s57, s%d, s%d" % (P_WV + 1, P_BIM + 1))
        a("s_cselect_b32 s%d, 0x%x, s59" % (S_D2 + 2, 448 * 56))
        a("s_cmp_eq_u32 s51, 0")
        a("s_cselect_b32 s%d, s54, s56" % S_D2); a("s_cselect_b32 s%d, s55, s57" % (S_D2 + 1)); a("s_mov_b32 s%d, 0x20000" % (S_D2 + 3))

    def dma_group(self, n2):
        o = []
        l1 = ["buffer_load_dwordx4 v%d, s[%d:%d], s%d offen offset:%d lds" % (V_D + i, S_D, S_D + 3, S_SO, 1024 * i) for i in range(4)]
        l2 = ["buffer_load_dwordx4 v%d, s[%d:%d], s%d offen offset:%d lds" % (V_D2 + i, S_D2, S_D2 + 3, S_SO2, 1024 * i) for i in range(n2)]
        o.append("\n".join(["s_mov_b32 m0, s%d" % S_M0, "s_mov_b64 exec, s[%d:%d]" % (S_DM, S_DM + 1)] + l1 + ["s_mov_b64 exec, -1"]))
        o.append("s_mov_b32 m0, s%d\ns_nop 0\n%s" % (S_M02, l2[0]))
        o += l2[1:]
        o.append("s_add_u32 s%d, s%d, s%d\ns_add_u32 s%d, s%d, s%d\ns_add_u32 s%d, s%d, s%d\ns_add_u32 s%d, s%d, %d" % (S_SO, S_SO, S_STEP, S_SO2, S_SO2, S_STEP2, S_M0, S_M0, S_ISX, S_M02, S_M02, SLOT))
        o.append("s_cmp_ge_u32 s%d, s7\ns_cselect_b32 s48, %d, 0\ns_sub_u32 s%d, s%d, s48" % (S_M0, 4 * SLOT, S_M0, S_M0))
        o.append("s_cmp_ge_u32 s%d, %d\ns_cbranch_scc0 .+8\ns_sub_u32 s%d, s%d, %d" % (S_M02, L_RING + 4 * SLOT, S_M02, S_M02, 4 * SLOT) if False else
                 "s_mov_b32 s49, %d\ns_cmp_ge_u32 s%d, s49\ns_cselect_b32 s48, %d, 0\ns_sub_u32 s%d, s%d, s48" % (L_RING + 4 * SLOT, S_M02, 4 * SLOT, S_M02, S_M02))
        o.append("s_add_u32 s%d, s%d, 1\ns_cmp_eq_u32 s%d, 7\ns_cselect_b32 s%d, 0, s%d\ns_cselect_b32 s48, s%d, 0\ns_cselect_b32 s49, s%d, 0\ns_sub_u32 s%d, s%d, s48\ns_sub_u32 s%d, s%d, s49"
                 % (S_CK, S_CK, S_CK, S_CK, S_CK, S_7S, S_7S2, S_SO, S_SO, S_SO2, S_SO2))
        return o

    def gate_write(self, c):
        slotoff = L_RING + (c % 4) * SLOT
        return ["\n".join(["v_add_u32 v11, %d, v10" % slotoff, "s_mov_b64 exec, s[60:61]",
                "ds_write2_b32 v11, v%d, v%d offset0:0 offset1:1" % (V_GATE + c, V_ZERO), "s_mov_b64 exec, -1"])]

    def rest_setup(self, hp7):
        a = self.a
        srd(a, S_WS, P_WS, WS_SIZE_DBG if self.debug else WS_END)
        srd(a, S_DBG, P_DBG, 256)
        if self.gst:
            l = a.newlabel("L_gs0")
            a("s_and_b32 s100, s2, 31"); a("s_and_b32 s101, s3, 3"); a("s_or_b32 s100, s100, s101"); a("s_cmp_eq_u32 s100, 0")
            a("s_cbranch_scc0 %s" % l)
            a("s_not_b32 s62, s62"); a("v_mov_b32 v14, s62"); a("v_mov_b32 v15, 0"); a("s_mov_b64 exec, 1")
            a("buffer_atomic_umax v14, v15, s[%d:%d], 0 offen" % (S_DBG, S_DBG + 3)); a("s_mov_b64 exec, -1")
            a.label(l)
        if not hp7:
            l = a.newlabel("L_non")
            a("s_cmp_lg_u32 s2, 0"); a("s_cbranch_scc1 %s" % l)
            a("s_cmp_lg_u32 s3, 0"); a("s_cbranch_scc1 %s" % l)
            a("s_memrealtime s[50:51]"); a("s_waitcnt lgkmcnt(0)"); a("s_or_b32 s50, s50, 1")
            a("v_mov_b32 v12, s50"); a("v_mov_b32 v13, 124"); a("s_mov_b64 exec, 1")
            a("buffer_store_dword v12, v13, s[%d:%d], 0 offen sc1" % (S_DBG, S_DBG + 3))
            a("s_mov_b64 exec, -1")
            a.label(l)

    def xfrag_addrs(self, base, add_sreg=None, add_const=0):
        a = self.a
        a("v_lshrrev_b32 v15, 1, v13"); a("v_and_b32 v15, 7, v15")
        a("v_lshlrev_b32 v12, 7, v13")
        if add_sreg is not None: a("v_add_u32 v12, s%d, v12" % add_sreg)
        if add_const: a("v_add_u32 v12, %d, v12" % add_const)
        a("v_xor_b32 v15, v15, v14")
        for s in range(4):
            a("v_xor_b32 v11, %d, v15" % (2 * s))
            a("v_lshl_add_u32 v%d, v11, 4, v12" % (base + s))

    def tr_base(self, dst, pitch, rows_per_hf=8):
        a = self.a
        a("v_lshrrev_b32 v12, 5, v1"); a("v_mul_u32_u24 v12, %d, v12" % rows_per_hf)
        a("v_bfe_u32 v13, v1, 2, 2"); a("v_add_u32 v12, v12, v13"); a("v_mul_u32_u24 v12, %d, v12" % pitch)
        a("v_bfe_u32 v13, v1, 4, 1"); a("v_lshl_add_u32 v12, v13, 5, v12")
        a("v_and_b32 v13, 3, v1"); a("v_lshl_add_u32 v%d, v13, 3, v12" % dst)

    def loader_loop(self, n2):
        a = self.a
        ndma = 4 + n2
        for c in range(7):
            later = min(6, c + 2) - c
            if self.fine: self.stampc(34 + 3 * c)
            a("s_waitcnt vmcnt(%d)" % (ndma * later))
            if c == 0:
                for cc in range(3):
                    for x in self.gate_write(cc): a(x)
            if self.fine: self.stampc(35 + 3 * c)
            a("s_waitcnt lgkmcnt(0)")
            if c == 0: self.stamp(2); self.gstamp(6)
            a("s_barrier")
            if self.fine: self.stampc(36 + 3 * c)
            if c in (0, 3, 6): self.stamp({0: 3, 3: 4, 6: 5}[c])
            if c + 3 <= 6:
                for x in self.dma_group(n2): a(x)
                for x in self.gate_write(c + 3): a(x)
            if c == 5:
                ln = a.newlabel("L_nw")
                a("s_cmp_eq_u32 s3, 0"); a("s_cbranch_scc0 %s" % ln)
                self.poll_nonce()
                a("v_mov_b32 v12, %d" % L_NON); a("v_mov_b32 v13, s%d" % S_NONCE); a("ds_write_b32 v12, v13")
                a.label(ln)

    def compute_loop(self, mode, extra=None):
        a = self.a
        XP, BF, TRQ, RE, IM, QA = 16, 20, 28, 32, 48, 192
        def base(c): return 64 if c % 2 == 0 else 128
        def reads(c):
            sl = c % 4; off = (sl % 2) * SLOT; hi2 = sl // 2
            b = base(c); o = []
            for s in range(4):
                o.append("ds_read_b128 v[%d:%d], v%d offset:%d" % (b + 4*s, b + 4*s + 3, XP + s, L_X + c * 8192))
                o.append("ds_read_b64_tr_b16 v[%d:%d], v%d offset:%d" % (b + 48 + 4*s, b + 48 + 4*s + 1, TRQ + hi2, off + 16 * s * 128))
                o.append("ds_read_b64_tr_b16 v[%d:%d], v%d offset:%d" % (b + 48 + 4*s + 2, b + 48 + 4*s + 3, TRQ + hi2, off + 16 * s * 128 + 512))
                if mode == 'gen':
                    bf = BF + 4 * hi2
                    o.append("ds_read_b128 v[%d:%d], v%d offset:%d" % (b + 16 + 4*s, b + 16 + 4*s + 3, bf + s, off))
                    o.append("ds_read_b128 v[%d:%d], v%d offset:%d" % (b + 32 + 4*s, b + 32 + 4*s + 3, bf + s, off + 8192))
                else:
                    o.append("ds_read_b64_tr_b16 v[%d:%d], v%d offset:%d" % (b + 16 + 4*s, b + 16 + 4*s + 1, BF + hi2, off + 16 * s * 56))
                    o.append("ds_read_b64_tr_b16 v[%d:%d], v%d offset:%d" % (b + 16 + 4*s + 2, b + 16 + 4*s + 3, BF + hi2, off + 16 * s * 56 + 4 * 56))
            return o
        def mfmas(c):
            b = base(c); o = []
            for s in range(4):
                z = (c == 0 and s == 0)
                x = vr(b + 4*s, 4)
                if mode == 'gen':
                    o.append("%s %s, %s, %s, %s" % (MF, vr(RE, 16), x, vr(b + 16 + 4*s, 4), "0" if z else vr(RE, 16)))
                    o.append("%s %s, %s, %s, %s" % (MF, vr(IM, 16), x, vr(b + 32 + 4*s, 4), "0" if z else vr(IM, 16)))
                elif mode == 'k':
                    o.append("%s %s, %s, %s, %s" % (MF, vr(RE, 16), vr(b + 16 + 4*s, 4), x, "0" if z else vr(RE, 16)))
                else:
                    o.append("%s %s, %s, %s, %s" % (MF, vr(RE, 16), x, vr(b + 16 + 4*s, 4), "0" if z else vr(RE, 16)))
                o.append("%s %s, %s, %s, %s" % (MF, vr(QA, 16), vr(b + 48 + 4*s, 4), x, "0" if z else vr(QA, 16)))
            return o
        for c in range(8):
            rd, mm = [], []
            if self.fine and c <= 6: self.stampc(34 + 3 * c)
            a("s_waitcnt lgkmcnt(0)")
            if c <= 6:
                if self.fine: self.stampc(35 + 3 * c)
                if c == 0: self.stamp(2)
                a("s_barrier")
                if self.fine: self.stampc(36 + 3 * c)
                if c in (0, 3, 6): self.stamp({0: 3, 3: 4, 6: 5}[c])
                rd = reads(c)
            if c >= 1: mm = mfmas(c - 1)
            interleave(a, mm, rd)
            if extra and c in extra: extra[c]()

    def h_common_setup(self):
        a = self.a
        a("v_and_b32 v12, 31, v1"); a("v_bfe_u32 v13, v12, 2, 1"); a("v_lshlrev_b32 v13, 4, v13")
        a("v_lshrrev_b32 v14, 3, v12"); a("v_lshl_add_u32 v13, v14, 2, v13"); a("v_and_b32 v14, 3, v12"); a("v_add_u32 v13, v13, v14")
        a("v_mov_b32 v30, v13")
        a("s_sub_u32 s48, s3, 4"); a("s_lshr_b32 s48, s48, 1"); a("s_lshl_b32 s48, s48, 5")
        a("v_add_u32 v13, s48, v13"); a("v_lshrrev_b32 v14, 5, v1")
        self.xfrag_addrs(16)
        self.tr_base(28, 128)
        a("s_and_b32 s48, s3, 1"); a("s_mul_i32 s48, s48, 56"); a("s_add_u32 s48, s48, %d" % L_RING)
        a("v_add_u32 v28, s48, v28"); a("v_add_u32 v29, %d, v28" % (2 * SLOT))

    def pack_acc(self, acc, dst):
        for i in range(8): self.a("v_cvt_pk_bf16_f32 v%d, v%d, v%d" % (dst + i, acc + 2*i, acc + 2*i + 1))

    def norm2(self, P, out, tmp):
        a = self.a
        a("v_dot2_f32_bf16 v%d, v%d, v%d, v%d" % (out, P, P, V_ZERO))
        a("v_dot2_f32_bf16 v%d, v%d, v%d, v%d" % (tmp, P + 1, P + 1, V_ZERO))
        for i in range(2, 8, 2):
            a("v_dot2_f32_bf16 v%d, v%d, v%d, v%d" % (out, P + i, P + i, out))
            a("v_dot2_f32_bf16 v%d, v%d, v%d, v%d" % (tmp, P + i + 1, P + i + 1, tmp))
        a("s_nop 2")
        a("v_add_f32 v%d, v%d, v%d" % (out, out, tmp))
        a("v_mov_b32 v%d, v%d" % (tmp, out))
        a("s_nop 1")
        a("v_permlane32_swap_b32 v%d, v%d" % (out, tmp))
        a("s_nop 1")
        a("v_add_f32 v%d, v%d, v%d" % (out, out, tmp))

    def q_epilogue(self):
        a = self.a
        ACC, P = 192, 224
        hi = "s[%d:%d]" % (S_HI, S_HI + 1)
        a("s_mov_b32 s48, 0x%x" % f2u(QSCALE)); a("s_mov_b32 s49, s48")
        a("s_nop 7"); a("s_nop 5")
        a("v_mov_b32 v236, v%d" % (ACC + 12))
        for r in range(0, 16, 2): a("v_pk_mul_f32 v[%d:%d], s[48:49], v[%d:%d]" % (ACC + r, ACC + r + 1, ACC + r, ACC + r + 1))
        self.pack_acc(ACC, P)
        a("v_cndmask_b32 v%d, v%d, v%d, %s" % (P + 6, P + 6, V_ZERO, hi))
        a("v_cndmask_b32 v%d, v%d, v%d, %s" % (P + 7, P + 7, V_ZERO, hi))
        a("s_sub_u32 s48, s3, 4"); a("s_lshl_b32 s48, s48, 11"); a("s_add_u32 s48, s48, %d" % L_QF)
        a("v_add_u32 v12, s48, v2")
        a("ds_write_b128 v12, v[%d:%d]" % (P, P + 3))
        a("s_mov_b32 s50, 0x%x" % f2u(-LOG2E))
        a("v_mul_f32 v236, s50, v236"); a("v_exp_f32 v236, v236")
        self.norm2(P, 232, 233)
        a("v_add_f32 v236, 1.0, v236")
        a("v_sqrt_f32 v232, v232")
        a("v_rcp_f32 v236, v236")
        a("s_mov_b32 s48, 0x%x" % f2u(1.0 + 2.0 ** -6))
        a("v_mul_f32 v232, s48, v232")
        a("v_cvt_pk_bf16_f32 v234, v232, v%d" % V_ZERO)
        a("v_cndmask_b32 v%d, v%d, v234, %s" % (P + 6, P + 6, hi))
        a("ds_write_b128 v12, v[%d:%d] offset:1024" % (P + 4, P + 7))
        a("s_bitcmp1_b32 s3, 0")
        lab = a.newlabel("L_nog")
        a("s_cbranch_scc0 %s" % lab)
        a("s_sub_u32 s48, s3, 4"); a("s_lshr_b32 s48, s48, 1"); a("s_lshl_b32 s48, s48, 7"); a("s_add_u32 s48, s48, %d" % L_G)
        a("v_lshlrev_b32 v13, 2, v30"); a("v_add_u32 v13, s48, v13")
        a("s_mov_b64 exec, %s" % hi)
        a("ds_write_b32 v13, v236")
        a("s_mov_b64 exec, -1")
        a.label(lab)

    def kv_store(self, P, off):
        a = self.a
        a("s_sub_u32 s52, s3, 4"); a("s_lshr_b32 s52, s52, 1"); a("s_lshl_b32 s53, s4, 1"); a("s_add_u32 s52, s52, s53")
        a("s_lshl_b32 s52, s52, 12"); a("s_add_u32 s52, s52, %d" % (WS_KV + off))
        a("buffer_store_dwordx4 v[%d:%d], v2, s[%d:%d], s52 offen sc1" % (P, P + 3, S_WS, S_WS + 3))
        a("buffer_store_dwordx4 v[%d:%d], v2, s[%d:%d], s52 offen offset:1024 sc1" % (P + 4, P + 7, S_WS, S_WS + 3))

    def k_epilogue(self):
        a = self.a
        ACC, P = 32, 48
        hi = "s[%d:%d]" % (S_HI, S_HI + 1)
        a("v_mov_b32 v58, 0x3f803f80"); a("v_mov_b32 v59, 0x3f80")
        a("s_nop 7"); a("s_nop 5")
        self.pack_acc(ACC, P)
        a("v_cndmask_b32 v62, v%d, v%d, %s" % (P + 6, V_ZERO, hi)); a("v_cndmask_b32 v63, v%d, v%d, %s" % (P + 7, V_ZERO, hi))
        a("v_cndmask_b32 v%d, v%d, v58, %s" % (P + 6, P + 6, hi)); a("v_cndmask_b32 v%d, v%d, v59, %s" % (P + 7, P + 7, hi))
        self.kv_store(P, 0)
        a("v_dot2_f32_bf16 v56, v62, v62, v%d" % V_ZERO); a("v_dot2_f32_bf16 v57, v63, v63, v%d" % V_ZERO)
        for i in range(0, 6, 2):
            a("v_dot2_f32_bf16 v56, v%d, v%d, v56" % (P + i, P + i)); a("v_dot2_f32_bf16 v57, v%d, v%d, v57" % (P + i + 1, P + i + 1))
        a("s_nop 2"); a("v_add_f32 v56, v56, v57"); a("v_mov_b32 v57, v56"); a("s_nop 1")
        a("v_permlane32_swap_b32 v56, v57"); a("s_nop 1"); a("v_add_f32 v56, v56, v57")
        for sh in (1, 2, 4, 8):
            a("s_nop 1"); a("v_max_f32_dpp v56, v56, v56 row_shr:%d row_mask:0xf bank_mask:0xf" % sh)
        a("s_nop 1")
        a("v_readlane_b32 s48, v56, 15"); a("v_readlane_b32 s49, v56, 31"); a("s_nop 3")
        a("s_max_u32 s48, s48, s49"); a("v_mov_b32 v56, s48")
        a("s_sub_u32 s49, s3, 4"); a("s_lshr_b32 s49, s49, 1"); a("s_lshl_b32 s49, s49, 2"); a("s_add_u32 s49, s49, %d" % L_KM)
        a("v_mov_b32 v12, s49"); a("ds_write_b32 v12, v56")

    def v_epilogue(self):
        a = self.a
        ACC, P = 32, 48
        a("s_mov_b32 s48, 0x10000000"); a("s_mov_b32 s49, 0x10000000"); a("s_mov_b32 s50, 0xe0000000"); a("s_mov_b32 s51, 0xe0000000")
        a("v_mov_b32 v58, 0x3f803f80")
        a("s_nop 7"); a("s_nop 5")
        self.pack_acc(ACC, P)
        for i in range(8):
            a("v_cndmask_b32 v%d, v%d, v58, s[48:49]" % (P + i, P + i))
            a("v_cndmask_b32 v%d, v%d, v%d, s[50:51]" % (P + i, P + i, V_ZERO))
        self.kv_store(P, 2048)

    def params_load(self):
        a = self.a
        a("s_and_b32 s48, s3, 1"); a("s_lshl_b32 s48, s48, 5"); a("s_lshl_b32 s49, s5, 6"); a("s_add_u32 s48, s48, s49")
        a("v_and_b32 v12, 31, v1"); a("v_add_lshl_u32 v12, v12, s48, 1")
        for reg, p in ((208, P_LRE), (209, P_LIM), (210, P_LDT), (211, P_DSK)):
            srd(a, S_T2, p, 896); a("buffer_load_ushort v%d, v12, s[%d:%d], 0 offen" % (reg, S_T2, S_T2 + 3))

    def csq(self, dr, di, sr_, si):
        a = self.a
        a("v_mul_f32 v%d, v%d, v%d" % (di, si, si)); a("v_fma_f32 v%d, v%d, v%d, -v%d" % (dr, sr_, sr_, di))
        a("v_mul_f32 v%d, v%d, v%d" % (di, sr_, si)); a("v_add_f32 v%d, v%d, v%d" % (di, di, di))

    def params_compute(self):
        a = self.a
        LR, LI, CR, CI, L16R, L16I, MUR, MUI, M2R, M2I, L32R, L32I = range(212, 224)
        T = 224
        a("v_lshlrev_b32 v208, 16, v208"); a("v_lshlrev_b32 v209, 16, v209"); a("v_lshlrev_b32 v210, 16, v210")
        a("s_mov_b32 s48, 0x%x" % f2u(LOG2E))
        a("v_mul_f32 v210, s48, v210"); a("v_exp_f32 v210, v210"); a("s_nop 0")
        a("v_cvt_pk_bf16_f32 v210, v210, v%d" % V_ZERO); a("v_lshlrev_b32 v210, 16, v210")
        a("v_mul_f32 v%d, v210, v208" % T); a("v_mul_f32 v%d, v210, v209" % (T + 1))
        a("v_mul_f32 v%d, s48, v%d" % (T, T)); a("v_exp_f32 v%d, v%d" % (T, T))
        a("v_mul_f32 v%d, 0.15915494, v%d" % (T + 1, T + 1)); a("v_fract_f32 v%d, v%d" % (T + 1, T + 1))
        a("v_cos_f32 v%d, v%d" % (T + 2, T + 1)); a("v_sin_f32 v%d, v%d" % (T + 1, T + 1)); a("s_nop 0")
        a("v_mul_f32 v%d, v%d, v%d" % (LR, T, T + 2)); a("v_mul_f32 v%d, v%d, v%d" % (LI, T, T + 1))
        a("v_add_f32 v%d, -1.0, v%d" % (T, LR))
        a("v_mul_f32 v%d, v208, v208" % (T + 1)); a("v_fma_f32 v%d, v209, v209, v%d" % (T + 1, T + 1)); a("v_rcp_f32 v%d, v%d" % (T + 1, T + 1))
        a("v_mul_f32 v%d, v%d, v208" % (T + 2, T)); a("v_fma_f32 v%d, v%d, v209, v%d" % (T + 2, LI, T + 2))
        a("v_mul_f32 v%d, v%d, v208" % (T + 3, LI)); a("v_fma_f32 v%d, -v%d, v209, v%d" % (T + 3, T, T + 3))
        a("v_mul_f32 v%d, v%d, v%d" % (CR, T + 2, T + 1)); a("v_mul_f32 v%d, v%d, v%d" % (CI, T + 3, T + 1))
        a("v_lshlrev_b32 v9, 16, v211"); a("v_mul_f32 v9, 0.5, v9"); a("v_mov_b32 v8, v9")
        self.csq(T, T + 1, LR, LI); self.csq(T + 2, T + 3, T, T + 1); self.csq(T, T + 1, T + 2, T + 3)
        self.csq(L16R, L16I, T, T + 1); self.csq(L32R, L32I, L16R, L16I); self.csq(MUR, MUI, L32R, L32I); self.csq(M2R, M2I, MUR, MUI)

    def scan_step(self, er, ur, ui, dst):
        a = self.a
        a("v_fma_f32 v10, v212, v%d, v%d" % (er, ur)); a("v_fma_f32 v11, v212, v%d, v%d" % (er + 1, ui))
        a("v_pk_fma_f32 v[%d:%d], v[212:213], v[%d:%d], v[10:11] op_sel:[1,1,0] op_sel_hi:[1,0,1] neg_lo:[1,0,0]" % (dst, dst + 1, er, er + 1))

    def h_epilogue_pass1(self):
        a = self.a
        RE, IM = 32, 48
        a("s_nop 7"); a("s_nop 5")
        for r in range(0, 16, 2):
            a("v_pk_mul_f32 v[12:13], v[214:215], v[%d:%d] op_sel:[1,0] op_sel_hi:[1,1]" % (IM + r, IM + r + 1))
            a("v_pk_mul_f32 v[14:15], v[214:215], v[%d:%d] op_sel:[1,0] op_sel_hi:[1,1]" % (RE + r, RE + r + 1))
            a("v_pk_fma_f32 v[%d:%d], v[214:215], v[%d:%d], v[12:13] op_sel:[0,0,0] op_sel_hi:[0,1,1] neg_lo:[0,0,1] neg_hi:[0,0,1]" % (RE + r, RE + r + 1, RE + r, RE + r + 1))
            a("v_pk_fma_f32 v[%d:%d], v[214:215], v[%d:%d], v[14:15] op_sel:[0,0,0] op_sel_hi:[0,1,1]" % (IM + r, IM + r + 1, IM + r, IM + r + 1))
        a("v_mov_b32 v12, v%d" % RE); a("v_mov_b32 v13, v%d" % IM)
        for r in range(1, 16): self.scan_step(12, RE + r, IM + r, 12)
        a("s_sub_u32 s48, s3, 4"); a("s_lshr_b32 s49, s48, 1"); a("s_and_b32 s48, s48, 1")
        a("s_lshl_b32 s49, s49, 10"); a("s_lshl_b32 s48, s48, 8"); a("s_add_u32 s48, s48, s49"); a("s_add_u32 s48, s48, %d" % L_SEG)
        a("v_lshrrev_b32 v14, 5, v1"); a("v_lshlrev_b32 v14, 9, v14"); a("v_and_b32 v15, 31, v1"); a("v_lshl_add_u32 v14, v15, 3, v14")
        a("v_add_u32 v14, s48, v14")
        a("ds_write_b64 v14, v[12:13]")

    def poll_nonce(self):
        a = self.a
        lab = a.newlabel("L_pn"); done = a.newlabel("L_pnd")
        a("v_mov_b32 v12, 124"); a("s_mov_b32 s48, 0x100000")
        a.label(lab)
        a("buffer_load_dword v13, v12, s[%d:%d], 0 offen sc1" % (S_DBG, S_DBG + 3))
        a("s_waitcnt vmcnt(0)")
        a("v_readfirstlane_b32 s%d, v13" % S_NONCE)
        a("s_sub_u32 s48, s48, 1"); a("s_cbranch_scc1 %s" % done)
        a("s_cmp_eq_u32 s%d, 0" % S_NONCE); a("s_cbranch_scc1 %s" % lab)
        a.label(done)
    def lds_inc(self, cnt):
        a = self.a
        a("v_mov_b32 v12, %d" % (L_CNT + 4 * cnt)); a("v_mov_b32 v13, 1"); a("s_mov_b64 exec, 1")
        a("ds_add_u32 v12, v13"); a("s_mov_b64 exec, -1")
    def lds_wait(self, cnt, target, sleep=0):
        a = self.a
        lab = a.newlabel("L_lw"); done = a.newlabel("L_lwd")
        a("v_mov_b32 v12, %d" % (L_CNT + 4 * cnt)); a("s_mov_b32 s48, 0x400000")
        a.label(lab)
        a("ds_read_b32 v13, v12"); a("s_waitcnt lgkmcnt(0)"); a("v_readfirstlane_b32 s49, v13")
        a("s_sub_u32 s48, s48, 1"); a("s_cbranch_scc1 %s" % done)
        a("s_cmp_ge_u32 s49, %s" % target); a("s_cbranch_scc1 %s" % done)
        if sleep: a("s_sleep %d" % sleep)
        a("s_branch %s" % lab)
        a.label(done)
    def poll_flags(self, ws_off, mask_lo, sleep=1):
        a = self.a
        lab = a.newlabel("L_pf"); done = a.newlabel("L_pfd")
        a("s_lshl_b32 s50, s4, 7"); a("s_add_u32 s50, s50, %d" % ws_off)
        a("v_lshlrev_b32 v12, 2, v1"); a("s_mov_b32 s48, 0x100000")
        a("s_mov_b32 exec_lo, 0x%x" % mask_lo); a("s_mov_b32 exec_hi, 0")
        a.label(lab)
        a("buffer_load_dword v13, v12, s[%d:%d], s50 offen sc1" % (S_WS, S_WS + 3))
        a("s_waitcnt vmcnt(0)")
        a("v_cmp_ne_u32 vcc, s%d, v13" % S_NONCE)
        a("s_sub_u32 s48, s48, 1"); a("s_cbranch_scc1 %s" % done)
        a("s_nop 2"); a("s_cbranch_vccz %s" % done)
        a("s_sleep %d" % sleep); a("s_branch %s" % lab)
        a.label(done)
        a("s_mov_b64 exec, -1")
    def flag_store(self, ws_off, idx_sreg):
        a = self.a
        a("s_lshl_b32 s50, s4, 7"); a("s_lshl_b32 s51, s%d, 2" % idx_sreg); a("s_add_u32 s50, s50, s51"); a("s_add_u32 s50, s50, %d" % ws_off)
        a("v_mov_b32 v12, s50"); a("v_mov_b32 v13, s%d" % S_NONCE); a("s_mov_b64 exec, 1")
        a("buffer_store_dword v13, v12, s[%d:%d], 0 offen sc1" % (S_WS, S_WS + 3))
        a("s_mov_b64 exec, -1")
    def hexit(self, k):
        if self.hstop == k:
            a = self.a
            if k < 3: self.lds_inc(5)
            a("s_waitcnt vmcnt(0) lgkmcnt(0)"); self.stamp_flush(); a("s_endpgm")
    def zero_if_wave4(self, hp7=False):
        a = self.a
        lz = a.newlabel("L_nz")
        a("s_cmp_eq_u32 s3, 4"); a("s_cbranch_scc0 %s" % lz)
        self.zero_counters()
        if hp7:
            for _ in range(4): self.lds_inc(5)
        a.label(lz)
    def zero_counters(self):
        a = self.a
        a("v_lshlrev_b32 v12, 2, v1"); a("v_add_u32 v12, %d, v12" % L_CNT); a("ds_write_b32 v12, v%d" % V_ZERO)

    def text(self, lds=L_TOTAL):
        hdr = "; @launch grid=(256,1,1) block=(512,1,1) lds=%d\n" % lds
        hdr += '.amdgcn_target "amdgcn-amd-amdhsa--gfx950"\n' + kernel_header(NAME)
        return hdr + self.a.text() + kernel_footer(NAME, 256)

    def build(self):
        a = self.a
        self.prologue()
        self.a_setup()
        srd(a, S_T, P_GW, 896)
        a("s_and_b32 s48, s3, 1"); a("s_lshl_b32 s48, s48, 5"); a("v_and_b32 v12, 31, v1"); a("v_add_u32 v12, s48, v12")
        a("v_lshlrev_b32 v10, 7, v12"); a("v_add_u32 v10, 112, v10"); a("v_lshlrev_b32 v12, 1, v12")
        a("s_cmp_ge_u32 s3, 2"); a("s_cselect_b32 s60, -1, 0"); a("s_mov_b32 s61, 0")
        a("v_mov_b32 v239, v12")
        def gate_loads():
            a("s_lshl_b32 s52, s%d, 7" % S_C0)
            for k in range(7):
                a("buffer_load_ushort v%d, v239, s[%d:%d], s52 offen" % (V_GATE + k, S_T, S_T + 3))
                if k < 6: a("s_add_u32 s52, s52, 128"); a("s_cmp_eq_u32 s52, 896"); a("s_cselect_b32 s52, 0, s52")
        a("s_cmp_eq_u32 s5, 7"); a("s_cbranch_scc1 L_a7")
        for hp7 in (False, True):
            if hp7: a.label("L_a7")
            n2 = 2 if hp7 else 4
            self.stamp(22)
            for x in self.dma_group(n2): a(x)
            self.stamp(23)
            gate_loads()
            for c in range(1, 3):
                for x in self.dma_group(n2): a(x)
            self.stamp(24)
            if self.stamps and self.probe:
                a("s_waitcnt vmcnt(%d)" % (2 * (4 + n2) + 7 + n2)); self.stamp(25)
                a("s_waitcnt vmcnt(%d)" % (2 * (4 + n2) + 7)); self.stamp(26)
            self.rest_setup(hp7)
            self.loader_loop(n2)
            if not hp7: a("s_branch L_aq")
        a.label("L_aq")
        self.attention_wave()
        a.label("L_hw")
        a("s_waitcnt lgkmcnt(0)")
        srd(a, S_WS, P_WS, WS_SIZE_DBG if self.debug else WS_END); srd(a, S_DBG, P_DBG, 256)
        if self.tlbwarm:
            lw = a.newlabel("L_tw")
            a("s_cmp_eq_u32 s3, 4"); a("s_cbranch_scc0 %s" % lw)
            a("s_sleep 3")
            a("v_lshlrev_b32 v12, 21, v1"); a("s_mov_b64 exec, 0xf")
            a("buffer_load_dword v240, v12, s[%d:%d], 0 offen sc1" % (S_WS, S_WS + 3))
            srd(a, S_T, P_OUT, 2048 * 448 * 4); a("s_mov_b64 exec, 0x3")
            a("buffer_load_dword v241, v12, s[%d:%d], 0 offen sc1" % (S_T, S_T + 3))
            a("s_mov_b64 exec, 1")
            for n, p in enumerate((P_CRE, P_CIM, P_WO)):
                srd(a, S_T, p, 448 * 896); a("buffer_load_dword v%d, v12, s[%d:%d], 0 offen" % (242 + n, S_T, S_T + 3))
            a("buffer_load_dword v245, v12, s[%d:%d], 0 offen sc1" % (S_DBG, S_DBG + 3))
            a("s_mov_b64 exec, -1")
            a.label(lw)
        a("s_cmp_eq_u32 s5, 7"); a("s_cbranch_scc1 L_hw7")
        self.h_common_setup()
        if self.pdelay: a("s_sleep %d" % self.pdelay)
        self.params_load()
        a("s_and_b32 s48, s3, 1"); a("s_lshl_b32 s48, s48, 5")
        a("v_and_b32 v13, 31, v1"); a("v_add_u32 v13, s48, v13"); a("v_lshrrev_b32 v14, 5, v1")
        self.xfrag_addrs(20, add_const=L_RING + 8192)
        for s in range(4): a("v_add_u32 v%d, %d, v%d" % (24 + s, 2 * SLOT, 20 + s))
        self.compute_loop('gen', extra={1: lambda: (a("s_waitcnt vmcnt(0)"), self.params_compute())})
        self.q_epilogue()
        self.zero_if_wave4()
        a("s_waitcnt lgkmcnt(0)"); self.stamp(6)
        a("s_barrier")
        self.stamp(7)
        self.helper_wave()
        a.label("L_hw7")
        self.h_common_setup()
        self.tr_base(20, 56)
        a("s_and_b32 s48, s3, 1"); a("s_lshl_b32 s48, s48, 12"); a("s_add_u32 s48, s48, %d" % (L_RING + 8192))
        a("v_add_u32 v20, s48, v20"); a("v_add_u32 v21, %d, v20" % (2 * SLOT))
        a("s_bitcmp1_b32 s3, 0"); a("s_cbranch_scc1 L_hw7v")
        self.compute_loop('k'); self.k_epilogue()
        a("s_branch L_hw7d")
        a.label("L_hw7v")
        self.compute_loop('v'); self.v_epilogue()
        a.label("L_hw7d")
        self.q_epilogue()
        self.zero_if_wave4(hp7=True)
        a("s_waitcnt vmcnt(0) lgkmcnt(0)"); self.stamp(6)
        a("s_barrier")
        self.stamp(7)
        a("s_cmp_eq_u32 s3, 4"); a("s_cbranch_scc0 L_bf2h")
        a("v_mov_b32 v12, %d" % L_KM); a("ds_read_b64 v[14:15], v12"); a("s_waitcnt lgkmcnt(0)")
        a("v_max_f32 v14, v14, v15")
        a("v_mov_b32 v12, %d" % L_NON); a("ds_read_b32 v15, v12"); a("s_waitcnt lgkmcnt(0)")
        a("s_lshl_b32 s48, s4, 3"); a("s_add_u32 s48, s48, %d" % WS_KF)
        a("v_lshlrev_b32 v12, 8, v1"); a("s_mov_b32 exec_hi, 0")
        a("buffer_store_dwordx2 v[14:15], v12, s[%d:%d], s48 offen sc1" % (S_WS, S_WS + 3))
        a("s_mov_b64 exec, -1")
        a("s_waitcnt vmcnt(0)")
        self.lds_inc(13)
        self.stamp(8)
        a.label("L_bf2h")
        self.lds_wait(13, 1, sleep=2)
        a("s_and_b32 s48, s4, 3"); a("s_lshl_b32 s48, s48, 2"); a("s_add_u32 s48, s48, s3"); a("s_sub_u32 s48, s48, 4")
        a("s_mul_i32 s48, s48, %d" % (196 * 128))
        a("v_lshlrev_b32 v12, 7, v1")
        for n, p in enumerate((P_CRE, P_CIM, P_WO)):
            srd(a, S_T, p, 448 * 896)
            for i in range(4):
                if i == 3: a("s_mov_b64 exec, 0xf")
                a("s_add_u32 s49, s48, %d" % (i * 8192))
                a("buffer_load_dword v%d, v12, s[%d:%d], s49 offen" % (100 + n * 4 + i, S_T, S_T + 3))
            a("s_mov_b64 exec, -1")
        self.stamp_flush()
        a.label("L_exit")
        a("s_endpgm")

    def attention_wave(self):
        a = self.a
        R = attn.AttnRegs(16)
        hi = "s[%d:%d]" % (S_HI, S_HI + 1)
        L_KB = L_CNT + 128
        a("v_lshlrev_b32 v11, 3, v1")
        a("v_and_b32 v12, 31, v1"); a("v_bfe_u32 v13, v12, 2, 1"); a("v_lshlrev_b32 v13, 4, v13")
        a("v_lshrrev_b32 v14, 3, v12"); a("v_lshl_add_u32 v13, v14, 2, v13"); a("v_and_b32 v14, 3, v12"); a("v_add_u32 v13, v13, v14")
        a("s_lshr_b32 s48, s3, 1"); a("s_lshl_b32 s48, s48, 7"); a("s_add_u32 s48, s48, %d" % L_G)
        a("v_lshlrev_b32 v13, 2, v13"); a("v_add_u32 v10, s48, v13")
        a("s_mov_b32 s59, 0")
        a("s_mov_b32 s58, 0")
        self.stamp(6); self.stampc(33)
        a("s_barrier")
        self.gstamp(1); self.stamp(7)
        for s in range(4):
            a("s_xor_b32 s48, s3, %d" % ((s + 1) & 3)); a("s_lshl_b32 s48, s48, 11"); a("s_add_u32 s48, s48, %d" % L_QF)
            a("v_add_u32 v12, s48, v2")
            a("ds_read_b128 v[%d:%d], v12" % (R.Q + s*8, R.Q + s*8 + 3))
            a("ds_read_b128 v[%d:%d], v12 offset:1024" % (R.Q + s*8 + 4, R.Q + s*8 + 7))
        a("ds_read_b32 v10, v10")
        a("v_mov_b32 v12, %d" % L_NON); a("ds_read_b32 v13, v12")
        a("s_waitcnt lgkmcnt(0)")
        a("v_readfirstlane_b32 s%d, v13" % S_NONCE)
        self.lds_inc(10)
        a("s_setprio 3")
        self.stamp(8)
        lw = a.newlabel("L_kvw"); lb = a.newlabel("L_kvb")
        a("s_cmp_eq_u32 s3, 0"); a("s_cbranch_scc0 %s" % lw)
        lab = a.newlabel("L_pkv"); done = a.newlabel("L_pkvd")
        a("s_mov_b32 s48, 0x100000")
        a("s_lshl_b32 s50, s4, 8"); a("s_add_u32 s50, s50, %d" % WS_KF)
        a("s_mov_b32 exec_lo, -1"); a("s_mov_b32 exec_hi, 0")
        a.label(lab)
        a("buffer_load_dwordx2 v[12:13], v11, s[%d:%d], s50 offen sc1" % (S_WS, S_WS + 3))
        a("s_waitcnt vmcnt(0)")
        a("v_cmp_ne_u32 vcc, s%d, v13" % S_NONCE)
        a("s_sub_u32 s48, s48, 1"); a("s_cbranch_scc1 %s" % done)
        a("s_nop 2"); a("s_cbranch_vccz %s" % done)
        a("s_sleep 1"); a("s_branch %s" % lab)
        a.label(done)
        a("s_mov_b64 exec, -1")
        a("v_mov_b32 v13, v12")
        for sh in (1, 2, 4, 8):
            a("s_nop 1"); a("v_max_f32_dpp v13, v13, v13 row_shr:%d row_mask:0xf bank_mask:0xf" % sh)
        a("s_nop 1")
        a("v_readlane_b32 s48, v13, 15"); a("v_readlane_b32 s49, v13, 31"); a("s_nop 3")
        a("s_max_u32 s48, s48, s49"); a("s_or_b32 s48, s48, 1")
        a("v_mov_b32 v14, s48"); a("v_mov_b32 v12, %d" % L_KB)
        a("ds_write_b32 v12, v14")
        a("s_branch %s" % lb)
        a.label(lw)
        lsp = a.newlabel("L_kvs"); lsd = a.newlabel("L_kvsd")
        a("v_mov_b32 v12, %d" % L_KB); a("s_mov_b32 s49, 0x400000")
        a.label(lsp)
        a("ds_read_b32 v14, v12"); a("s_waitcnt lgkmcnt(0)")
        a("v_readfirstlane_b32 s48, v14")
        a("s_sub_u32 s49, s49, 1"); a("s_cbranch_scc1 %s" % lsd)
        a("s_cmp_eq_u32 s48, 0"); a("s_cbranch_scc1 %s" % lsp)
        a.label(lsd)
        a.label(lb)
        self.stamp(9)
        def patch():
            l1 = a.newlabel("L_pt")
            a("s_cmp_eq_u32 s59, 0"); a("s_cbranch_scc0 %s" % l1)
            a("v_mov_b32 v13, s48"); a("v_sqrt_f32 v13, v13")
            a("s_mov_b32 s49, 0x%x" % f2u(-(1.0 + 2.0 ** -6))); a("s_nop 0")
            a("v_mul_f32 v13, s49, v13")
            for s in range(4):
                q = R.Q + s*8 + 6
                a("v_lshlrev_b32 v12, 16, v%d" % q); a("v_mul_f32 v12, v12, v13")
                a("v_cvt_pk_bf16_f32 v12, v12, v%d" % V_ZERO)
                a("v_cndmask_b32 v%d, v%d, v12, %s" % (q, q, hi))
            a.label(l1)
        a("s_setprio 1")
        a.label("L_attn_entry")
        for r in range(64): a("v_mov_b32 v%d, 0" % (R.O + r))
        a("s_lshl_b32 s60, s3, 16"); a("s_add_u32 s60, s60, %d" % WS_KV)
        self.gstamp(2); self.stamp(10); self.stampc(30)
        a("v_mov_b32 v8, %d" % (L_CNT + 28)); a("v_mov_b32 v9, 1")
        attn.attn_loop(a, R, 2, S_WS, 60, zero_o=False, pre=patch, progress="ds_add_u32 v8, v9")
        a("s_nop 7"); a("s_nop 5")
        self.lds_inc(6)
        self.stampc(31); self.gstamp(3); self.stamp(11)
        self.lds_wait(5, 4)
        for s in range(3):
            a("s_xor_b32 s48, s3, %d" % (s + 1)); a("s_mul_i32 s48, s48, 12288"); a("s_add_u32 s48, s48, %d" % (L_RED + s * 4096))
            a("v_add_u32 v12, s48, v2")
            for k in range(4):
                a("ds_write_b128 v12, v[%d:%d] offset:%d" % (R.O + s*16 + 4*k, R.O + s*16 + 4*k + 3, k * 1024))
        a("s_waitcnt lgkmcnt(0)")
        self.lds_inc(0)
        a("s_lshl_b32 s57, s59, 2"); a("s_add_u32 s57, s57, 4")
        self.lds_wait(0, "s57")
        a("s_mul_i32 s48, s3, 12288"); a("s_add_u32 s48, s48, %d" % L_RED)
        a("v_add_u32 v12, s48, v2")
        T = R.KV
        for s in range(3):
            for k in range(4):
                a("ds_read_b128 v[%d:%d], v12 offset:%d" % (T + s*16 + 4*k, T + s*16 + 4*k + 3, s * 4096 + k * 1024))
        O = R.O + 48
        for s in range(3):
            a("s_waitcnt lgkmcnt(%d)" % (8 - 4 * s))
            for r in range(0, 16, 2):
                a("v_pk_add_f32 v[%d:%d], v[%d:%d], v[%d:%d]" % (O + r, O + r + 1, O + r, O + r + 1, T + s*16 + r, T + s*16 + r + 1))
        self.stamp(12)
        a("v_mov_b32 v12, v%d" % (O + 12)); a("v_mov_b32 v13, v%d" % (O + 12)); a("s_nop 1")
        a("v_permlane32_swap_b32 v12, v13"); a("s_nop 1")
        a("s_mov_b32 s48, 0x%x" % f2u(2.0 ** -40)); a("s_mov_b32 s49, 0x7f800000")
        a("v_cmp_le_f32 s[50:51], s48, v13"); a("v_cmp_gt_f32 vcc, s49, v13")
        a("v_rcp_f32 v13, v13"); a("s_nop 1")
        a("s_and_b64 vcc, vcc, s[50:51]"); a("s_cmp_eq_u64 vcc, -1"); a("s_cselect_b32 s56, 0, 1")
        a("s_cmp_eq_u32 s59, 0"); a("s_cselect_b32 s56, s56, 0")
        if self.force_redo: a("s_cmp_eq_u32 s59, 0"); a("s_cselect_b32 s56, 1, 0")
        a("s_lshl_b32 s48, s56, 8"); a("s_add_u32 s48, s48, 1")
        a("v_mov_b32 v14, s48"); a("v_mov_b32 v15, %d" % (L_CNT + 36)); a("s_mov_b64 exec, 1"); a("ds_add_u32 v15, v14"); a("s_mov_b64 exec, -1")
        lskip = a.newlabel("L_nopub")
        a("s_or_b32 s48, s56, s58"); a("s_cmp_lg_u32 s48, 0"); a("s_cbranch_scc1 %s" % lskip)
        a("v_mul_f32 v12, v13, v10"); a("v_mul_f32 v13, v13, v10")
        for r in range(0, 16, 2): a("v_pk_mul_f32 v[%d:%d], v[12:13], v[%d:%d]" % (O + r, O + r + 1, O + r, O + r + 1))
        P = R.P
        for i in range(8): a("v_cvt_pk_bf16_f32 v%d, v%d, v%d" % (P + i, O + 2*i, O + 2*i + 1))
        a("v_cndmask_b32 v%d, v%d, v%d, %s" % (P + 6, P + 6, V_ZERO, hi)); a("v_cndmask_b32 v%d, v%d, v%d, %s" % (P + 7, P + 7, V_ZERO, hi))
        a("s_lshl_b32 s48, s4, 1"); a("s_lshr_b32 s49, s3, 1"); a("s_add_u32 s48, s48, s49"); a("s_lshl_b32 s48, s48, 4")
        a("s_lshl_b32 s49, s5, 1"); a("s_add_u32 s48, s48, s49"); a("s_and_b32 s49, s3, 1"); a("s_add_u32 s48, s48, s49")
        a("s_lshl_b32 s48, s48, 11"); a("s_add_u32 s48, s48, %d" % WS_O)
        a("buffer_store_dwordx4 v[%d:%d], v2, s[%d:%d], s48 offen sc1" % (P, P + 3, S_WS, S_WS + 3))
        a("buffer_store_dwordx4 v[%d:%d], v2, s[%d:%d], s48 offen offset:1024 sc1" % (P + 4, P + 7, S_WS, S_WS + 3))
        a("s_waitcnt vmcnt(0)")
        self.stamp(13)
        a("s_lshl_b32 s52, s5, 2"); a("s_add_u32 s52, s52, s3")
        self.flag_store(WS_OF, 52)
        a("s_mov_b32 s58, 1")
        a.label(lskip)
        lv = a.newlabel("L_vd"); lvd = a.newlabel("L_vdd")
        a("v_mov_b32 v12, %d" % (L_CNT + 36)); a("s_mov_b32 s49, 0x400000")
        a.label(lv)
        a("ds_read_b32 v13, v12"); a("s_waitcnt lgkmcnt(0)"); a("v_readfirstlane_b32 s48, v13")
        a("s_sub_u32 s49, s49, 1"); a("s_cbranch_scc1 %s" % lvd)
        a("s_and_b32 s50, s48, 0xff"); a("s_cmp_lt_u32 s50, s57"); a("s_cbranch_scc1 %s" % lv)
        a.label(lvd)
        a("s_lshr_b32 s48, s48, 8"); a("s_cmp_eq_u32 s59, 0"); a("s_cselect_b32 s48, s48, 0")
        a("s_cmp_lg_u32 s48, 0"); a("s_cbranch_scc1 L_redo")
        self.lds_inc(4)
        self.stamp_flush()
        a("s_endpgm")
        a.label("L_redo")
        MX = R.S + 16
        for s in range(4):
            q = R.Q + s*8 + 6
            a("v_cndmask_b32 v%d, v%d, v%d, %s" % (q, q, V_ZERO, hi)); a("v_cndmask_b32 v%d, v%d, v%d, %s" % (q + 1, q + 1, V_ZERO, hi))
            a("v_mov_b32 v%d, 0xff800000" % (MX + s))
        a("s_lshl_b32 s60, s3, 16"); a("s_add_u32 s60, s60, %d" % WS_KV); a("s_mov_b32 s61, 16")
        a.label("L_mx")
        a("buffer_load_dwordx4 v[%d:%d], v2, s[%d:%d], s60 offen sc1" % (R.KV, R.KV + 3, S_WS, S_WS + 3))
        a("buffer_load_dwordx4 v[%d:%d], v2, s[%d:%d], s60 offen offset:1024 sc1" % (R.KV + 4, R.KV + 7, S_WS, S_WS + 3))
        a("s_waitcnt vmcnt(0)")
        for s in range(4):
            a("%s %s, %s, %s, 0" % (MF, vr(R.S, 16), vr(R.KV, 4), vr(R.Q + s*8, 4)))
            a("%s %s, %s, %s, %s" % (MF, vr(R.S, 16), vr(R.KV + 4, 4), vr(R.Q + s*8 + 4, 4), vr(R.S, 16)))
            a("s_nop 7"); a("s_nop 7")
            for r in range(0, 16, 2): a("v_max3_f32 v%d, v%d, v%d, v%d" % (MX + s, MX + s, R.S + r, R.S + r + 1))
        a("s_add_u32 s60, s60, 4096"); a("s_sub_u32 s61, s61, 1"); a("s_cmp_lg_u32 s61, 0"); a("s_cbranch_scc1 L_mx")
        a("v_and_b32 v14, 31, v1"); a("v_lshlrev_b32 v14, 2, v14")
        for s in range(4):
            a("v_mov_b32 v12, v%d" % (MX + s)); a("s_nop 1"); a("v_permlane32_swap_b32 v%d, v12" % (MX + s)); a("s_nop 1")
            a("v_max_f32 v%d, v%d, v12" % (MX + s, MX + s))
            a("s_xor_b32 s48, s3, %d" % ((s + 1) & 3)); a("s_lshl_b32 s48, s48, 2"); a("s_add_u32 s48, s48, s3"); a("s_lshl_b32 s48, s48, 7"); a("s_add_u32 s48, s48, %d" % L_RED)
            a("v_add_u32 v15, s48, v14"); a("ds_write_b32 v15, v%d" % (MX + s))
        a("s_waitcnt lgkmcnt(0)")
        self.lds_inc(11)
        self.lds_wait(11, 4)
        for s in range(4):
            a("s_xor_b32 s48, s3, %d" % ((s + 1) & 3)); a("s_lshl_b32 s48, s48, 9"); a("s_add_u32 s48, s48, %d" % L_RED)
            a("v_add_u32 v15, s48, v14")
            for w in range(4): a("ds_read_b32 v%d, v15 offset:%d" % (R.S + w, w * 128))
            a("s_waitcnt lgkmcnt(0)")
            a("v_max3_f32 v12, v%d, v%d, v%d" % (R.S, R.S + 1, R.S + 2)); a("v_max_f32 v12, v12, v%d" % (R.S + 3))
            a("v_sub_f32 v12, 0, v12")
            a("v_and_b32 v13, 0xffff0000, v12"); a("v_sub_f32 v12, v12, v13")
            a("v_and_b32 v15, 0xffff0000, v12"); a("v_sub_f32 v12, v12, v15")
            a("v_lshrrev_b32 v13, 16, v13"); a("v_or_b32 v13, v13, v15")
            a("v_lshrrev_b32 v12, 16, v12")
            q = R.Q + s*8 + 6
            a("v_cndmask_b32 v%d, v%d, v13, %s" % (q, q, hi)); a("v_cndmask_b32 v%d, v%d, v12, %s" % (q + 1, q + 1, hi))
        self.lds_inc(12)
        self.lds_wait(12, 4)
        a("s_mov_b32 s59, 1")
        a("s_branch L_attn_entry")

    def helper_wave(self):
        a = self.a
        LR, LI, CR, CI, L16R, L16I, MUR, MUI, M2R, M2I, L32R, L32I = range(212, 224)
        SEGV, CACC, GR, DC, XR = 64, 128, 192, 208, 224
        hi = "s[%d:%d]" % (S_HI, S_HI + 1)
        a("s_sub_u32 s61, s3, 4"); a("s_lshr_b32 s62, s61, 1"); a("s_and_b32 s63, s61, 1")
        a("s_lshl_b32 s48, s62, 7"); a("s_add_u32 s48, s48, %d" % L_G)
        a("v_lshrrev_b32 v14, 5, v1"); a("v_lshlrev_b32 v13, 6, v14"); a("v_add_u32 v13, s48, v13")
        for aa in range(4): a("ds_read_b128 v[%d:%d], v13 offset:%d" % (GR + 4*aa, GR + 4*aa + 3, aa * 16))
        a("v_and_b32 v12, 31, v1"); a("v_lshrrev_b32 v13, 3, v12")
        a("v_and_b32 v12, 7, v1"); a("v_lshlrev_b32 v12, 1, v12"); a("v_lshl_add_u32 v12, v14, 11, v12")
        a("s_add_u32 s49, s5, 7"); a("s_sub_u32 s49, s49, s%d" % S_C0); a("s_cmp_ge_u32 s49, 7"); a("s_cselect_b32 s48, 7, 0"); a("s_sub_u32 s49, s49, s48")
        a("s_lshl_b32 s48, s62, 12"); a("s_lshl_b32 s49, s49, 13"); a("s_add_u32 s48, s48, s49"); a("s_lshl_b32 s49, s63, 6"); a("s_add_u32 s48, s48, s49")
        a("v_add_u32 v12, s48, v12")
        for j in range(4):
            a("v_xor_b32 v15, %d, v13" % j); a("v_lshl_add_u32 v%d, v15, 4, v12" % (72 + j)); a("v_xor_b32 v%d, 64, v%d" % (76 + j, 72 + j))
        for r in range(16):
            sw = r >> 1
            a("ds_read_u16 v%d, v%d offset:%d" % (XR + r, 72 + (sw & 3) + 4 * (sw >> 2), r * 128))
        a("s_setprio 3")
        self.stamp(8)
        self.hexit(0)
        self.h_epilogue_pass1()
        a("s_waitcnt lgkmcnt(0)")
        self.lds_inc(8)
        self.lds_wait(8, 4)
        a("s_lshl_b32 s48, s63, 8"); a("s_add_u32 s48, s48, %d" % L_SEG)
        a("v_and_b32 v13, 31, v1"); a("v_lshlrev_b32 v13, 3, v13"); a("v_add_u32 v13, s48, v13")
        for sg in range(4): a("ds_read_b64 v[%d:%d], v13 offset:%d" % (SEGV + 2*sg, SEGV + 2*sg + 1, sg * 512))
        a("s_waitcnt lgkmcnt(0)")
        def cmad(dr, di, ar, ai, mr, mi, er, ei):
            a("v_fma_f32 v%d, v%d, v%d, v%d" % (dr, ar, mr, er)); a("v_fma_f32 v%d, v%d, v%d, v%d" % (di, ai, mr, ei))
            a("v_fma_f32 v%d, -v%d, v%d, v%d" % (dr, ai, mi, dr)); a("v_fma_f32 v%d, v%d, v%d, v%d" % (di, ar, mi, di))
        e0, e1, e2, e3 = SEGV, SEGV + 2, SEGV + 4, SEGV + 6
        cmad(72, 73, e0, e0 + 1, L16R, L16I, e1, e1 + 1)
        cmad(74, 75, 72, 73, L16R, L16I, e2, e2 + 1)
        cmad(80, 81, 74, 75, L16R, L16I, e3, e3 + 1)
        a("v_mov_b32 v12, %d" % L_NON); a("ds_read_b32 v13, v12"); a("s_waitcnt lgkmcnt(0)"); a("v_readfirstlane_b32 s%d, v13" % S_NONCE)
        self.stamp(9)
        a("s_nop 1")
        a("v_mov_b32 v82, s%d" % S_NONCE); a("v_mov_b32 v83, s%d" % S_NONCE)
        a("s_lshl_b32 s54, s5, 10"); a("s_lshl_b32 s49, s63, 9"); a("s_add_u32 s54, s54, s49"); a("s_add_u32 s54, s54, %d" % WS_E)
        lne = a.newlabel("L_noE"); lz0 = a.newlabel("L_z0")
        a("s_mov_b32 exec_hi, 0")
        a("s_cmp_eq_u32 s62, 0"); a("s_cbranch_scc0 %s" % lz0)
        a("s_add_u32 s48, s4, 1"); a("s_mul_i32 s48, s48, 7168"); a("s_add_u32 s48, s48, s54")
        a("buffer_store_dwordx4 v[80:83], v2, s[%d:%d], s48 offen sc1" % (S_WS, S_WS + 3))
        a("s_branch %s" % lne)
        a.label(lz0)
        a("s_cmp_eq_u32 s4, 0"); a("s_cbranch_scc0 %s" % lne)
        a("v_mov_b32 v80, 0"); a("v_mov_b32 v81, 0")
        a("buffer_store_dwordx4 v[80:83], v2, s[%d:%d], s54 offen sc1" % (S_WS, S_WS + 3))
        a.label(lne)
        a("s_mov_b64 exec, -1")
        self.hexit(2)
        lr1 = a.newlabel("L_rt1"); lrd = a.newlabel("L_rtd")
        a("s_cmp_eq_u32 s62, 0"); a("s_cbranch_scc0 %s" % lr1)
        a("v_cndmask_b32 v76, v%d, v%d, %s" % (V_ZERO, e0, hi)); a("v_cndmask_b32 v77, v%d, v%d, %s" % (V_ZERO, e0 + 1, hi))
        a("v_mov_b32 v12, 1.0")
        a("v_cndmask_b32 v78, v12, v%d, %s" % (L16R, hi)); a("v_cndmask_b32 v79, v%d, v%d, %s" % (V_ZERO, L16I, hi))
        a("s_branch %s" % lrd)
        a.label(lr1)
        a("v_cndmask_b32 v76, v72, v74, %s" % hi); a("v_cndmask_b32 v77, v73, v75, %s" % hi)
        a("v_mul_f32 v12, v%d, v%d" % (L32R, L16R)); a("v_fma_f32 v12, -v%d, v%d, v12" % (L32I, L16I))
        a("v_mul_f32 v13, v%d, v%d" % (L32R, L16I)); a("v_fma_f32 v13, v%d, v%d, v13" % (L32I, L16R))
        a("v_cndmask_b32 v78, v%d, v12, %s" % (L32R, hi)); a("v_cndmask_b32 v79, v%d, v13, %s" % (L32I, hi))
        a.label(lrd)
        a("v_and_b32 v12, 31, v1"); a("v_lshrrev_b32 v13, 3, v12"); a("v_and_b32 v14, 7, v1"); a("v_lshlrev_b32 v14, 1, v14")
        a("v_lshrrev_b32 v15, 5, v1"); a("v_lshl_add_u32 v14, v15, 11, v14")
        a("s_lshl_b32 s55, s61, 12"); a("s_add_u32 s55, s55, %d" % L_RED); a("v_add_u32 v14, s55, v14")
        for jx in range(4):
            a("v_xor_b32 v15, %d, v13" % jx); a("v_lshl_add_u32 v%d, v15, 4, v14" % (86 + jx))
        a("v_mov_b32 v13, v30"); a("v_lshrrev_b32 v14, 5, v1")
        self.xfrag_addrs(90, add_sreg=55)
        a("v_mov_b32 v80, 0"); a("v_mov_b32 v81, 0")
        lnoh = a.newlabel("L_noH")
        a("s_cmp_eq_u32 s4, 0"); a("s_cbranch_scc1 %s" % lnoh)
        a("s_add_u32 s56, s4, 1"); a("s_lshr_b32 s56, s56, 1")
        a("v_and_b32 v12, 31, v1"); a("v_lshlrev_b32 v12, 4, v12"); a("v_mov_b32 v13, 7168"); a("v_cndmask_b32 v13, v13, v%d, %s" % (V_ZERO, hi)); a("v_add_u32 v82, v12, v13")
        a("s_sub_u32 s57, s4, 1"); a("s_mul_i32 s57, s57, 7168"); a("s_add_u32 s57, s57, s54")
        a("s_mov_b32 s58, 0x40000")
        EB = 128
        lp = a.newlabel("L_pe"); lld = a.newlabel("L_pel"); lck = a.newlabel("L_pec"); lok = a.newlabel("L_peo")
        self.lds_wait(7, 256, sleep=4)
        lq = a.newlabel("L_pq"); lqd = a.newlabel("L_pqd")
        a.label(lq)
        a("buffer_load_dwordx4 v[%d:%d], v82, s[%d:%d], s57 offen sc1" % (EB, EB + 3, S_WS, S_WS + 3))
        a("s_waitcnt vmcnt(0)")
        a("v_cmp_ne_u32 vcc, s%d, v%d" % (S_NONCE, EB + 2))
        a("s_sub_u32 s58, s58, 1"); a("s_cbranch_scc1 %s" % lqd)
        a("s_nop 2"); a("s_cbranch_vccz %s" % lqd)
        a("s_sleep 6"); a("s_branch %s" % lq)
        a.label(lqd)
        a.label(lp)
        a("s_mov_b32 s48, s57")
        for i in range(16):
            if i: a("s_cmp_le_u32 s56, %d" % i); a("s_cbranch_scc1 %s" % lld) if i else None
            a("buffer_load_dwordx4 v[%d:%d], v82, s[%d:%d], s48 offen sc1" % (EB + 4*i, EB + 4*i + 3, S_WS, S_WS + 3))
            a("s_sub_u32 s48, s48, 14336")
        a.label(lld)
        a("s_waitcnt vmcnt(0)")
        a("v_mov_b32 v83, v%d" % (EB + 2)); a("v_mov_b32 v84, v%d" % (EB + 2))
        for i in range(1, 16):
            a("s_cmp_le_u32 s56, %d" % i); a("s_cbranch_scc1 %s" % lck)
            a("v_min_u32 v83, v83, v%d" % (EB + 4*i + 2)); a("v_max_u32 v84, v84, v%d" % (EB + 4*i + 2))
        a.label(lck)
        a("v_xor_b32 v83, s%d, v83" % S_NONCE); a("v_xor_b32 v84, s%d, v84" % S_NONCE); a("v_or_b32 v83, v83, v84")
        a("v_cmp_ne_u32 vcc, 0, v83")
        a("s_sub_u32 s58, s58, 1"); a("s_cbranch_scc1 %s" % lok)
        a("s_nop 2"); a("s_cbranch_vccz %s" % lok)
        a("s_sleep 6"); a("s_branch %s" % lp)
        a.label(lok)
        self.stamp(10)
        for i in range(15, -1, -1):
            ls = a.newlabel("L_hs")
            if i: a("s_cmp_le_u32 s56, %d" % i); a("s_cbranch_scc1 %s" % ls) if i else None
            e = EB + 4 * i
            a("v_pk_fma_f32 v[84:85], v[%d:%d], v[80:81], v[%d:%d] op_sel:[0,0,0] op_sel_hi:[0,1,1]" % (M2R, M2I, e, e + 1))
            a("v_pk_fma_f32 v[80:81], v[%d:%d], v[80:81], v[84:85] op_sel:[1,1,0] op_sel_hi:[1,0,1] neg_lo:[1,0,0]" % (M2R, M2I))
            if i: a.label(ls)
        a("v_mul_f32 v84, v%d, v80" % MUR); a("v_fma_f32 v84, -v%d, v81, v84" % MUI)
        a("v_mul_f32 v85, v%d, v81" % MUR); a("v_fma_f32 v85, v%d, v80, v85" % MUI)
        a("v_cndmask_b32 v80, v80, v84, %s" % hi); a("v_cndmask_b32 v81, v81, v85, %s" % hi)
        a("v_mov_b32 v84, v80"); a("v_mov_b32 v85, v81"); a("s_nop 1")
        a("v_permlane32_swap_b32 v80, v84"); a("v_permlane32_swap_b32 v81, v85"); a("s_nop 1")
        a("v_add_f32 v80, v80, v84"); a("v_add_f32 v81, v81, v85")
        a.label(lnoh)
        cmad(12, 13, 80, 81, 78, 79, 76, 77)
        RE, IM = 32, 48
        for r in range(16):
            self.scan_step(12, RE + r, IM + r, 12)
            a("v_cvt_pk_bf16_f32 v%d, v12, -v13" % (RE + r))
            sw = r >> 1
            a("ds_write_b16 v%d, v%d offset:%d" % (86 + (sw & 3), RE + r, r * 128 + ((0 ^ (sw >> 2)) * 64)))
            a("ds_write_b16_d16_hi v%d, v%d offset:%d" % (86 + (sw & 3), RE + r, r * 128 + ((1 ^ (sw >> 2)) * 64)))
        a("s_lshl_b32 s48, s4, 1"); a("s_add_u32 s48, s48, s62"); a("s_mul_i32 s48, s48, 56")
        a("s_lshl_b32 s49, s5, 2"); a("s_add_u32 s48, s48, s49"); a("s_lshl_b32 s49, s63, 1"); a("s_add_u32 s48, s48, s49")
        a("s_lshl_b32 s48, s48, 10"); a("s_add_u32 s48, s48, %d" % WS_H); a("s_add_u32 s49, s48, %d" % (28 * 1024))
        a("s_waitcnt lgkmcnt(0)")
        for s in range(4): a("ds_read_b128 v[%d:%d], v%d" % (64 + 4*s, 64 + 4*s + 3, 90 + s))
        a("s_waitcnt lgkmcnt(0)")
        a("buffer_store_dwordx4 v[64:67], v2, s[%d:%d], s48 offen sc1" % (S_WS, S_WS + 3))
        a("buffer_store_dwordx4 v[68:71], v2, s[%d:%d], s48 offen offset:1024 sc1" % (S_WS, S_WS + 3))
        a("buffer_store_dwordx4 v[72:75], v2, s[%d:%d], s49 offen sc1" % (S_WS, S_WS + 3))
        a("buffer_store_dwordx4 v[76:79], v2, s[%d:%d], s49 offen offset:1024 sc1" % (S_WS, S_WS + 3))
        self.lds_inc(5)
        self.stamp(11)
        a("s_waitcnt vmcnt(0)")
        self.stamp(12); self.gstamp(4)
        a("s_lshl_b32 s52, s5, 2"); a("s_add_u32 s52, s52, s61")
        self.flag_store(WS_HF, 52)
        self.lds_wait(10, 4)
        for j in range(3):
            a("s_add_u32 s52, s61, %d" % (4 * j)); a("s_cmp_ge_u32 s52, 7")
            a("s_cselect_b32 s%d, s%d, s%d" % (S_T, P_CIM, P_CRE)); a("s_cselect_b32 s%d, s%d, s%d" % (S_T + 1, P_CIM + 1, P_CRE + 1))
            a("s_cselect_b32 s53, 7, 0")
            a("s_mov_b32 s%d, 0x%x" % (S_T + 2, 448 * 896)); a("s_mov_b32 s%d, 0x20000" % (S_T + 3))
            a("s_sub_u32 s53, s52, s53"); a("s_lshl_b32 s53, s53, 7"); a("s_mul_i32 s48, s5, %d" % (64 * 896)); a("s_add_u32 s53, s53, s48")
            a("s_lshl_b32 s52, s52, 13")
            for g in range(2):
                a("s_add_u32 m0, s52, %d" % (g * 4096))
                if g: a("s_add_u32 s53, s53, %d" % (4 * 7168))
                else: a("s_nop 0")
                for i in range(4): a("buffer_load_dwordx4 v%d, s[%d:%d], s53 offen offset:%d lds" % (V_D + i, S_T, S_T + 3, 1024 * i))
                a("s_sleep %d" % self.spread)
        srd(a, S_T2, P_CIM, 448 * 896)
        a("v_and_b32 v12, 31, v1"); a("v_mul_u32_u24 v12, 896, v12"); a("v_lshrrev_b32 v13, 5, v1"); a("v_lshl_add_u32 v12, v13, 4, v12")
        a("s_lshl_b32 s48, s61, 6"); a("s_add_u32 s48, s48, %d" % (20 * 32)); a("s_mul_i32 s49, s5, %d" % (64 * 896)); a("s_add_u32 s48, s48, s49")
        a("s_mul_i32 s49, s63, %d" % (32 * 896)); a("s_add_u32 s50, s48, s49")
        a("s_xor_b32 s49, s63, 1"); a("s_mul_i32 s49, s49, %d" % (32 * 896)); a("s_add_u32 s51, s48, s49")
        for kk in range(2):
            a("buffer_load_dwordx4 v[%d:%d], v12, s[%d:%d], s50 offen offset:%d" % (DC + kk*8, DC + kk*8 + 3, S_T2, S_T2 + 3, kk * 32))
            a("buffer_load_dwordx4 v[%d:%d], v12, s[%d:%d], s51 offen offset:%d" % (DC + kk*8 + 4, DC + kk*8 + 7, S_T2, S_T2 + 3, kk * 32))
        self.hexit(3)
        self.lds_wait(7, 1024, sleep=4)
        self.poll_flags(WS_HF, 0x0fffffff, sleep=8)
        self.stamp(13)
        self.hexit(4)
        HF = 16
        for rtp in range(2):
            a("s_xor_b32 s48, s62, %d" % rtp); a("s_lshl_b32 s49, s4, 1"); a("s_add_u32 s48, s48, s49"); a("s_mul_i32 s48, s48, %d" % (56 * 1024))
            a("s_add_u32 s48, s48, %d" % WS_H)
            a("s_lshl_b32 s49, s61, 12"); a("s_add_u32 s50, s48, s49")
            for j in range(3):
                for s in range(4):
                    r = HF + ((j * 4 + s) * 2 + rtp) * 4
                    a("buffer_load_dwordx4 v[%d:%d], v2, s[%d:%d], s50 offen offset:%d sc1" % (r, r + 3, S_WS, S_WS + 3, s * 1024))
                a("s_add_u32 s50, s50, %d" % (16 * 1024))
            a("s_lshl_b32 s49, s61, 11"); a("s_add_u32 s50, s48, s49"); a("s_add_u32 s50, s50, %d" % (48 * 1024))
            for kk in range(2):
                r = HF + ((12 + kk) * 2 + rtp) * 4
                a("buffer_load_dwordx4 v[%d:%d], v2, s[%d:%d], s50 offen offset:%d sc1" % (r, r + 3, S_WS, S_WS + 3, kk * 1024))
        self.hexit(5)
        self.lds_wait(6, 4, sleep=3)
        self.stamp(14)
        self.hexit(6)
        a("s_lshl_b32 s48, s61, 13"); a("s_lshl_b32 s49, s63, 12"); a("s_add_u32 s48, s48, s49")
        a("v_and_b32 v13, 31, v1"); a("v_lshrrev_b32 v14, 5, v1")
        self.xfrag_addrs(240, add_sreg=48)
        for s in range(4): a("v_xor_b32 v%d, 0x1000, v%d" % (244 + s, 240 + s))
        for r in range(16): a("v_lshlrev_b32 v%d, 16, v%d" % (XR + r, XR + r))
        for r in range(0, 16, 2): a("v_pk_mul_f32 v[%d:%d], v[8:9], v[%d:%d]" % (XR + r, XR + r + 1, XR + r, XR + r + 1))
        a("s_waitcnt vmcnt(0)")
        def breads(n, buf):
            j, s = n // 4, n % 4
            off = (j * 32768) if j < 2 else 0
            return ["ds_read_b128 v[%d:%d], v%d offset:%d" % (buf, buf + 3, 240 + s, off), "ds_read_b128 v[%d:%d], v%d offset:%d" % (buf + 4, buf + 7, 244 + s, off)]
        srd(a, S_T, P_WO, 448 * 896)
        a("v_lshrrev_b32 v12, 3, v1"); a("v_mul_u32_u24 v12, 896, v12"); a("v_and_b32 v13, 7, v1"); a("v_lshl_add_u32 v4, v13, 4, v12")
        for i in range(1, 4): a("v_add_u32 v%d, %d, v4" % (4 + i, 6144 * i))
        def wo_group(jj):
            o = ["s_add_u32 s52, s61, %d\ns_mul_i32 s53, s52, %d\ns_lshl_b32 s48, s5, 7\ns_add_u32 s53, s53, s48\ns_lshl_b32 s52, s52, 13" % (4 * jj, 64 * 896)]
            for g in range(2):
                o.append("s_add_u32 m0, s52, %d\n%s" % (g * 4096, ("s_add_u32 s53, s53, %d" % (4 * 7168)) if g else "s_nop 0"))
                for i in range(4): o.append("buffer_load_dwordx4 v%d, s[%d:%d], s53 offen offset:%d lds" % (V_D + i, S_T, S_T + 3, 1024 * i))
            return o
        bufs = [248, DC, DC + 8]
        for x in breads(0, bufs[0]): a(x)
        first = True
        for kk in range(2):
            for rtp in range(2):
                for cp in range(2):
                    acc = CACC + (2 * rtp + cp) * 16
                    h = HF + ((12 + kk) * 2 + rtp) * 4
                    c = vr(acc, 16) if kk else (vr(XR, 16) if (rtp == 0 and cp == 0) else "0")
                    a("%s %s, %s, %s, %s" % (MF, vr(acc, 16), vr(h, 4), vr(DC + kk * 8 + 4 * cp, 4), c))
        for n in range(12):
            j, s = n // 4, n % 4
            if n == 7:
                for q in range(8): a("v_add_u32 v%d, 0x10000, v%d" % (240 + q, 240 + q))
            nxt = breads(n + 1, bufs[(n + 1) % 3]) if n + 1 < 12 else []
            for x in nxt: a(x)
            a("s_waitcnt lgkmcnt(%d)" % len(nxt))
            b = bufs[n % 3]
            mm = []
            for rtp in range(2):
                for cp in range(2):
                    acc = CACC + (2 * rtp + cp) * 16
                    h = HF + ((j * 4 + s) * 2 + rtp) * 4
                    mm.append("%s %s, %s, %s, %s" % (MF, vr(acc, 16), vr(h, 4), vr(b + 4 * cp, 4), vr(acc, 16)))
            ex = []
            if n == 4: ex = wo_group(0)
            if n == 8: ex = wo_group(1)
            interleave(a, mm, ex)
        self.stamp(15)
        self.lds_wait(4, 4)
        self.stamp(16)
        a("s_nop 7")
        for u in range(1, 4):
            a("s_xor_b32 s48, s61, %d" % u); a("s_mul_i32 s48, s48, 12288"); a("s_add_u32 s48, s48, %d" % (L_RED + (u - 1) * 4096))
            a("v_add_u32 v12, s48, v2")
            for k in range(4):
                a("ds_write_b128 v12, v[%d:%d] offset:%d" % (CACC + u*16 + 4*k, CACC + u*16 + 4*k + 3, k * 1024))
        for r in range(16): a("v_sub_f32 v%d, 1.0, v%d" % (GR + r, GR + r))
        a("s_waitcnt lgkmcnt(0)")
        self.lds_inc(1)
        self.lds_wait(1, 4)
        a("s_mul_i32 s48, s61, 12288"); a("s_add_u32 s48, s48, %d" % L_RED)
        a("v_add_u32 v12, s48, v2")
        T = 16
        for s in range(3):
            for k in range(4):
                a("ds_read_b128 v[%d:%d], v12 offset:%d" % (T + s*16 + 4*k, T + s*16 + 4*k + 3, s * 4096 + k * 1024))
        for s in range(3):
            a("s_waitcnt lgkmcnt(%d)" % (8 - 4 * s))
            for r in range(0, 16, 2):
                a("v_pk_add_f32 v[%d:%d], v[%d:%d], v[%d:%d]" % (CACC + r, CACC + r + 1, CACC + r, CACC + r + 1, T + s*16 + r, T + s*16 + r + 1))
        for r in range(0, 16, 2):
            a("v_pk_add_f32 v[%d:%d], v[%d:%d], v[%d:%d]" % (CACC + r, CACC + r + 1, CACC + r, CACC + r + 1, CACC + r, CACC + r + 1))
            a("v_pk_mul_f32 v[%d:%d], v[%d:%d], v[%d:%d]" % (CACC + r, CACC + r + 1, GR + r, GR + r + 1, CACC + r, CACC + r + 1))
        a("s_waitcnt vmcnt(0)")
        self.lds_inc(2)
        self.lds_wait(2, 4)
        def wreg(ks, cp):
            if cp == 0: return 16 + 4 * ks
            return 80 + 4 * ks if ks < 12 else 208 + 4 * (ks - 12)
        self.tr_base(14, 128, rows_per_hf=4)
        a("s_mul_i32 s48, s63, %d" % (8 * 28 * 128 + 64)); a("v_add_u32 v240, s48, v14"); a("v_xor_b32 v241, 64, v240")
        for ks in range(16):
            hh, f = ks // 2, ks % 2
            off = (28 * hh + 16 * f) * 128
            for cp in range(2):
                r = wreg(ks, cp)
                a("ds_read_b64_tr_b16 v[%d:%d], v%d offset:%d" % (r, r + 1, 240 + cp, off))
                a("ds_read_b64_tr_b16 v[%d:%d], v%d offset:%d" % (r + 2, r + 3, 240 + cp, off + 8 * 128))
            if ks % 2 == 1: a("s_waitcnt lgkmcnt(4)")
        self.stamp(17)
        self.poll_flags(WS_OF, 0xffffffff, sleep=1)
        self.stamp(18)
        def oreg(ks): return 160 + 4 * ks if ks < 12 else 224 + 4 * (ks - 12)
        a("s_lshl_b32 s48, s4, 1"); a("s_add_u32 s48, s48, s62"); a("s_lshl_b32 s48, s48, 4"); a("s_lshl_b32 s49, s63, 3"); a("s_add_u32 s48, s48, s49")
        a("s_lshl_b32 s48, s48, 11"); a("s_add_u32 s48, s48, %d" % WS_O)
        for ks in range(16):
            r = oreg(ks)
            a("buffer_load_dwordx4 v[%d:%d], v2, s[%d:%d], s48 offen offset:%d sc1" % (r, r + 3, S_WS, S_WS + 3, (ks % 4) * 1024))
            if ks % 4 == 3: a("s_add_u32 s48, s48, 4096")
        srd(a, S_T, P_OUT, 2048 * 448 * 4)
        a("v_lshrrev_b32 v12, 5, v1"); a("v_mul_u32_u24 v12, %d, v12" % (16 * 1792)); a("v_and_b32 v13, 31, v1"); a("v_lshl_add_u32 v11, v13, 2, v12")
        a("s_waitcnt lgkmcnt(0)")
        for ks in range(16):
            a("s_waitcnt vmcnt(%d)" % (15 - ks))
            a("%s %s, %s, %s, %s" % (MF, vr(CACC + 16, 16), vr(oreg(ks), 4), vr(wreg(ks, 1), 4), vr(CACC + 16, 16) if ks else "0"))
            a("%s %s, %s, %s, %s" % (MF, vr(CACC, 16), vr(oreg(ks), 4), vr(wreg(ks, 0), 4), vr(CACC, 16)))
        a("s_xor_b32 s48, s61, 1"); a("s_lshl_b32 s48, s48, 12"); a("s_add_u32 s48, s48, %d" % L_RED)
        a("v_add_u32 v12, s48, v2")
        a("s_nop 7"); a("s_nop 3")
        self.stamp(19)
        for k in range(4): a("ds_write_b128 v12, v[%d:%d] offset:%d" % (CACC + 16 + 4*k, CACC + 16 + 4*k + 3, k * 1024))
        a("s_waitcnt lgkmcnt(0)")
        self.lds_inc(3)
        a("s_lshl_b32 s52, s4, 6"); a("s_lshl_b32 s49, s62, 5"); a("s_add_u32 s52, s52, s49"); a("s_mul_i32 s52, s52, 1792")
        a("s_lshl_b32 s49, s5, 8"); a("s_add_u32 s52, s52, s49"); a("s_lshl_b32 s49, s63, 7"); a("s_add_u32 s52, s52, s49")
        self.lds_wait(3, 4)
        a("s_lshl_b32 s48, s61, 12"); a("s_add_u32 s48, s48, %d" % L_RED)
        a("v_add_u32 v12, s48, v2")
        for k in range(4): a("ds_read_b128 v[%d:%d], v12 offset:%d" % (16 + 4*k, 16 + 4*k + 3, k * 1024))
        for k in range(4):
            a("s_waitcnt lgkmcnt(%d)" % (3 - k))
            for r in range(4 * k, 4 * k + 4, 2):
                a("v_pk_add_f32 v[%d:%d], v[%d:%d], v[%d:%d]" % (CACC + r, CACC + r + 1, CACC + r, CACC + r + 1, 16 + r, 16 + r + 1))
            for r in range(4 * k, 4 * k + 4):
                if r % 2 == 0 and r > 0: a("s_add_u32 s52, s52, %d" % (2 * 1792))
                a("buffer_store_dword v%d, v11, s[%d:%d], s52 offen offset:%d" % (CACC + r, S_T, S_T + 3, (r % 2) * 1792))
        self.stamp(20)
        if self.gst:
            a("s_waitcnt vmcnt(0)"); self.gstamp(5)
        if self.stamps: a("s_waitcnt vmcnt(0)")
        self.stamp(21)
        self.stamp_flush()
        a("s_endpgm")

if __name__ == "__main__":
    k = K(debug=False, gst=("gst" in sys.argv))
    k.build()
    open("gated_mix__grouped_kv_mqa__ssm_conv_s5__prompt.s", "w").write(HEADER_COMMENT + k.text())
```

```python
import sys, math, struct
sys.path.insert(0, "gen")
from asmlib import *
import attn

NAME = "gated_mix__grouped_kv_mqa__ssm_conv_s5__prompt_kernel"

WS_KV = 0x0
WS_E  = 0x40000
WS_HF = 0x80000
WS_OF = 0x81000
WS_KF = 0x84000
WS_G  = 0x90000
WS_H  = 0x100000
WS_O  = 0x480000
WS_WO = 0x680000
WS_WF = 0x8C000
WS_END = 0x6F0000
WS_DBG = 0x700000
WS_SIZE_DBG = 0x2000000

L_X = 0
L_RING = 57344
SLOT = 24576
L_MISC = 155648
L_G = L_MISC
L_SEG = L_MISC + 512
L_KM = L_MISC + 3072
L_NON = L_MISC + 3584
L_QF = L_RING
L_TOTAL = 163840
L_CNT = 159744
L_RED = 114688
RT = 3712

S_RBK, S_HP, S_NONCE = 4, 5, 6
S_D, S_WS, S_DBG, S_T, S_T2 = 8, 24, 28, 32, 36
P_X, P_WQ, P_WK, P_WV, P_WO, P_LRE, P_LIM = 64, 66, 68, 70, 72, 76, 78
P_BRE, P_BIM, P_CRE, P_CIM, P_LDT, P_DSK, P_GW, P_OUT = 80, 82, 84, 86, 88, 90, 92, 94
P_DBG, P_WS = 96, 98
S_SO, S_STEP, S_M0, S_ISX, S_DM, S_HI = 40, 41, 42, 43, 44, 46
S_D2, S_SO2, S_STEP2, S_M02, S_CK, S_7S, S_7S2, S_C0 = 12, 16, 17, 18, 19, 20, 21, 22
V_D2 = 248

V_LANE, V_L16 = 1, 2
V_D = 4
V_DE, V_DO = 8, 9
V_GATE, V_ZERO = 240, 247

LOG2E = 1.4426950408889634
QSCALE = 28 ** -0.5 * LOG2E
def f2u(x): return struct.unpack("<I", struct.pack("<f", x))[0]
MF = "v_mfma_f32_32x32x16_bf16"
HEADER_COMMENT = "; Generated by gen/kern3.py: persistent single-kernel implementation\n"

def srd(a, s, p, nbytes):
    a("s_mov_b32 s%d, s%d" % (s, p)); a("s_mov_b32 s%d, s%d" % (s + 1, p + 1))
    a("s_mov_b32 s%d, 0x%x" % (s + 2, nbytes)); a("s_mov_b32 s%d, 0x20000" % (s + 3))

def interleave(a, mains, extras, per=None):
    n = len(mains)
    if n == 0:
        for x in extras: a(x)
        return
    per = per or (len(extras) + n - 1) // n
    k = 0
    for m in mains:
        a(m)
        for x in extras[k:k + per]: a(x)
        k += per
    for x in extras[k:]: a(x)

class K:
    def __init__(self, stop_after=None, debug=False, stamps=False, gst=False, fine=False, rot=True):
        self.fine = fine; self.gst = gst; self.a = Asm(); self.spread = 6; self.hstop = None; self.rot = rot; self.pdelay = 0; self.probe = False; self.tlbwarm = True; self.force_redo = False; self.esleep = 24; self.hf_gate = 768; self.tstride = 128; self.stage_fake = 0; self.stage_early = True; self.g_gate = 256; self.g_sleep = 16; self.e_sleep = 10; self.n0cap = 0; self.kvflag_at = 1; self.codewarm = False; self.npre = 2; self.ctouch_at = 6; self.cprobe = False; self.wo_after = False
        self.stop_after = stop_after; self.debug = debug; self.stamps = stamps

    def stamp(self, i):
        if not self.stamps: return
        a = self.a
        a("s_memrealtime s[100:101]"); a("s_waitcnt lgkmcnt(0)"); a("v_writelane_b32 v3, s100, %d" % i)
    def stampc(self, i):
        if not self.stamps: return
        a = self.a
        a("s_memtime s[100:101]"); a("s_waitcnt lgkmcnt(0)"); a("v_writelane_b32 v3, s100, %d" % i)
    def gstamp(self, i):
        if not self.gst: return
        a = self.a
        lab = a.newlabel("L_gs")
        a("s_and_b32 s100, s2, 31"); a("s_and_b32 s101, s3, 3"); a("s_or_b32 s100, s100, s101"); a("s_cmp_eq_u32 s100, 0")
        a("s_cbranch_scc0 %s" % lab)
        a("s_memrealtime s[100:101]"); a("s_waitcnt lgkmcnt(0)")
        a("v_mov_b32 v14, s100"); a("v_mov_b32 v15, %d" % (4 * i))
        a("s_mov_b64 s[100:101], exec"); a("s_mov_b64 exec, 1")
        a("buffer_atomic_umax v14, v15, s[%d:%d], 0 offen" % (S_DBG, S_DBG + 3))
        a("s_mov_b64 exec, s[100:101]")
        a.label(lab)
    def stamp_flush(self):
        if not self.stamps: return
        a = self.a
        a("s_lshl_b32 s58, s2, 3"); a("s_add_u32 s58, s58, s3"); a("s_lshl_b32 s58, s58, 8"); a("s_add_u32 s58, s58, %d" % (WS_DBG + 0x800000))
        a("v_lshlrev_b32 v14, 2, v1")
        a("buffer_store_dword v3, v14, s[%d:%d], s58 offen" % (S_WS, S_WS + 3))
        a("s_waitcnt vmcnt(0)")
    def dump(self, base, nregs, slot_bytes, idx_sreg, off):
        a = self.a
        a("s_mul_i32 s58, s%d, %d" % (idx_sreg, slot_bytes)); a("s_add_u32 s58, s58, %d" % (WS_DBG + off))
        a("v_lshlrev_b32 v12, 2, v1")
        for r in range(nregs):
            if r % 16 == 0 and r: a("s_add_u32 s58, s58, 4096")
            a("buffer_store_dword v%d, v12, s[%d:%d], s58 offen offset:%d" % (base + r, S_WS, S_WS + 3, (r % 16) * 256))

    def prologue(self):
        a = self.a
        a("s_cmp_ge_u32 s2, 256")
        a("s_cbranch_scc1 L_exit")
        a("s_load_dwordx16 s[64:79], s[0:1], 0")
        a("s_load_dwordx16 s[80:95], s[0:1], 64")
        a("s_load_dwordx4 s[96:99], s[0:1], 128")
        if self.gst: a("s_memrealtime s[62:63]")
        if self.stamps:
            a("v_mov_b32 v3, 0"); self.stamp(0); self.stampc(32)
        a("v_lshrrev_b32 v12, 6, v0")
        a("v_and_b32 v1, 63, v0")
        a("s_and_b32 s48, s2, 7")
        a("v_readfirstlane_b32 s3, v12")
        a("s_lshr_b32 s49, s2, 3"); a("s_and_b32 s5, s49, 7"); a("s_lshr_b32 s49, s49, 3"); a("s_lshl_b32 s4, s48, 2"); a("s_add_u32 s4, s4, s49")
        a("v_lshlrev_b32 v2, 4, v1")
        a("s_mov_b32 s%d, 0" % S_HI); a("s_mov_b32 s%d, -1" % (S_HI + 1))
        a("v_mov_b32 v%d, 0" % V_ZERO)
        a("s_lshl_b32 s50, s49, 1"); a("s_add_u32 s50, s50, s5"); a("s_cmp_ge_u32 s50, 7"); a("s_cselect_b32 s51, 7, 0"); a("s_sub_u32 s50, s50, s51")
        a("s_cmp_ge_u32 s50, 7"); a("s_cselect_b32 s51, 7, 0"); a("s_sub_u32 s%d, s50, s51" % S_C0)
        if not self.rot: a("s_mov_b32 s%d, 0" % S_C0)
        a("s_cmp_eq_u32 s5, 7"); a("s_cselect_b32 s%d, 0, s%d" % (S_C0, S_C0))
        a("v_lshrrev_b32 v12, 3, v1"); a("v_and_b32 v13, 7, v1"); a("v_lshrrev_b32 v14, 4, v1")
        a("v_mul_u32_u24 v15, 896, v12")
        a("v_xor_b32 v14, v13, v14")
        a("v_lshl_add_u32 v%d, v14, 4, v15" % V_D)
        a("v_xor_b32 v14, 4, v14")
        a("v_lshl_add_u32 v%d, v14, 4, v15" % (V_D + 1))
        a("v_lshl_add_u32 v11, v13, 4, v15")
        a("v_add_u32 v%d, %d, v%d" % (V_D + 2, 2 * 6144, V_D)); a("v_add_u32 v%d, %d, v%d" % (V_D + 3, 3 * 6144, V_D + 1))
        a("v_add_u32 v%d, %d, v%d" % (V_D + 1, 6144, V_D + 1))
        a("s_cmp_ge_u32 s3, 4"); a("s_cbranch_scc1 L_hw")

    def a_setup(self):
        a = self.a
        for i in range(4): a("v_mov_b32 v%d, v%d" % (V_D2 + i, V_D + i))
        a("s_and_b32 s50, s3, 1"); a("s_lshr_b32 s51, s3, 1")
        a("s_cmp_eq_u32 s51, 1")
        a("s_cselect_b64 s[52:53], -1, 0")
        a("s_cselect_b32 s%d, 0x7f7f7f7f, -1" % S_DM); a("s_cselect_b32 s%d, 0x7f7f7f7f, -1" % (S_DM + 1))
        for i in range(4):
            a("v_add_u32 v12, %d, v11" % (6144 * i)) if i else a("v_mov_b32 v12, v11")
            a("v_cndmask_b32 v%d, v%d, v12, s[52:53]" % (V_D + i, V_D + i))
        a("s_lshl_b32 s54, s50, 5")
        a("s_lshl_b32 s55, s4, 6"); a("s_add_u32 s55, s55, s54"); a("s_mul_i32 s55, s55, 896")
        a("s_mul_i32 s56, s54, 896"); a("s_mul_i32 s57, s5, 112"); a("s_add_u32 s56, s56, s57")
        a("s_lshl_b32 s58, s50, 12")
        a("s_cmp_eq_u32 s51, 0")
        a("s_mov_b32 s59, %d" % (64 * 896))
        a("s_cselect_b32 s%d, s55, s56" % S_SO); a("s_cselect_b32 s%d, 128, s59" % S_STEP)
        a("s_mov_b32 s59, %d" % SLOT); a("s_cselect_b32 s%d, 0x2000, s59" % S_ISX)
        a("s_mov_b32 s59, %d" % (L_RING + 4 * SLOT)); a("s_cselect_b32 s7, 0x7fffffff, s59")
        a("s_cselect_b32 s59, 0, %d" % L_RING); a("s_add_u32 s%d, s58, s59" % S_M0)
        a("s_lshl_b32 s57, s5, 6"); a("s_add_u32 s57, s57, s54"); a("s_mul_i32 s%d, s57, 896" % S_SO2); a("s_mov_b32 s%d, 128" % S_STEP2)
        a("s_lshl_b32 s59, s3, 12"); a("s_add_u32 s%d, s59, %d" % (S_M02, L_RING + 8192))
        lab = a.newlabel("L_pa")
        a("s_cmp_eq_u32 s5, 7"); a("s_cbranch_scc0 %s" % lab)
        a("s_lshl_b32 s%d, s50, 11" % S_SO2); a("s_mov_b32 s%d, 3584" % S_STEP2)
        a("s_lshl_b32 s59, s51, 12"); a("s_lshl_b32 s60, s50, 11"); a("s_add_u32 s59, s59, s60"); a("s_add_u32 s%d, s59, %d" % (S_M02, L_RING + 8192))
        a("v_mov_b32 v%d, v2" % V_D2); a("v_mov_b32 v%d, v2" % (V_D2 + 1))
        a.label(lab)
        a("s_mul_i32 s59, s%d, s%d" % (S_C0, S_STEP)); a("s_add_u32 s%d, s%d, s59" % (S_SO, S_SO))
        a("s_mul_i32 s59, s%d, s%d" % (S_C0, S_STEP2)); a("s_add_u32 s%d, s%d, s59" % (S_SO2, S_SO2))
        a("s_mul_i32 s%d, s%d, 7" % (S_7S, S_STEP)); a("s_mul_i32 s%d, s%d, 7" % (S_7S2, S_STEP2)); a("s_mov_b32 s%d, s%d" % (S_CK, S_C0))
        a("s_waitcnt lgkmcnt(0)")
        self.stamp(1)
        a("s_cmp_eq_u32 s51, 0")
        a("s_cselect_b32 s%d, s%d, s%d" % (S_D, P_X, P_WQ)); a("s_cselect_b32 s%d, s%d, s%d" % (S_D + 1, P_X + 1, P_WQ + 1))
        a("s_mov_b32 s59, 0x%x" % (448 * 896)); a("s_cselect_b32 s%d, 0x%x, s59" % (S_D + 2, 2048 * 896)); a("s_mov_b32 s%d, 0x20000" % (S_D + 3))
        a("s_cmp_eq_u32 s5, 7")
        a("s_cselect_b32 s54, s%d, s%d" % (P_WK, P_BRE)); a("s_cselect_b32 s55, s%d, s%d" % (P_WK + 1, P_BRE + 1))
        a("s_cselect_b32 s56, s%d, s%d" % (P_WV, P_BIM)); a("s_cselect_b32 s57, s%d, s%d" % (P_WV + 1, P_BIM + 1))
        a("s_cselect_b32 s%d, 0x%x, s59" % (S_D2 + 2, 448 * 56))
        a("s_cmp_eq_u32 s51, 0")
        a("s_cselect_b32 s%d, s54, s56" % S_D2); a("s_cselect_b32 s%d, s55, s57" % (S_D2 + 1)); a("s_mov_b32 s%d, 0x20000" % (S_D2 + 3))

    def dma_group(self, n2):
        o = []
        l1 = ["buffer_load_dwordx4 v%d, s[%d:%d], s%d offen offset:%d lds" % (V_D + i, S_D, S_D + 3, S_SO, 1024 * i) for i in range(4)]
        l2 = ["buffer_load_dwordx4 v%d, s[%d:%d], s%d offen offset:%d lds" % (V_D2 + i, S_D2, S_D2 + 3, S_SO2, 1024 * i) for i in range(n2)]
        o.append("\n".join(["s_mov_b32 m0, s%d" % S_M0, "s_mov_b64 exec, s[%d:%d]" % (S_DM, S_DM + 1)] + l1 + ["s_mov_b64 exec, -1"]))
        o.append("s_mov_b32 m0, s%d\ns_nop 0\n%s" % (S_M02, l2[0]))
        o += l2[1:]
        o.append("s_add_u32 s%d, s%d, s%d\ns_add_u32 s%d, s%d, s%d\ns_add_u32 s%d, s%d, s%d\ns_add_u32 s%d, s%d, %d" % (S_SO, S_SO, S_STEP, S_SO2, S_SO2, S_STEP2, S_M0, S_M0, S_ISX, S_M02, S_M02, SLOT))
        o.append("s_cmp_ge_u32 s%d, s7\ns_cselect_b32 s48, %d, 0\ns_sub_u32 s%d, s%d, s48" % (S_M0, 4 * SLOT, S_M0, S_M0))
        o.append("s_cmp_ge_u32 s%d, %d\ns_cbranch_scc0 .+8\ns_sub_u32 s%d, s%d, %d" % (S_M02, L_RING + 4 * SLOT, S_M02, S_M02, 4 * SLOT) if False else
                 "s_mov_b32 s49, %d\ns_cmp_ge_u32 s%d, s49\ns_cselect_b32 s48, %d, 0\ns_sub_u32 s%d, s%d, s48" % (L_RING + 4 * SLOT, S_M02, 4 * SLOT, S_M02, S_M02))
        o.append("s_add_u32 s%d, s%d, 1\ns_cmp_eq_u32 s%d, 7\ns_cselect_b32 s%d, 0, s%d\ns_cselect_b32 s48, s%d, 0\ns_cselect_b32 s49, s%d, 0\ns_sub_u32 s%d, s%d, s48\ns_sub_u32 s%d, s%d, s49"
                 % (S_CK, S_CK, S_CK, S_CK, S_CK, S_7S, S_7S2, S_SO, S_SO, S_SO2, S_SO2))
        return o

    def gate_write(self, c):
        slotoff = L_RING + (c % 4) * SLOT
        return ["\n".join(["v_add_u32 v11, %d, v10" % slotoff, "s_mov_b64 exec, s[60:61]",
                "ds_write2_b32 v11, v%d, v%d offset0:0 offset1:1" % (V_GATE + c, V_ZERO), "s_mov_b64 exec, -1"])]

    def rest_setup(self, hp7):
        a = self.a
        srd(a, S_WS, P_WS, WS_SIZE_DBG if self.debug else WS_END)
        srd(a, S_DBG, P_DBG, 256)
        if self.gst:
            l = a.newlabel("L_gs0")
            a("s_and_b32 s100, s2, 31"); a("s_and_b32 s101, s3, 3"); a("s_or_b32 s100, s100, s101"); a("s_cmp_eq_u32 s100, 0")
            a("s_cbranch_scc0 %s" % l)
            a("s_not_b32 s62, s62"); a("v_mov_b32 v14, s62"); a("v_mov_b32 v15, 0"); a("s_mov_b64 exec, 1")
            a("buffer_atomic_umax v14, v15, s[%d:%d], 0 offen" % (S_DBG, S_DBG + 3)); a("s_mov_b64 exec, -1")
            a.label(l)
        if not hp7:
            l = a.newlabel("L_non")
            a("s_cmp_lg_u32 s2, 0"); a("s_cbranch_scc1 %s" % l)
            a("s_cmp_lg_u32 s3, 0"); a("s_cbranch_scc1 %s" % l)
            a("s_memrealtime s[50:51]"); a("s_waitcnt lgkmcnt(0)"); a("s_or_b32 s50, s50, 1")
            a("v_mov_b32 v12, s50"); a("v_mov_b32 v13, 124"); a("s_mov_b64 exec, 1")
            a("buffer_store_dword v12, v13, s[%d:%d], 0 offen sc1" % (S_DBG, S_DBG + 3))
            a("s_mov_b64 exec, -1")
            a.label(l)

    def xfrag_addrs(self, base, add_sreg=None, add_const=0):
        a = self.a
        a("v_lshrrev_b32 v15, 1, v13"); a("v_and_b32 v15, 7, v15")
        a("v_lshlrev_b32 v12, 7, v13")
        if add_sreg is not None: a("v_add_u32 v12, s%d, v12" % add_sreg)
        if add_const: a("v_add_u32 v12, %d, v12" % add_const)
        a("v_xor_b32 v15, v15, v14")
        for s in range(4):
            a("v_xor_b32 v11, %d, v15" % (2 * s))
            a("v_lshl_add_u32 v%d, v11, 4, v12" % (base + s))

    def tr_base(self, dst, pitch, rows_per_hf=8):
        a = self.a
        a("v_lshrrev_b32 v12, 5, v1"); a("v_mul_u32_u24 v12, %d, v12" % rows_per_hf)
        a("v_bfe_u32 v13, v1, 2, 2"); a("v_add_u32 v12, v12, v13"); a("v_mul_u32_u24 v12, %d, v12" % pitch)
        a("v_bfe_u32 v13, v1, 4, 1"); a("v_lshl_add_u32 v12, v13, 5, v12")
        a("v_and_b32 v13, 3, v1"); a("v_lshl_add_u32 v%d, v13, 3, v12" % dst)

    def loader_loop(self, n2):
        a = self.a
        ndma = 4 + n2
        for c in range(7):
            later = min(6, c + 2) - c
            if c == 0: later = self.npre - 1
            if self.fine: self.stampc(34 + 3 * c)
            a("s_waitcnt vmcnt(%d)" % (ndma * later))
            if c == 0:
                for cc in range(3):
                    for x in self.gate_write(cc): a(x)
            if self.fine: self.stampc(35 + 3 * c)
            a("s_waitcnt lgkmcnt(0)")
            if c == 0: self.stamp(2); self.gstamp(6)
            a("s_barrier")
            if self.fine: self.stampc(36 + 3 * c)
            if c in (0, 3, 6): self.stamp({0: 3, 3: 4, 6: 5}[c])
            if c == 0 and self.npre == 2:
                for x in self.dma_group(n2): a(x)
            if c + 3 <= 6:
                for x in self.dma_group(n2): a(x)
                for x in self.gate_write(c + 3): a(x)
            if c == 5:
                ln = a.newlabel("L_nw")
                a("s_cmp_eq_u32 s3, 0"); a("s_cbranch_scc0 %s" % ln)
                self.poll_nonce()
                a("v_mov_b32 v12, %d" % L_NON); a("v_mov_b32 v13, s%d" % S_NONCE); a("ds_write_b32 v12, v13")
                a.label(ln)

    def o_slot_addr(self, dst):
        a = self.a
        a("s_lshl_b32 s48, s4, 1"); a("s_lshr_b32 s49, s3, 1"); a("s_add_u32 s48, s48, s49"); a("s_lshl_b32 s48, s48, 4")
        a("s_lshl_b32 s49, s5, 1"); a("s_add_u32 s48, s48, s49"); a("s_and_b32 s49, s3, 1"); a("s_add_u32 s48, s48, s49")
        a("s_lshl_b32 s48, s48, 11"); a("s_add_u32 s%d, s48, %d" % (dst, WS_O))

    def loader7(self, gate_loads):
        a = self.a
        def xgrp(k):
            a("s_add_u32 m0, s%d, %d" % (S_M0, k * 8192)); a("s_add_u32 s48, s%d, %d" % (S_SO, 128 * k))
            for i in range(4): a("buffer_load_dwordx4 v%d, s[%d:%d], s48 offen offset:%d lds" % (V_D + i, S_D, S_D + 3, 1024 * i))
        def kvgrp(k):
            a("s_add_u32 m0, s%d, %d" % (S_M02, (k % 4) * SLOT + (k // 4) * 8192)); a("s_add_u32 s48, s%d, %d" % (S_SO2, 3584 * k))
            for i in range(2): a("buffer_load_dwordx4 v%d, s[%d:%d], s48 offen offset:%d lds" % (V_D2 + i, S_D2, S_D2 + 3, 1024 * i))
        def wqgrp(k):
            a("s_add_u32 m0, s%d, %d" % (S_M0, (k % 4) * SLOT)); a("s_add_u32 s48, s%d, %d" % (S_SO, 64 * 896 * k))
            a("s_mov_b64 exec, s[%d:%d]" % (S_DM, S_DM + 1))
            for i in range(4): a("buffer_load_dwordx4 v%d, s[%d:%d], s48 offen offset:%d lds" % (V_D + i, S_D, S_D + 3, 1024 * i))
            a("s_mov_b64 exec, -1")
        a("s_cmp_ge_u32 s3, 2"); a("s_cbranch_scc1 L7_w")
        for k in range(7): xgrp(k); kvgrp(k)
        self.rest_setup(True)
        for c in range(7):
            a("s_waitcnt vmcnt(%d)" % (6 * (6 - c)))
            if c == 0: self.stamp(2)
            if c == 6:
                ln = a.newlabel("L_nw7")
                a("s_cmp_eq_u32 s3, 1"); a("s_cbranch_scc0 %s" % ln)
                self.poll_nonce()
                a("v_mov_b32 v12, %d" % L_NON); a("v_mov_b32 v13, s%d" % S_NONCE); a("ds_write_b32 v12, v13"); a("s_waitcnt lgkmcnt(0)")
                a.label(ln)
            a("s_barrier")
            if c in (0, 3, 6): self.stamp({0: 3, 3: 4, 6: 5}[c])
        for c in range(7):
            a("s_barrier")
            if c == 1:
                srd(a, S_T2, P_WO, 448 * 896)
                a("s_lshr_b32 s48, s4, 1"); a("s_mul_i32 s48, s48, 28"); a("s_and_b32 s49, s4, 1"); a("s_lshl_b32 s49, s49, 4"); a("s_add_u32 s48, s48, s49")
                a("s_lshl_b32 s49, s3, 3"); a("s_add_u32 s48, s48, s49"); a("s_mul_i32 s48, s48, 896")
                a("s_mul_i32 s49, s3, %d" % SLOT); a("s_add_u32 s49, s49, %d" % (L_RING + 8192))
                a("s_mov_b32 exec_hi, 0xffffff")
                for i in range(8):
                    a("s_add_u32 m0, s49, %d" % (i * 1024)); a("s_add_u32 s50, s48, %d" % (i * 896))
                    a("buffer_load_dwordx4 v2, s[%d:%d], s50 offen lds" % (S_T2, S_T2 + 3))
                a("s_mov_b64 exec, -1")
        a("s_branch L_aq")
        a.label("L7_w")
        for k in range(7): kvgrp(k)
        gate_loads()
        for k in range(3): wqgrp(k)
        self.rest_setup(True)
        for c in range(7):
            a("s_waitcnt vmcnt(%d)" % (2 * (6 - c) + 7 + 12))
            a("s_barrier")
        for c in range(7):
            later = min(6, c + 2) - c
            a("s_waitcnt vmcnt(%d)" % (4 * later))
            if c == 0:
                for cc in range(3):
                    for x in self.gate_write(cc): a(x)
            a("s_waitcnt lgkmcnt(0)")
            a("s_barrier")
            if c + 3 <= 6:
                wqgrp(c + 3)
                for x in self.gate_write(c + 3): a(x)

    def compute7(self, isv):
        a = self.a
        XP, BF, TRQ, RE, QA = 16, 20, 28, 32, 192
        def base(c): return 64 if c % 2 == 0 else 128
        def readsA(c):
            sl = c % 4; off = (sl % 2) * SLOT + (c // 4) * 8192; hi2 = sl // 2
            b = base(c); o = []
            for s in range(4):
                o.append("ds_read_b128 v[%d:%d], v%d offset:%d" % (b + 4*s, b + 4*s + 3, XP + s, L_X + c * 8192))
                o.append("ds_read_b64_tr_b16 v[%d:%d], v%d offset:%d" % (b + 16 + 4*s, b + 16 + 4*s + 1, BF + hi2, off + 16 * s * 56))
                o.append("ds_read_b64_tr_b16 v[%d:%d], v%d offset:%d" % (b + 16 + 4*s + 2, b + 16 + 4*s + 3, BF + hi2, off + 16 * s * 56 + 4 * 56))
            return o
        def mfA(c):
            b = base(c); o = []
            for s in range(4):
                cc = "0" if (c == 0 and s == 0) else vr(RE, 16)
                if isv: o.append("%s %s, %s, %s, %s" % (MF, vr(RE, 16), vr(b + 4*s, 4), vr(b + 16 + 4*s, 4), cc))
                else:   o.append("%s %s, %s, %s, %s" % (MF, vr(RE, 16), vr(b + 16 + 4*s, 4), vr(b + 4*s, 4), cc))
            return o
        def readsB(c):
            sl = c % 4; off = (sl % 2) * SLOT; hi2 = sl // 2
            b = base(c); o = []
            for s in range(4):
                o.append("ds_read_b128 v[%d:%d], v%d offset:%d" % (b + 4*s, b + 4*s + 3, XP + s, L_X + c * 8192))
                o.append("ds_read_b64_tr_b16 v[%d:%d], v%d offset:%d" % (b + 48 + 4*s, b + 48 + 4*s + 1, TRQ + hi2, off + 16 * s * 128))
                o.append("ds_read_b64_tr_b16 v[%d:%d], v%d offset:%d" % (b + 48 + 4*s + 2, b + 48 + 4*s + 3, TRQ + hi2, off + 16 * s * 128 + 512))
            return o
        def mfB(c):
            b = base(c)
            return ["%s %s, %s, %s, %s" % (MF, vr(QA, 16), vr(b + 48 + 4*s, 4), vr(b + 4*s, 4), "0" if (c == 0 and s == 0) else vr(QA, 16)) for s in range(4)]
        for c in range(8):
            a("s_waitcnt lgkmcnt(0)")
            rd, mm = [], []
            if c <= 6:
                if c == 0: self.stamp(2)
                a("s_barrier")
                if c in (0, 3, 6): self.stamp({0: 3, 3: 4, 6: 5}[c])
                rd = readsA(c)
            if c >= 1: mm = mfA(c - 1)
            interleave(a, mm, rd)
        if isv: self.v_epilogue()
        else: self.k_epilogue()
        self.stamp(6)
        for c in range(8):
            a("s_waitcnt lgkmcnt(0)")
            rd, mm = [], []
            if c <= 6:
                a("s_barrier")
                rd = readsB(c)
            if c >= 1: mm = mfB(c - 1)
            interleave(a, mm, rd)
            if c == self.kvflag_at:
                a("s_waitcnt vmcnt(0)")
                a("v_mov_b32 v12, %d" % L_NON); a("ds_read_b32 v61, v12"); a("s_waitcnt lgkmcnt(0)")
                a("s_lshl_b32 s48, s4, 2"); a("s_add_u32 s48, s48, s3"); a("s_sub_u32 s48, s48, 4"); a("s_lshl_b32 s48, s48, 3"); a("s_add_u32 s48, s48, %d" % WS_KF)
                a("v_lshlrev_b32 v12, 10, v1"); a("s_mov_b32 exec_hi, 0")
                a("buffer_store_dwordx2 v[60:61], v12, s[%d:%d], s48 offen sc1" % (S_WS, S_WS + 3))
                a("s_mov_b64 exec, -1")
                self.stamp(8)

    def compute_loop(self, mode, extra=None, fuse_q=False):
        a = self.a
        XP, BF, TRQ, RE, IM, QA = 16, 20, 28, 32, 48, 192
        def base(c): return 64 if c % 2 == 0 else 128
        def reads(c):
            sl = c % 4; off = (sl % 2) * SLOT; hi2 = sl // 2
            b = base(c); o = []
            for s in range(4):
                o.append("ds_read_b128 v[%d:%d], v%d offset:%d" % (b + 4*s, b + 4*s + 3, XP + s, L_X + c * 8192))
                o.append("ds_read_b64_tr_b16 v[%d:%d], v%d offset:%d" % (b + 48 + 4*s, b + 48 + 4*s + 1, TRQ + hi2, off + 16 * s * 128))
                o.append("ds_read_b64_tr_b16 v[%d:%d], v%d offset:%d" % (b + 48 + 4*s + 2, b + 48 + 4*s + 3, TRQ + hi2, off + 16 * s * 128 + 512))
                if mode == 'gen':
                    bf = BF + 4 * hi2
                    o.append("ds_read_b128 v[%d:%d], v%d offset:%d" % (b + 16 + 4*s, b + 16 + 4*s + 3, bf + s, off))
                    o.append("ds_read_b128 v[%d:%d], v%d offset:%d" % (b + 32 + 4*s, b + 32 + 4*s + 3, bf + s, off + 8192))
                else:
                    o.append("ds_read_b64_tr_b16 v[%d:%d], v%d offset:%d" % (b + 16 + 4*s, b + 16 + 4*s + 1, BF + hi2, off + 16 * s * 56))
                    o.append("ds_read_b64_tr_b16 v[%d:%d], v%d offset:%d" % (b + 16 + 4*s + 2, b + 16 + 4*s + 3, BF + hi2, off + 16 * s * 56 + 4 * 56))
            return o
        def mfmas(c):
            b = base(c); o = []
            for s in range(4):
                z = (c == 0 and s == 0)
                x = vr(b + 4*s, 4)
                if mode == 'gen':
                    o.append("%s %s, %s, %s, %s" % (MF, vr(RE, 16), x, vr(b + 16 + 4*s, 4), "0" if z else vr(RE, 16)))
                    o.append("%s %s, %s, %s, %s" % (MF, vr(IM, 16), x, vr(b + 32 + 4*s, 4), "0" if z else vr(IM, 16)))
                elif mode == 'k':
                    o.append("%s %s, %s, %s, %s" % (MF, vr(RE, 16), vr(b + 16 + 4*s, 4), x, "0" if z else vr(RE, 16)))
                else:
                    o.append("%s %s, %s, %s, %s" % (MF, vr(RE, 16), x, vr(b + 16 + 4*s, 4), "0" if z else vr(RE, 16)))
                o.append("%s %s, %s, %s, %s" % (MF, vr(QA, 16), vr(b + 48 + 4*s, 4), x, "0" if z else vr(QA, 16)))
            return o
        for c in range(8):
            rd, mm = [], []
            if self.fine and c <= 6: self.stampc(34 + 3 * c)
            a("s_waitcnt lgkmcnt(0)")
            if c <= 6:
                if self.fine: self.stampc(35 + 3 * c)
                if c == 0: self.stamp(2)
                a("s_barrier")
                if self.fine: self.stampc(36 + 3 * c)
                if c in (0, 3, 6): self.stamp({0: 3, 3: 4, 6: 5}[c])
                rd = reads(c)
            if c >= 1: mm = mfmas(c - 1)
            if c == 7 and mode == 'gen' and fuse_q:
                qm = [m for m in mm if ("v[%d:%d], v[" % (QA, QA + 15)) in m.split(",")[0] + ", v["]
                qm = [m for m in mm if m.split()[1].startswith("v[%d:" % QA)]
                om = [m for m in mm if not m.split()[1].startswith("v[%d:" % QA)]
                for m in qm: a(m)
                for m in om[:3]: a(m)
                a("s_nop 7"); a("s_nop 0")
                interleave(a, om[3:], self.q_epi_part1(nops=False))
                self.q_epi_part2()
            else:
                interleave(a, mm, rd)
            if extra and c in extra: extra[c]()

    def h_common_setup(self):
        a = self.a
        a("v_and_b32 v12, 31, v1"); a("v_bfe_u32 v13, v12, 2, 1"); a("v_lshlrev_b32 v13, 4, v13")
        a("v_lshrrev_b32 v14, 3, v12"); a("v_lshl_add_u32 v13, v14, 2, v13"); a("v_and_b32 v14, 3, v12"); a("v_add_u32 v13, v13, v14")
        a("v_mov_b32 v30, v13")
        a("s_sub_u32 s48, s3, 4"); a("s_lshr_b32 s48, s48, 1"); a("s_lshl_b32 s48, s48, 5")
        a("v_add_u32 v13, s48, v13"); a("v_lshrrev_b32 v14, 5, v1")
        self.xfrag_addrs(16)
        self.tr_base(28, 128)
        a("s_and_b32 s48, s3, 1"); a("s_mul_i32 s48, s48, 56"); a("s_add_u32 s48, s48, %d" % L_RING)
        a("v_add_u32 v28, s48, v28"); a("v_add_u32 v29, %d, v28" % (2 * SLOT))

    def pack_acc(self, acc, dst):
        for i in range(8): self.a("v_cvt_pk_bf16_f32 v%d, v%d, v%d" % (dst + i, acc + 2*i, acc + 2*i + 1))

    def norm2(self, P, out, tmp):
        a = self.a
        a("v_dot2_f32_bf16 v%d, v%d, v%d, v%d" % (out, P, P, V_ZERO))
        a("v_dot2_f32_bf16 v%d, v%d, v%d, v%d" % (tmp, P + 1, P + 1, V_ZERO))
        for i in range(2, 8, 2):
            a("v_dot2_f32_bf16 v%d, v%d, v%d, v%d" % (out, P + i, P + i, out))
            a("v_dot2_f32_bf16 v%d, v%d, v%d, v%d" % (tmp, P + i + 1, P + i + 1, tmp))
        a("s_nop 2")
        a("v_add_f32 v%d, v%d, v%d" % (out, out, tmp))
        a("v_mov_b32 v%d, v%d" % (tmp, out))
        a("s_nop 1")
        a("v_permlane32_swap_b32 v%d, v%d" % (out, tmp))
        a("s_nop 1")
        a("v_add_f32 v%d, v%d, v%d" % (out, out, tmp))

    def q_epi_part1(self, nops=True):
        save = self.a; self.a = Asm(); a = self.a
        ACC, P = 192, 224
        hi = "s[%d:%d]" % (S_HI, S_HI + 1)
        a("s_mov_b32 s48, 0x%x" % f2u(QSCALE))
        if nops: a("s_nop 7"); a("s_nop 5")
        a("v_mov_b32 v236, v%d" % (ACC + 12))
        for r in range(16): a("v_mul_f32 v%d, s48, v%d" % (ACC + r, ACC + r))
        self.pack_acc(ACC, P)
        a("v_cndmask_b32 v%d, v%d, v%d, %s" % (P + 6, P + 6, V_ZERO, hi))
        a("v_cndmask_b32 v%d, v%d, v%d, %s" % (P + 7, P + 7, V_ZERO, hi))
        a("s_sub_u32 s48, s3, 4"); a("s_lshl_b32 s48, s48, 11"); a("s_add_u32 s48, s48, %d" % L_QF)
        a("v_add_u32 v12, s48, v2")
        a("ds_write_b128 v12, v[%d:%d]" % (P, P + 3))
        a("s_mov_b32 s50, 0x%x" % f2u(-LOG2E))
        a("v_mul_f32 v236, s50, v236"); a("v_exp_f32 v236, v236")
        self.norm2(P, 232, 233)
        a("v_add_f32 v236, 1.0, v236")
        a("v_sqrt_f32 v232, v232")
        a("v_rcp_f32 v236, v236")
        a("s_mov_b32 s48, 0x%x" % f2u(1.0 + 2.0 ** -6))
        a("v_mul_f32 v232, s48, v232")
        a("v_cvt_pk_bf16_f32 v234, v232, v%d" % V_ZERO)
        a("v_cndmask_b32 v%d, v%d, v234, %s" % (P + 6, P + 6, hi))
        a("ds_write_b128 v12, v[%d:%d] offset:1024" % (P + 4, P + 7))
        lines = [l.strip() for l in a.lines]
        self.a = save
        return lines
    def q_epi_part2(self):
        a = self.a
        hi = "s[%d:%d]" % (S_HI, S_HI + 1)
        a("s_bitcmp1_b32 s3, 0")
        lab = a.newlabel("L_nog")
        a("s_cbranch_scc0 %s" % lab)
        a("s_sub_u32 s48, s3, 4"); a("s_lshr_b32 s48, s48, 1"); a("s_lshl_b32 s48, s48, 7"); a("s_add_u32 s48, s48, %d" % L_G)
        a("v_lshlrev_b32 v13, 2, v30"); a("v_add_u32 v13, s48, v13")
        a("s_mov_b64 exec, %s" % hi)
        a("ds_write_b32 v13, v236")
        a("s_mov_b64 exec, -1")
        a.label(lab)
    def q_epilogue(self):
        for l in self.q_epi_part1(): self.a(l)
        self.q_epi_part2()

    def kv_store(self, P, off):
        a = self.a
        a("s_sub_u32 s52, s3, 4"); a("s_lshr_b32 s52, s52, 1"); a("s_lshl_b32 s53, s4, 1"); a("s_add_u32 s52, s52, s53")
        a("s_lshl_b32 s52, s52, 12"); a("s_add_u32 s52, s52, %d" % (WS_KV + off))
        a("buffer_store_dwordx4 v[%d:%d], v2, s[%d:%d], s52 offen sc1" % (P, P + 3, S_WS, S_WS + 3))
        a("buffer_store_dwordx4 v[%d:%d], v2, s[%d:%d], s52 offen offset:1024 sc1" % (P + 4, P + 7, S_WS, S_WS + 3))

    def k_epilogue(self):
        a = self.a
        ACC, P = 32, 48
        hi = "s[%d:%d]" % (S_HI, S_HI + 1)
        a("v_mov_b32 v58, 0x3f803f80"); a("v_mov_b32 v59, 0x3f80")
        a("s_nop 7"); a("s_nop 5")
        self.pack_acc(ACC, P)
        a("v_cndmask_b32 v62, v%d, v%d, %s" % (P + 6, V_ZERO, hi)); a("v_cndmask_b32 v63, v%d, v%d, %s" % (P + 7, V_ZERO, hi))
        a("v_cndmask_b32 v%d, v%d, v58, %s" % (P + 6, P + 6, hi)); a("v_cndmask_b32 v%d, v%d, v59, %s" % (P + 7, P + 7, hi))
        self.kv_store(P, 0)
        a("v_dot2_f32_bf16 v56, v62, v62, v%d" % V_ZERO); a("v_dot2_f32_bf16 v57, v63, v63, v%d" % V_ZERO)
        for i in range(0, 6, 2):
            a("v_dot2_f32_bf16 v56, v%d, v%d, v56" % (P + i, P + i)); a("v_dot2_f32_bf16 v57, v%d, v%d, v57" % (P + i + 1, P + i + 1))
        a("s_nop 2"); a("v_add_f32 v56, v56, v57"); a("v_mov_b32 v57, v56"); a("s_nop 1")
        a("v_permlane32_swap_b32 v56, v57"); a("s_nop 1"); a("v_add_f32 v56, v56, v57")
        for sh in (1, 2, 4, 8):
            a("s_nop 1"); a("v_max_f32_dpp v56, v56, v56 row_shr:%d row_mask:0xf bank_mask:0xf" % sh)
        a("s_nop 1")
        a("v_readlane_b32 s48, v56, 15"); a("v_readlane_b32 s49, v56, 31"); a("s_nop 3")
        a("s_max_u32 s48, s48, s49"); a("v_mov_b32 v60, s48")

    def v_epilogue(self):
        a = self.a
        ACC, P = 32, 48
        a("s_mov_b32 s48, 0x10000000"); a("s_mov_b32 s49, 0x10000000"); a("s_mov_b32 s50, 0xe0000000"); a("s_mov_b32 s51, 0xe0000000")
        a("v_mov_b32 v58, 0x3f803f80")
        a("s_nop 7"); a("s_nop 5")
        self.pack_acc(ACC, P)
        for i in range(8):
            a("v_cndmask_b32 v%d, v%d, v58, s[48:49]" % (P + i, P + i))
            a("v_cndmask_b32 v%d, v%d, v%d, s[50:51]" % (P + i, P + i, V_ZERO))
        self.kv_store(P, 2048)
        a("v_mov_b32 v60, 0")

    def params_load(self):
        a = self.a
        a("s_and_b32 s48, s3, 1"); a("s_lshl_b32 s48, s48, 5"); a("s_lshl_b32 s49, s5, 6"); a("s_add_u32 s48, s48, s49")
        a("v_and_b32 v12, 31, v1"); a("v_add_lshl_u32 v12, v12, s48, 1")
        for reg, p in ((208, P_LRE), (209, P_LIM), (210, P_LDT), (211, P_DSK)):
            srd(a, S_T2, p, 896); a("buffer_load_ushort v%d, v12, s[%d:%d], 0 offen" % (reg, S_T2, S_T2 + 3))

    def csq(self, dr, di, sr_, si):
        a = self.a
        a("v_mul_f32 v%d, v%d, v%d" % (di, si, si)); a("v_fma_f32 v%d, v%d, v%d, -v%d" % (dr, sr_, sr_, di))
        a("v_mul_f32 v%d, v%d, v%d" % (di, sr_, si)); a("v_add_f32 v%d, v%d, v%d" % (di, di, di))

    def params_compute(self):
        a = self.a
        LR, LI, CR, CI, L16R, L16I, MUR, MUI, M2R, M2I, L32R, L32I = range(212, 224)
        T = 224
        a("v_lshlrev_b32 v208, 16, v208"); a("v_lshlrev_b32 v209, 16, v209"); a("v_lshlrev_b32 v210, 16, v210")
        a("s_mov_b32 s48, 0x%x" % f2u(LOG2E))
        a("v_mul_f32 v210, s48, v210"); a("v_exp_f32 v210, v210"); a("s_nop 0")
        a("v_cvt_pk_bf16_f32 v210, v210, v%d" % V_ZERO); a("v_lshlrev_b32 v210, 16, v210")
        a("v_mul_f32 v%d, v210, v208" % T); a("v_mul_f32 v%d, v210, v209" % (T + 1))
        a("v_mul_f32 v%d, s48, v%d" % (T, T)); a("v_exp_f32 v%d, v%d" % (T, T))
        a("v_mul_f32 v%d, 0.15915494, v%d" % (T + 1, T + 1)); a("v_fract_f32 v%d, v%d" % (T + 1, T + 1))
        a("v_cos_f32 v%d, v%d" % (T + 2, T + 1)); a("v_sin_f32 v%d, v%d" % (T + 1, T + 1)); a("s_nop 0")
        a("v_mul_f32 v%d, v%d, v%d" % (LR, T, T + 2)); a("v_mul_f32 v%d, v%d, v%d" % (LI, T, T + 1))
        a("v_add_f32 v%d, -1.0, v%d" % (T, LR))
        a("v_mul_f32 v%d, v208, v208" % (T + 1)); a("v_fma_f32 v%d, v209, v209, v%d" % (T + 1, T + 1)); a("v_rcp_f32 v%d, v%d" % (T + 1, T + 1))
        a("v_mul_f32 v%d, v%d, v208" % (T + 2, T)); a("v_fma_f32 v%d, v%d, v209, v%d" % (T + 2, LI, T + 2))
        a("v_mul_f32 v%d, v%d, v208" % (T + 3, LI)); a("v_fma_f32 v%d, -v%d, v209, v%d" % (T + 3, T, T + 3))
        a("v_mul_f32 v%d, v%d, v%d" % (CR, T + 2, T + 1)); a("v_mul_f32 v%d, v%d, v%d" % (CI, T + 3, T + 1))
        a("v_lshlrev_b32 v9, 16, v211"); a("v_mul_f32 v9, 0.5, v9"); a("v_mov_b32 v8, v9")
        self.csq(T, T + 1, LR, LI); self.csq(T + 2, T + 3, T, T + 1); self.csq(T, T + 1, T + 2, T + 3)
        self.csq(L16R, L16I, T, T + 1); self.csq(L32R, L32I, L16R, L16I); self.csq(MUR, MUI, L32R, L32I); self.csq(M2R, M2I, MUR, MUI)

    def scan_step(self, er, ur, ui, dst):
        a = self.a
        a("v_fma_f32 v%d, v212, v%d, v%d" % (dst, er, ur)); a("v_fma_f32 v%d, v212, v%d, v%d" % (dst + 1, er + 1, ui))
        a("v_fma_f32 v%d, -v213, v%d, v%d" % (dst, er + 1, dst)); a("v_fma_f32 v%d, v213, v%d, v%d" % (dst + 1, er, dst + 1))

    def h_epilogue_pass1(self):
        a = self.a
        RE, IM = 32, 48
        a("s_nop 7"); a("s_nop 5")
        for r in range(16):
            a("v_mul_f32 v12, v215, v%d" % (IM + r)); a("v_mul_f32 v13, v215, v%d" % (RE + r))
            a("v_fma_f32 v%d, v214, v%d, -v12" % (RE + r, RE + r)); a("v_fma_f32 v%d, v214, v%d, v13" % (IM + r, IM + r))
        a("v_mov_b32 v12, v%d" % RE); a("v_mov_b32 v13, v%d" % IM)
        cur = 12
        for r in range(1, 16):
            nxt = 10 if cur == 12 else 12
            self.scan_step(cur, RE + r, IM + r, nxt); cur = nxt
        if cur != 12: a("v_mov_b32 v12, v10"); a("v_mov_b32 v13, v11")
        a("s_sub_u32 s48, s3, 4"); a("s_lshr_b32 s49, s48, 1"); a("s_and_b32 s48, s48, 1")
        a("s_lshl_b32 s49, s49, 10"); a("s_lshl_b32 s48, s48, 8"); a("s_add_u32 s48, s48, s49"); a("s_add_u32 s48, s48, %d" % L_SEG)
        a("v_lshrrev_b32 v14, 5, v1"); a("v_lshlrev_b32 v14, 9, v14"); a("v_and_b32 v15, 31, v1"); a("v_lshl_add_u32 v14, v15, 3, v14")
        a("v_add_u32 v14, s48, v14")
        a("ds_write_b64 v14, v[12:13]")

    def poll_nonce(self):
        a = self.a
        lab = a.newlabel("L_pn"); done = a.newlabel("L_pnd")
        a("v_mov_b32 v12, 124"); a("s_mov_b32 s48, 0x100000")
        a.label(lab)
        a("buffer_load_dword v13, v12, s[%d:%d], 0 offen sc1" % (S_DBG, S_DBG + 3))
        a("s_waitcnt vmcnt(0)")
        a("v_readfirstlane_b32 s%d, v13" % S_NONCE)
        a("s_sub_u32 s48, s48, 1"); a("s_cbranch_scc1 %s" % done)
        a("s_cmp_eq_u32 s%d, 0" % S_NONCE); a("s_cbranch_scc1 %s" % lab)
        a.label(done)
    def lds_inc(self, cnt):
        a = self.a
        a("v_mov_b32 v12, %d" % (L_CNT + 4 * cnt)); a("v_mov_b32 v13, 1"); a("s_mov_b64 exec, 1")
        a("ds_add_u32 v12, v13"); a("s_mov_b64 exec, -1")
    def lds_wait(self, cnt, target, sleep=0):
        a = self.a
        lab = a.newlabel("L_lw"); done = a.newlabel("L_lwd")
        a("v_mov_b32 v12, %d" % (L_CNT + 4 * cnt)); a("s_mov_b32 s48, 0x400000")
        a.label(lab)
        a("ds_read_b32 v13, v12"); a("s_waitcnt lgkmcnt(0)"); a("v_readfirstlane_b32 s49, v13")
        a("s_sub_u32 s48, s48, 1"); a("s_cbranch_scc1 %s" % done)
        a("s_cmp_ge_u32 s49, %s" % target); a("s_cbranch_scc1 %s" % done)
        if sleep: a("s_sleep %d" % sleep)
        a("s_branch %s" % lab)
        a.label(done)
    def poll_flags(self, ws_off, mask_lo, sleep=1):
        a = self.a
        lab = a.newlabel("L_pf"); done = a.newlabel("L_pfd")
        a("s_lshl_b32 s50, s4, 7"); a("s_add_u32 s50, s50, %d" % ws_off)
        a("v_lshlrev_b32 v12, 2, v1"); a("s_mov_b32 s48, 0x100000")
        a("s_mov_b32 exec_lo, 0x%x" % mask_lo); a("s_mov_b32 exec_hi, 0")
        a.label(lab)
        a("buffer_load_dword v13, v12, s[%d:%d], s50 offen sc1" % (S_WS, S_WS + 3))
        a("s_waitcnt vmcnt(0)")
        a("v_cmp_ne_u32 vcc, s%d, v13" % S_NONCE)
        a("s_sub_u32 s48, s48, 1"); a("s_cbranch_scc1 %s" % done)
        a("s_nop 2"); a("s_cbranch_vccz %s" % done)
        a("s_sleep %d" % sleep); a("s_branch %s" % lab)
        a.label(done)
        a("s_mov_b64 exec, -1")
    def flag_store(self, ws_off, idx_sreg):
        a = self.a
        a("s_lshl_b32 s50, s4, 7"); a("s_lshl_b32 s51, s%d, 2" % idx_sreg); a("s_add_u32 s50, s50, s51"); a("s_add_u32 s50, s50, %d" % ws_off)
        a("v_mov_b32 v12, s50"); a("v_mov_b32 v13, s%d" % S_NONCE); a("s_mov_b64 exec, 1")
        a("buffer_store_dword v13, v12, s[%d:%d], 0 offen sc1" % (S_WS, S_WS + 3))
        a("s_mov_b64 exec, -1")
    def hexit(self, k):
        if self.hstop == k:
            a = self.a
            if k < 3: self.lds_inc(5)
            a("s_waitcnt vmcnt(0) lgkmcnt(0)"); self.stamp_flush(); a("s_endpgm")
    def zero_if_wave4(self, hp7=False):
        a = self.a
        lz = a.newlabel("L_nz")
        a("s_cmp_eq_u32 s3, 4"); a("s_cbranch_scc0 %s" % lz)
        self.zero_counters()
        if hp7:
            for _ in range(4): self.lds_inc(5)
        a.label(lz)
    def zero_counters(self):
        a = self.a
        a("v_lshlrev_b32 v12, 2, v1"); a("v_add_u32 v12, %d, v12" % L_CNT); a("ds_write_b32 v12, v%d" % V_ZERO)

    def text(self, lds=L_TOTAL):
        hdr = "; @launch grid=(256,1,1) block=(512,1,1) lds=%d\n" % lds
        hdr += '.amdgcn_target "amdgcn-amd-amdhsa--gfx950"\n' + kernel_header(NAME)
        return hdr + self.a.text() + kernel_footer(NAME, 256)

    def build(self):
        a = self.a
        self.prologue()
        self.a_setup()
        srd(a, S_T, P_GW, 896)
        a("s_and_b32 s48, s3, 1"); a("s_lshl_b32 s48, s48, 5"); a("v_and_b32 v12, 31, v1"); a("v_add_u32 v12, s48, v12")
        a("v_lshlrev_b32 v10, 7, v12"); a("v_add_u32 v10, 112, v10"); a("v_lshlrev_b32 v12, 1, v12")
        a("s_cmp_ge_u32 s3, 2"); a("s_cselect_b32 s60, -1, 0"); a("s_mov_b32 s61, 0")
        a("v_mov_b32 v239, v12")
        def gate_loads():
            a("s_lshl_b32 s52, s%d, 7" % S_C0)
            for k in range(7):
                a("buffer_load_ushort v%d, v239, s[%d:%d], s52 offen" % (V_GATE + k, S_T, S_T + 3))
                if k < 6: a("s_add_u32 s52, s52, 128"); a("s_cmp_eq_u32 s52, 896"); a("s_cselect_b32 s52, 0, s52")
        a("s_cmp_eq_u32 s5, 7"); a("s_cbranch_scc1 L_a7")
        n2 = 4
        self.stamp(22)
        for x in self.dma_group(n2): a(x)
        self.stamp(23)
        gate_loads()
        for c in range(1, self.npre):
            for x in self.dma_group(n2): a(x)
        self.stamp(24)
        self.rest_setup(False)
        self.loader_loop(n2)
        a("s_branch L_aq")
        a.label("L_a7")
        self.loader7(gate_loads)
        a.label("L_aq")
        self.attention_wave()
        a.label("L_hw")
        a("s_waitcnt lgkmcnt(0)")
        srd(a, S_WS, P_WS, WS_SIZE_DBG if self.debug else WS_END); srd(a, S_DBG, P_DBG, 256)
        if self.tlbwarm:
            lw = a.newlabel("L_tw")
            a("s_cmp_eq_u32 s3, 4"); a("s_cbranch_scc0 %s" % lw)
            a("s_sleep 3")
            a("v_lshlrev_b32 v12, 21, v1"); a("s_mov_b64 exec, 0xf")
            a("buffer_load_dword v240, v12, s[%d:%d], 0 offen sc1" % (S_WS, S_WS + 3))
            srd(a, S_T, P_OUT, 2048 * 448 * 4); a("s_mov_b64 exec, 0x3")
            a("buffer_load_dword v241, v12, s[%d:%d], 0 offen sc1" % (S_T, S_T + 3))
            a("s_mov_b64 exec, 1")
            for n, p in enumerate((P_CRE, P_CIM, P_WO)):
                srd(a, S_T, p, 448 * 896); a("buffer_load_dword v%d, v12, s[%d:%d], 0 offen" % (242 + n, S_T, S_T + 3))
            a("buffer_load_dword v245, v12, s[%d:%d], 0 offen sc1" % (S_DBG, S_DBG + 3))
            a("s_mov_b64 exec, -1")
            a.label(lw)
        if self.codewarm:
            lcw = a.newlabel("L_cw")
            a("s_cmp_eq_u32 s3, 5"); a("s_cbranch_scc0 %s" % lcw)
            a("s_getpc_b64 s[50:51]")
            a.label("L_pc_here")
            a("s_sub_u32 s50, s50, L_pc_here-%s" % NAME); a("s_subb_u32 s51, s51, 0")
            a("s_lshr_b32 s48, s2, 3"); a("s_lshl_b32 s48, s48, 11")
            a("v_lshlrev_b32 v12, 7, v1"); a("v_add_u32 v12, s48, v12")
            a("s_mov_b32 s49, L_code_end-%s" % NAME)
            a("v_cmp_gt_u32 vcc, s49, v12"); a("s_nop 1"); a("s_and_b32 vcc_lo, vcc_lo, 0xffff"); a("s_mov_b32 vcc_hi, 0")
            a("s_and_saveexec_b64 s[52:53], vcc"); a("s_cbranch_execz %s_r" % lcw)
            a("global_load_dword v246, v12, s[50:51]")
            a.label(lcw + "_r")
            a("s_mov_b64 exec, s[52:53]")
            a.label(lcw)
        a("s_sub_u32 s3, s3, 4"); self.o_slot_addr(52); a("s_add_u32 s3, s3, 4")
        for i in range(4): a("v_mov_b32 v%d, -1" % (232 + i))
        a("buffer_store_dwordx4 v[232:235], v2, s[%d:%d], s52 offen sc1" % (S_WS, S_WS + 3))
        a("buffer_store_dwordx4 v[232:235], v2, s[%d:%d], s52 offen offset:1024 sc1" % (S_WS, S_WS + 3))
        a("s_cmp_eq_u32 s5, 7"); a("s_cbranch_scc1 L_hw7")
        self.zero_if_wave4()
        self.h_common_setup()
        if self.pdelay: a("s_sleep %d" % self.pdelay)
        self.params_load()
        a("s_and_b32 s48, s3, 1"); a("s_lshl_b32 s48, s48, 5")
        a("v_and_b32 v13, 31, v1"); a("v_add_u32 v13, s48, v13"); a("v_lshrrev_b32 v14, 5, v1")
        self.xfrag_addrs(20, add_const=L_RING + 8192)
        for s in range(4): a("v_add_u32 v%d, %d, v%d" % (24 + s, 2 * SLOT, 20 + s))
        def ctouch():
            a("s_cmp_ge_u32 s3, 6")
            a("s_cselect_b32 s%d, s%d, s%d" % (S_T2, P_CIM, P_CRE)); a("s_cselect_b32 s%d, s%d, s%d" % (S_T2 + 1, P_CIM + 1, P_CRE + 1))
            a("s_mov_b32 s%d, 0x%x" % (S_T2 + 2, 448 * 896)); a("s_mov_b32 s%d, 0x20000" % (S_T2 + 3))
            a("s_and_b32 s48, s4, 3"); a("s_lshl_b32 s48, s48, 1"); a("s_and_b32 s49, s3, 1"); a("s_add_u32 s48, s48, s49"); a("s_mul_i32 s48, s48, %d" % (56 * 128))
            a("s_mul_i32 s49, s5, %d" % (64 * 896)); a("s_add_u32 s48, s48, s49")
            st = self.tstride; sh = {128: 7, 64: 6, 32: 5}[st]
            a("v_lshlrev_b32 v12, %d, v1" % sh)
            n = (7168 + 64 * st - 1) // (64 * st)
            for i in range(n):
                left = (7168 - i * 64 * st) // st
                if left < 64:
                    lo = min(left, 32); hi_ = max(0, left - 32)
                    a("s_mov_b32 exec_lo, 0x%x" % ((1 << lo) - 1 if lo < 32 else 0xffffffff)); a("s_mov_b32 exec_hi, 0x%x" % ((1 << hi_) - 1))
                a("buffer_load_dword v240, v12, s[%d:%d], s48 offen offset:%d" % (S_T2, S_T2 + 3, 0) if i == 0 else "s_add_u32 s48, s48, %d\nbuffer_load_dword v240, v12, s[%d:%d], s48 offen" % (64 * st, S_T2, S_T2 + 3))
            a("s_mov_b64 exec, -1")
        self.compute_loop('gen', extra={1: lambda: (a("s_waitcnt vmcnt(0)"), self.params_compute()), self.ctouch_at: ctouch}, fuse_q=True)
        a("s_waitcnt lgkmcnt(0)"); self.stamp(6)
        a("s_barrier")
        self.stamp(7)
        self.helper_wave()
        a.label("L_hw7")
        self.zero_if_wave4(hp7=True)
        self.h_common_setup()
        self.tr_base(20, 56)
        a("s_and_b32 s48, s3, 1"); a("s_lshl_b32 s48, s48, 12"); a("s_add_u32 s48, s48, %d" % (L_RING + 8192))
        a("v_add_u32 v20, s48, v20"); a("v_add_u32 v21, %d, v20" % (2 * SLOT))
        a("s_bitcmp1_b32 s3, 0"); a("s_cbranch_scc1 L_hw7v")
        self.compute7(False)
        a("s_branch L_hw7d")
        a.label("L_hw7v")
        self.compute7(True)
        a.label("L_hw7d")
        self.q_epilogue()
        a("s_waitcnt vmcnt(0) lgkmcnt(0)")
        a("s_barrier")
        self.stamp(7)
        L_W7 = L_RING + 8192
        a("v_mov_b32 v12, %d" % L_NON); a("ds_read_b32 v13, v12"); a("s_waitcnt lgkmcnt(0)"); a("v_readfirstlane_b32 s%d, v13" % S_NONCE)
        a("s_sub_u32 s61, s3, 4")
        self.lds_wait(14, 2, sleep=2)
        self.tr_base(16, 1024, rows_per_hf=4)
        a("s_lshl_b32 s48, s61, 7"); a("s_add_u32 s48, s48, %d" % L_W7); a("v_add_u32 v16, s48, v16")
        for jj in range(2):
            lsk = a.newlabel("L_w7s")
            if jj == 1: a("s_cmp_eq_u32 s61, 3"); a("s_cbranch_scc1 %s" % lsk) if jj == 1 else None
            for cp in range(2):
                off = jj * 512 + cp * 64
                r = 32 + (jj * 2 + cp) * 4
                a("ds_read_b64_tr_b16 v[%d:%d], v16 offset:%d" % (r, r + 1, off))
                a("ds_read_b64_tr_b16 v[%d:%d], v16 offset:%d" % (r + 2, r + 3, off + SLOT))
            a("s_add_u32 s48, s61, %d" % (4 * jj)); a("s_lshl_b32 s48, s48, 5"); a("s_add_u32 s48, s48, s4"); a("s_lshl_b32 s48, s48, 11"); a("s_add_u32 s48, s48, %d" % WS_WO)
            a("s_waitcnt lgkmcnt(0)")
            for cp in range(2):
                r = 32 + (jj * 2 + cp) * 4
                a("buffer_store_dwordx4 v[%d:%d], v2, s[%d:%d], s48 offen offset:%d sc1" % (r, r + 3, S_WS, S_WS + 3, cp * 1024))
            if jj == 1: a.label(lsk)
        a("s_waitcnt vmcnt(0)")
        a("s_lshl_b32 s48, s4, 2"); a("s_add_u32 s48, s48, s61"); a("s_lshl_b32 s48, s48, 2"); a("s_add_u32 s48, s48, %d" % WS_WF)
        a("v_mov_b32 v12, s48"); a("v_mov_b32 v13, s%d" % S_NONCE); a("s_mov_b64 exec, 1")
        a("buffer_store_dword v13, v12, s[%d:%d], 0 offen sc1" % (S_WS, S_WS + 3))
        a("s_mov_b64 exec, -1")
        self.lds_wait(7, 256, sleep=16)
        lwf = a.newlabel("L_w7f"); lwd = a.newlabel("L_w7fd")
        a("v_lshlrev_b32 v12, 2, v1"); a("s_mov_b32 s48, 0x10000"); a("s_mov_b32 s50, %d" % WS_WF)
        a.label(lwf)
        a("buffer_load_dword v13, v12, s[%d:%d], s50 offen sc1" % (S_WS, S_WS + 3))
        a("buffer_load_dword v14, v12, s[%d:%d], s50 offen offset:256 sc1" % (S_WS, S_WS + 3))
        a("s_waitcnt vmcnt(0)")
        a("v_xor_b32 v13, s%d, v13" % S_NONCE); a("v_xor_b32 v14, s%d, v14" % S_NONCE); a("v_or_b32 v13, v13, v14")
        a("v_cmp_ne_u32 vcc, 0, v13")
        a("s_sub_u32 s48, s48, 1"); a("s_cbranch_scc1 %s" % lwd)
        a("s_nop 2"); a("s_cbranch_vccz %s" % lwd)
        a("s_sleep 16"); a("s_branch %s" % lwf)
        a.label(lwd)
        a("s_and_b32 s48, s4, 3"); a("s_lshl_b32 s48, s48, 2"); a("s_add_u32 s48, s48, s61"); a("s_mul_i32 s48, s48, %d" % (224 * 128)); a("s_add_u32 s48, s48, %d" % WS_WO)
        a("v_lshlrev_b32 v12, 7, v1")
        for i in range(4):
            if i == 3: a("s_mov_b32 exec_hi, 0")
            a("s_add_u32 s49, s48, %d" % (i * 8192))
            a("buffer_load_dword v%d, v12, s[%d:%d], s49 offen sc1" % (100 + i, S_WS, S_WS + 3))
        a("s_mov_b64 exec, -1")
        self.stamp_flush()
        a.label("L_exit")
        a("s_endpgm")
        a.label("L_code_end")

    def attention_wave(self):
        a = self.a
        R = attn.AttnRegs(16)
        hi = "s[%d:%d]" % (S_HI, S_HI + 1)
        a("v_lshlrev_b32 v11, 3, v1")
        a("v_and_b32 v12, 31, v1"); a("v_bfe_u32 v13, v12, 2, 1"); a("v_lshlrev_b32 v13, 4, v13")
        a("v_lshrrev_b32 v14, 3, v12"); a("v_lshl_add_u32 v13, v14, 2, v13"); a("v_and_b32 v14, 3, v12"); a("v_add_u32 v13, v13, v14")
        a("s_lshr_b32 s48, s3, 1"); a("s_lshl_b32 s48, s48, 7"); a("s_add_u32 s48, s48, %d" % L_G)
        a("v_lshlrev_b32 v13, 2, v13"); a("v_add_u32 v10, s48, v13")
        for r in range(64): a("v_mov_b32 v%d, 0" % (R.O + r))
        a("s_mov_b32 s59, 0")
        a("s_mov_b32 s58, 0")
        L_KB = L_CNT + 128
        le = a.newlabel("L_kve")
        a("s_lshl_b32 s50, s4, 10"); a("s_add_u32 s50, s50, %d" % WS_KF)
        a("s_cmp_eq_u32 s3, 0"); a("s_cbranch_scc0 %s" % le)
        a("buffer_load_dwordx2 v[6:7], v11, s[%d:%d], s50 offen sc1" % (S_WS, S_WS + 3))
        a("buffer_load_dwordx2 v[4:5], v11, s[%d:%d], s50 offen offset:512 sc1" % (S_WS, S_WS + 3))
        a.label(le)
        a("v_mov_b32 v14, %d" % L_NON)
        self.stamp(6); self.stampc(33)
        a("s_barrier")
        self.gstamp(1); self.stamp(7)
        a("ds_read_b32 v13, v14")
        for s in range(4):
            a("s_xor_b32 s48, s3, %d" % ((s + 1) & 3)); a("s_lshl_b32 s48, s48, 11"); a("s_add_u32 s48, s48, %d" % L_QF)
            a("v_add_u32 v12, s48, v2")
            a("ds_read_b128 v[%d:%d], v12" % (R.Q + s*8, R.Q + s*8 + 3))
            a("ds_read_b128 v[%d:%d], v12 offset:1024" % (R.Q + s*8 + 4, R.Q + s*8 + 7))
        a("ds_read_b32 v10, v10")
        a("s_setprio 3")
        a("s_waitcnt lgkmcnt(9)")
        a("v_readfirstlane_b32 s%d, v13" % S_NONCE)
        lw = a.newlabel("L_kvw"); lb = a.newlabel("L_kvb")
        a("s_cmp_eq_u32 s3, 0"); a("s_cbranch_scc0 %s" % lw)
        lab = a.newlabel("L_pkv"); done = a.newlabel("L_pkvd")
        a("s_mov_b32 s48, 0x100000")
        a.label(lab)
        a("s_waitcnt vmcnt(0)")
        a("v_xor_b32 v12, s%d, v7" % S_NONCE); a("v_xor_b32 v13, s%d, v5" % S_NONCE); a("v_or_b32 v12, v12, v13")
        a("v_cmp_ne_u32 vcc, 0, v12")
        a("s_sub_u32 s48, s48, 1"); a("s_cbranch_scc1 %s" % done)
        a("s_nop 2"); a("s_cbranch_vccz %s" % done)
        a("buffer_load_dwordx2 v[6:7], v11, s[%d:%d], s50 offen sc1" % (S_WS, S_WS + 3))
        a("buffer_load_dwordx2 v[4:5], v11, s[%d:%d], s50 offen offset:512 sc1" % (S_WS, S_WS + 3))
        a("s_branch %s" % lab)
        a.label(done)
        a("v_max_f32 v13, v6, v4")
        for sh in (1, 2, 4, 8):
            a("s_nop 1"); a("v_max_f32_dpp v13, v13, v13 row_shr:%d row_mask:0xf bank_mask:0xf" % sh)
        a("s_nop 1")
        a("v_readlane_b32 s48, v13, 15"); a("v_readlane_b32 s49, v13, 31"); a("v_readlane_b32 s51, v13, 47"); a("v_readlane_b32 s52, v13, 63"); a("s_nop 3")
        a("s_max_u32 s48, s48, s51"); a("s_max_u32 s49, s49, s52"); a("s_max_u32 s48, s48, s49"); a("s_or_b32 s57, s48, 1")
        a("v_mov_b32 v14, s57"); a("v_mov_b32 v12, %d" % L_KB)
        a("ds_write_b32 v12, v14")
        a("s_branch %s" % lb)
        a.label(lw)
        lsp = a.newlabel("L_kvs"); lsd = a.newlabel("L_kvsd")
        a("s_waitcnt vmcnt(0)")
        a("v_mov_b32 v12, %d" % L_KB); a("s_mov_b32 s49, 0x400000")
        a.label(lsp)
        a("ds_read_b32 v14, v12"); a("s_waitcnt lgkmcnt(0)")
        a("v_readfirstlane_b32 s57, v14")
        a("s_sub_u32 s49, s49, 1"); a("s_cbranch_scc1 %s" % lsd)
        a("s_cmp_eq_u32 s57, 0"); a("s_cbranch_scc1 %s" % lsp)
        a.label(lsd)
        a.label(lb)
        self.stamp(9)
        def patch():
            l1 = a.newlabel("L_pt")
            a("s_cmp_eq_u32 s59, 0"); a("s_cbranch_scc0 %s" % l1)
            a("s_waitcnt lgkmcnt(0)")
            self.lds_inc(10)
            lwr = a.newlabel("L_wrs")
            a("s_cmp_eq_u32 s5, 7"); a("s_cbranch_scc0 %s" % lwr)
            a("s_cmp_lt_u32 s3, 2"); a("s_cbranch_scc0 %s" % lwr)
            self.lds_inc(14)
            a.label(lwr)
            a("v_mov_b32 v13, s57"); a("v_sqrt_f32 v13, v13")
            a("s_mov_b32 s49, 0x%x" % f2u(-(1.0 + 2.0 ** -6))); a("s_nop 0")
            a("v_mul_f32 v13, s49, v13")
            for s in range(4):
                q = R.Q + s*8 + 6
                a("v_lshlrev_b32 v12, 16, v%d" % q); a("v_mul_f32 v12, v12, v13")
                a("v_cvt_pk_bf16_f32 v12, v12, v%d" % V_ZERO)
                a("v_cndmask_b32 v%d, v%d, v12, %s" % (q, q, hi))
            a.label(l1)
        a("s_setprio 1")
        a.label("L_attn_entry")
        a("s_lshl_b32 s60, s3, 16"); a("s_add_u32 s60, s60, %d" % WS_KV)
        self.gstamp(2); self.stamp(10); self.stampc(30)
        a("v_mov_b32 v8, %d" % (L_CNT + 28)); a("v_mov_b32 v9, 1")
        attn.attn_loop(a, R, 2, S_WS, 60, zero_o=False, pre=patch, progress="ds_add_u32 v8, v9")
        a("s_setprio 3")
        a("s_nop 7"); a("s_nop 5")
        self.lds_inc(6)
        self.stampc(31); self.gstamp(3); self.stamp(11)
        self.lds_wait(5, 4)
        a("v_lshlrev_b32 v14, 2, v1")
        for s in range(3):
            a("s_xor_b32 s48, s3, %d" % (s + 1)); a("s_mul_i32 s48, s48, %d" % (3 * RT)); a("s_add_u32 s48, s48, %d" % (L_RED + s * RT))
            a("v_add_u32 v12, s48, v2"); a("v_add_u32 v13, s48, v14")
            for k in range(3):
                a("ds_write_b128 v12, v[%d:%d] offset:%d" % (R.O + s*16 + 4*k, R.O + s*16 + 4*k + 3, k * 1024))
            a("s_mov_b32 exec_hi, 0")
            a("ds_write_b128 v12, v[%d:%d] offset:3072" % (R.O + s*16 + 12, R.O + s*16 + 15))
            a("s_mov_b64 exec, %s" % hi)
            a("ds_write_b32 v13, v%d offset:%d" % (R.O + s*16 + 12, 3584 - 128))
            a("s_mov_b64 exec, -1")
        a("s_waitcnt lgkmcnt(0)")
        self.stamp(14)
        self.lds_inc(0)
        a("s_lshl_b32 s57, s59, 2"); a("s_add_u32 s57, s57, 4")
        self.lds_wait(0, "s57")
        self.stamp(15)
        a("s_mul_i32 s48, s3, %d" % (3 * RT)); a("s_add_u32 s48, s48, %d" % L_RED)
        a("v_add_u32 v12, s48, v2"); a("v_add_u32 v13, s48, v14")
        T = R.KV
        for s in range(3):
            for k in range(3):
                a("ds_read_b128 v[%d:%d], v12 offset:%d" % (T + s*16 + 4*k, T + s*16 + 4*k + 3, s * RT + k * 1024))
            a("s_mov_b32 exec_hi, 0")
            a("ds_read_b128 v[%d:%d], v12 offset:%d" % (T + s*16 + 12, T + s*16 + 15, s * RT + 3072))
            a("s_mov_b64 exec, %s" % hi)
            a("ds_read_b32 v%d, v13 offset:%d" % (T + s*16 + 12, s * RT + 3584 - 128))
            a("s_mov_b64 exec, -1")
        O = R.O + 48
        for s in range(3):
            a("s_waitcnt lgkmcnt(%d)" % (10 - 5 * s))
            for r in range(16):
                a("v_add_f32 v%d, v%d, v%d" % (O + r, O + r, T + s*16 + r))
        self.stamp(12)
        a("v_mov_b32 v12, v%d" % (O + 12)); a("v_mov_b32 v13, v%d" % (O + 12)); a("s_nop 1")
        a("v_permlane32_swap_b32 v12, v13"); a("s_nop 1")
        a("s_mov_b32 s48, 0x%x" % f2u(2.0 ** -40)); a("s_mov_b32 s49, 0x7f800000")
        a("v_cmp_le_f32 s[50:51], s48, v13"); a("v_cmp_gt_f32 vcc, s49, v13")
        a("v_rcp_f32 v13, v13"); a("s_nop 1")
        a("s_and_b64 vcc, vcc, s[50:51]"); a("s_cmp_eq_u64 vcc, -1"); a("s_cselect_b32 s56, 0, 1")
        a("s_cmp_eq_u32 s59, 0"); a("s_cselect_b32 s56, s56, 0")
        if self.force_redo: a("s_cmp_eq_u32 s59, 0"); a("s_cselect_b32 s56, 1, 0")
        a("s_lshl_b32 s48, s56, 8"); a("s_add_u32 s48, s48, 1")
        a("v_mov_b32 v14, s48"); a("v_mov_b32 v15, %d" % (L_CNT + 36)); a("s_mov_b64 exec, 1"); a("ds_add_u32 v15, v14"); a("s_mov_b64 exec, -1")
        lskip = a.newlabel("L_nopub")
        a("s_or_b32 s48, s56, s58"); a("s_cmp_lg_u32 s48, 0"); a("s_cbranch_scc1 %s" % lskip)
        a("v_mul_f32 v12, v13, v10"); a("v_mul_f32 v13, v13, v10")
        for r in range(16): a("v_mul_f32 v%d, v12, v%d" % (O + r, O + r))
        P = R.P
        for i in range(8): a("v_cvt_pk_bf16_f32 v%d, v%d, v%d" % (P + i, O + 2*i, O + 2*i + 1))
        a("v_cndmask_b32 v%d, v%d, v%d, %s" % (P + 6, P + 6, V_ZERO, hi)); a("v_cndmask_b32 v%d, v%d, v%d, %s" % (P + 7, P + 7, V_ZERO, hi))
        self.o_slot_addr(52)
        a("buffer_store_dwordx4 v[%d:%d], v2, s[%d:%d], s52 offen sc1" % (P, P + 3, S_WS, S_WS + 3))
        a("buffer_store_dwordx4 v[%d:%d], v2, s[%d:%d], s52 offen offset:1024 sc1" % (P + 4, P + 7, S_WS, S_WS + 3))
        self.stamp(13)
        a("s_mov_b32 s58, 1")
        a.label(lskip)
        lv = a.newlabel("L_vd"); lvd = a.newlabel("L_vdd")
        a("v_mov_b32 v12, %d" % (L_CNT + 36)); a("s_mov_b32 s49, 0x400000")
        a.label(lv)
        a("ds_read_b32 v13, v12"); a("s_waitcnt lgkmcnt(0)"); a("v_readfirstlane_b32 s48, v13")
        a("s_sub_u32 s49, s49, 1"); a("s_cbranch_scc1 %s" % lvd)
        a("s_and_b32 s50, s48, 0xff"); a("s_cmp_lt_u32 s50, s57"); a("s_cbranch_scc1 %s" % lv)
        a.label(lvd)
        a("s_lshr_b32 s48, s48, 8"); a("s_cmp_eq_u32 s59, 0"); a("s_cselect_b32 s48, s48, 0")
        a("s_cmp_lg_u32 s48, 0"); a("s_cbranch_scc1 L_redo")
        self.lds_inc(4)
        self.stamp_flush()
        a("s_endpgm")
        a.label("L_redo")
        MX = R.S + 16
        for s in range(4):
            q = R.Q + s*8 + 6
            a("v_cndmask_b32 v%d, v%d, v%d, %s" % (q, q, V_ZERO, hi)); a("v_cndmask_b32 v%d, v%d, v%d, %s" % (q + 1, q + 1, V_ZERO, hi))
            a("v_mov_b32 v%d, 0xff800000" % (MX + s))
        a("s_lshl_b32 s60, s3, 16"); a("s_add_u32 s60, s60, %d" % WS_KV); a("s_mov_b32 s61, 16")
        a.label("L_mx")
        a("buffer_load_dwordx4 v[%d:%d], v2, s[%d:%d], s60 offen sc1" % (R.KV, R.KV + 3, S_WS, S_WS + 3))
        a("buffer_load_dwordx4 v[%d:%d], v2, s[%d:%d], s60 offen offset:1024 sc1" % (R.KV + 4, R.KV + 7, S_WS, S_WS + 3))
        a("s_waitcnt vmcnt(0)")
        for s in range(4):
            a("%s %s, %s, %s, 0" % (MF, vr(R.S, 16), vr(R.KV, 4), vr(R.Q + s*8, 4)))
            a("%s %s, %s, %s, %s" % (MF, vr(R.S, 16), vr(R.KV + 4, 4), vr(R.Q + s*8 + 4, 4), vr(R.S, 16)))
            a("s_nop 7"); a("s_nop 7")
            for r in range(0, 16, 2): a("v_max3_f32 v%d, v%d, v%d, v%d" % (MX + s, MX + s, R.S + r, R.S + r + 1))
        a("s_add_u32 s60, s60, 4096"); a("s_sub_u32 s61, s61, 1"); a("s_cmp_lg_u32 s61, 0"); a("s_cbranch_scc1 L_mx")
        a("v_and_b32 v14, 31, v1"); a("v_lshlrev_b32 v14, 2, v14")
        for s in range(4):
            a("v_mov_b32 v12, v%d" % (MX + s)); a("s_nop 1"); a("v_permlane32_swap_b32 v%d, v12" % (MX + s)); a("s_nop 1")
            a("v_max_f32 v%d, v%d, v12" % (MX + s, MX + s))
            a("s_xor_b32 s48, s3, %d" % ((s + 1) & 3)); a("s_lshl_b32 s48, s48, 2"); a("s_add_u32 s48, s48, s3"); a("s_lshl_b32 s48, s48, 7"); a("s_add_u32 s48, s48, %d" % L_RED)
            a("v_add_u32 v15, s48, v14"); a("ds_write_b32 v15, v%d" % (MX + s))
        a("s_waitcnt lgkmcnt(0)")
        self.lds_inc(11)
        self.lds_wait(11, 4)
        for s in range(4):
            a("s_xor_b32 s48, s3, %d" % ((s + 1) & 3)); a("s_lshl_b32 s48, s48, 9"); a("s_add_u32 s48, s48, %d" % L_RED)
            a("v_add_u32 v15, s48, v14")
            for w in range(4): a("ds_read_b32 v%d, v15 offset:%d" % (R.S + w, w * 128))
            a("s_waitcnt lgkmcnt(0)")
            a("v_max3_f32 v12, v%d, v%d, v%d" % (R.S, R.S + 1, R.S + 2)); a("v_max_f32 v12, v12, v%d" % (R.S + 3))
            a("v_sub_f32 v12, 0, v12")
            a("v_and_b32 v13, 0xffff0000, v12"); a("v_sub_f32 v12, v12, v13")
            a("v_and_b32 v15, 0xffff0000, v12"); a("v_sub_f32 v12, v12, v15")
            a("v_lshrrev_b32 v13, 16, v13"); a("v_or_b32 v13, v13, v15")
            a("v_lshrrev_b32 v12, 16, v12")
            q = R.Q + s*8 + 6
            a("v_cndmask_b32 v%d, v%d, v13, %s" % (q, q, hi)); a("v_cndmask_b32 v%d, v%d, v12, %s" % (q + 1, q + 1, hi))
        self.lds_inc(12)
        self.lds_wait(12, 4)
        for r in range(64): a("v_mov_b32 v%d, 0" % (R.O + r))
        a("s_mov_b32 s59, 1")
        a("s_setprio 1")
        a("s_branch L_attn_entry")

    def helper_wave(self):
        a = self.a
        LR, LI, CR, CI, L16R, L16I, MUR, MUI, M2R, M2I, L32R, L32I = range(212, 224)
        SEGV, CACC, GR, DC, XR = 64, 128, 192, 208, 224
        hi = "s[%d:%d]" % (S_HI, S_HI + 1)
        a("s_sub_u32 s61, s3, 4"); a("s_lshr_b32 s62, s61, 1"); a("s_and_b32 s63, s61, 1")
        a("s_lshl_b32 s48, s62, 7"); a("s_add_u32 s48, s48, %d" % L_G)
        a("v_lshrrev_b32 v14, 5, v1"); a("v_lshlrev_b32 v13, 6, v14"); a("v_add_u32 v13, s48, v13")
        for aa in range(4): a("ds_read_b128 v[%d:%d], v13 offset:%d" % (GR + 4*aa, GR + 4*aa + 3, aa * 16))
        a("v_and_b32 v12, 31, v1"); a("v_lshrrev_b32 v13, 3, v12")
        a("v_and_b32 v12, 7, v1"); a("v_lshlrev_b32 v12, 1, v12"); a("v_lshl_add_u32 v12, v14, 11, v12")
        a("s_add_u32 s49, s5, 7"); a("s_sub_u32 s49, s49, s%d" % S_C0); a("s_cmp_ge_u32 s49, 7"); a("s_cselect_b32 s48, 7, 0"); a("s_sub_u32 s49, s49, s48")
        a("s_lshl_b32 s48, s62, 12"); a("s_lshl_b32 s49, s49, 13"); a("s_add_u32 s48, s48, s49"); a("s_lshl_b32 s49, s63, 6"); a("s_add_u32 s48, s48, s49")
        a("v_add_u32 v12, s48, v12")
        for j in range(4):
            a("v_xor_b32 v15, %d, v13" % j); a("v_lshl_add_u32 v%d, v15, 4, v12" % (72 + j)); a("v_xor_b32 v%d, 64, v%d" % (76 + j, 72 + j))
        for r in range(16):
            sw = r >> 1
            a("ds_read_u16 v%d, v%d offset:%d" % (XR + r, 72 + (sw & 3) + 4 * (sw >> 2), r * 128))
        a("s_setprio 3")
        self.stamp(8)
        self.hexit(0)
        self.h_epilogue_pass1()
        a("s_waitcnt lgkmcnt(0)")
        self.lds_inc(8)
        self.lds_wait(8, 4)
        a("s_lshl_b32 s48, s63, 8"); a("s_add_u32 s48, s48, %d" % L_SEG)
        a("v_and_b32 v13, 31, v1"); a("v_lshlrev_b32 v13, 3, v13"); a("v_add_u32 v13, s48, v13")
        for sg in range(4): a("ds_read_b64 v[%d:%d], v13 offset:%d" % (SEGV + 2*sg, SEGV + 2*sg + 1, sg * 512))
        a("s_waitcnt lgkmcnt(0)")
        def cmad(dr, di, ar, ai, mr, mi, er, ei):
            a("v_fma_f32 v%d, v%d, v%d, v%d" % (dr, ar, mr, er)); a("v_fma_f32 v%d, v%d, v%d, v%d" % (di, ai, mr, ei))
            a("v_fma_f32 v%d, -v%d, v%d, v%d" % (dr, ai, mi, dr)); a("v_fma_f32 v%d, v%d, v%d, v%d" % (di, ar, mi, di))
        e0, e1, e2, e3 = SEGV, SEGV + 2, SEGV + 4, SEGV + 6
        cmad(72, 73, e0, e0 + 1, L16R, L16I, e1, e1 + 1)
        cmad(74, 75, 72, 73, L16R, L16I, e2, e2 + 1)
        cmad(80, 81, 74, 75, L16R, L16I, e3, e3 + 1)
        a("v_mov_b32 v12, %d" % L_NON); a("ds_read_b32 v13, v12"); a("s_waitcnt lgkmcnt(0)"); a("v_readfirstlane_b32 s%d, v13" % S_NONCE)
        self.stamp(9)
        a("s_nop 1")
        a("v_mov_b32 v82, s%d" % S_NONCE); a("v_mov_b32 v83, s%d" % S_NONCE)
        a("v_mov_b32 v94, v80"); a("v_mov_b32 v95, v81")
        a("s_lshl_b32 s54, s5, 10"); a("s_lshl_b32 s49, s63, 9"); a("s_add_u32 s54, s54, s49")
        lne = a.newlabel("L_noE"); lz0 = a.newlabel("L_z0")
        a("s_mov_b32 exec_hi, 0")
        a("s_cmp_eq_u32 s62, 0"); a("s_cbranch_scc0 %s" % lz0)
        a("s_add_u32 s48, s4, 1"); a("s_mul_i32 s48, s48, 7168"); a("s_add_u32 s48, s48, s54"); a("s_add_u32 s48, s48, %d" % WS_E)
        a("buffer_store_dwordx4 v[80:83], v2, s[%d:%d], s48 offen sc1" % (S_WS, S_WS + 3))
        a("s_branch %s" % lne)
        a.label(lz0)
        a("s_cmp_eq_u32 s4, 0"); a("s_cbranch_scc0 %s" % lne)
        a("v_mov_b32 v80, 0"); a("v_mov_b32 v81, 0"); a("s_add_u32 s48, s54, %d" % WS_G)
        a("buffer_store_dwordx4 v[80:83], v2, s[%d:%d], s48 offen sc1" % (S_WS, S_WS + 3))
        a.label(lne)
        a("s_mov_b64 exec, -1")
        self.hexit(1)
        lr1 = a.newlabel("L_rt1"); lrd = a.newlabel("L_rtd")
        a("s_cmp_eq_u32 s62, 0"); a("s_cbranch_scc0 %s" % lr1)
        a("v_cndmask_b32 v76, v%d, v%d, %s" % (V_ZERO, e0, hi)); a("v_cndmask_b32 v77, v%d, v%d, %s" % (V_ZERO, e0 + 1, hi))
        a("v_mov_b32 v12, 1.0")
        a("v_cndmask_b32 v78, v12, v%d, %s" % (L16R, hi)); a("v_cndmask_b32 v79, v%d, v%d, %s" % (V_ZERO, L16I, hi))
        a("s_branch %s" % lrd)
        a.label(lr1)
        a("v_cndmask_b32 v76, v72, v74, %s" % hi); a("v_cndmask_b32 v77, v73, v75, %s" % hi)
        a("v_mul_f32 v12, v%d, v%d" % (L32R, L16R)); a("v_fma_f32 v12, -v%d, v%d, v12" % (L32I, L16I))
        a("v_mul_f32 v13, v%d, v%d" % (L32R, L16I)); a("v_fma_f32 v13, v%d, v%d, v13" % (L32I, L16R))
        a("v_cndmask_b32 v78, v%d, v12, %s" % (L32R, hi)); a("v_cndmask_b32 v79, v%d, v13, %s" % (L32I, hi))
        a.label(lrd)
        a("v_and_b32 v12, 31, v1"); a("v_lshrrev_b32 v13, 3, v12"); a("v_and_b32 v14, 7, v1"); a("v_lshlrev_b32 v14, 1, v14")
        a("v_lshrrev_b32 v15, 5, v1"); a("v_lshl_add_u32 v14, v15, 11, v14")
        a("s_lshl_b32 s55, s61, 12"); a("s_add_u32 s55, s55, %d" % L_RED); a("v_add_u32 v14, s55, v14")
        for jx in range(4):
            a("v_xor_b32 v15, %d, v13" % jx); a("v_lshl_add_u32 v%d, v15, 4, v14" % (86 + jx))
        a("v_mov_b32 v13, v30"); a("v_lshrrev_b32 v14, 5, v1")
        self.xfrag_addrs(90, add_sreg=55)
        def stage_group(j):
            a("s_add_u32 s52, s61, %d" % (4 * j)); a("s_and_b32 s51, s52, 1"); a("s_lshr_b32 s52, s52, 1")
            a("s_cmp_ge_u32 s52, 7")
            a("s_cselect_b32 s%d, s%d, s%d" % (S_T, P_CIM, P_CRE)); a("s_cselect_b32 s%d, s%d, s%d" % (S_T + 1, P_CIM + 1, P_CRE + 1))
            a("s_cselect_b32 s53, 7, 0")
            a("s_mov_b32 s%d, 0x%x" % (S_T + 2, 448 * 896)); a("s_mov_b32 s%d, 0x20000" % (S_T + 3))
            a("s_sub_u32 s53, s52, s53"); a("s_lshl_b32 s53, s53, 7"); a("s_mul_i32 s48, s5, %d" % (64 * 896)); a("s_add_u32 s53, s53, s48")
            a("s_mul_i32 s48, s51, %d" % (4 * 7168)); a("s_add_u32 s53, s53, s48")
            a("s_lshl_b32 s52, s52, 13"); a("s_lshl_b32 s51, s51, 12"); a("s_add_u32 m0, s52, s51"); a("s_nop 0")
            if self.stage_fake == 1: a("s_mov_b32 s53, 0")
            if self.stage_fake != 2:
                for i in range(4): a("buffer_load_dwordx4 v%d, s[%d:%d], s53 offen offset:%d lds" % (V_D + i, S_T, S_T + 3, 1024 * i))
            a("s_sleep %d" % self.spread)
        self.lds_wait(10, 4)
        if self.stage_early:
            for j in range(4): stage_group(j)
        else:
            a("s_sleep %d" % self.esleep)
        EB = 128
        a("s_and_b32 s56, s4, 3"); a("s_lshr_b32 s57, s4, 2")
        a("v_mov_b32 v80, 0"); a("v_mov_b32 v81, 0")
        a("v_and_b32 v12, 31, v1"); a("v_lshlrev_b32 v82, 4, v12")
        lp1d = a.newlabel("L_p1d")
        a("s_cmp_eq_u32 s56, 0"); a("s_cbranch_scc1 %s" % lp1d)
        a("s_lshl_b32 s55, s57, 2"); a("s_add_u32 s55, s55, 1"); a("s_mul_i32 s55, s55, 7168"); a("s_add_u32 s55, s55, s54"); a("s_add_u32 s55, s55, %d" % WS_E)
        a("s_mov_b32 s58, 0x40000")
        lp = a.newlabel("L_p1"); lld = a.newlabel("L_p1l"); lck = a.newlabel("L_p1c"); lok = a.newlabel("L_p1o")
        a.label(lp)
        a("s_mov_b32 s48, s55")
        for k in range(3):
            if k: a("s_cmp_le_u32 s56, %d" % k); a("s_cbranch_scc1 %s" % lld) if k else None
            a("buffer_load_dwordx4 v[%d:%d], v82, s[%d:%d], s48 offen sc1" % (EB + 4*k, EB + 4*k + 3, S_WS, S_WS + 3))
            a("s_add_u32 s48, s48, 7168")
        a.label(lld)
        a("s_waitcnt vmcnt(0)")
        a("v_xor_b32 v83, s%d, v%d" % (S_NONCE, EB + 2))
        for k in range(1, 3):
            a("s_cmp_le_u32 s56, %d" % k); a("s_cbranch_scc1 %s" % lck)
            a("v_xor_b32 v84, s%d, v%d" % (S_NONCE, EB + 4*k + 2)); a("v_or_b32 v83, v83, v84")
        a.label(lck)
        a("v_cmp_ne_u32 vcc, 0, v83")
        a("s_sub_u32 s58, s58, 1"); a("s_cbranch_scc1 %s" % lok)
        a("s_nop 2"); a("s_cbranch_vccz %s" % lok)
        a("s_sleep %d" % self.e_sleep); a("s_branch %s" % lp)
        a.label(lok)
        a("v_mov_b32 v80, v%d" % EB); a("v_mov_b32 v81, v%d" % (EB + 1))
        for k in range(1, 3):
            a("s_cmp_le_u32 s56, %d" % k); a("s_cbranch_scc1 %s" % lp1d)
            e = EB + 4 * k
            a("v_fma_f32 v84, v%d, v80, v%d" % (MUR, e)); a("v_fma_f32 v85, v%d, v81, v%d" % (MUR, e + 1))
            a("v_fma_f32 v84, -v%d, v81, v84" % MUI); a("v_fma_f32 v81, v%d, v80, v85" % MUI); a("v_mov_b32 v80, v84")
        a.label(lp1d)
        lng = a.newlabel("L_noG")
        a("s_cmp_eq_u32 s56, 3"); a("s_cbranch_scc0 %s" % lng)
        a("s_cmp_eq_u32 s62, 0"); a("s_cbranch_scc0 %s" % lng)
        cmad(EB, EB + 1, 80, 81, MUR, MUI, 94, 95)
        a("v_mov_b32 v%d, s%d" % (EB + 2, S_NONCE)); a("v_mov_b32 v%d, s%d" % (EB + 3, S_NONCE))
        a("s_add_u32 s48, s57, 1"); a("s_mul_i32 s48, s48, 7168"); a("s_add_u32 s48, s48, s54"); a("s_add_u32 s48, s48, %d" % WS_G)
        a("s_mov_b32 exec_hi, 0")
        a("buffer_store_dwordx4 v[%d:%d], v2, s[%d:%d], s48 offen sc1" % (EB, EB + 3, S_WS, S_WS + 3))
        a("s_mov_b64 exec, -1")
        a.label(lng)
        if self.stage_early:
            for j in range(4, 7): stage_group(j)
        else:
            self.lds_wait(7, 256, sleep=4)
            for j in range(7): stage_group(j)
        self.csq(96, 97, M2R, M2I); self.csq(98, 99, 96, 97)
        a("v_mov_b32 v100, 1.0"); a("v_mov_b32 v101, 0")
        lpw = a.newlabel("L_pw")
        a("s_cmp_eq_u32 s56, 0"); a("s_cbranch_scc1 %s" % lpw)
        a("v_mov_b32 v100, v%d" % MUR); a("v_mov_b32 v101, v%d" % MUI)
        a("s_cmp_eq_u32 s56, 1"); a("s_cbranch_scc1 %s" % lpw)
        a("v_mov_b32 v100, v%d" % M2R); a("v_mov_b32 v101, v%d" % M2I)
        a("s_cmp_eq_u32 s56, 2"); a("s_cbranch_scc1 %s" % lpw)
        a("v_mul_f32 v100, v%d, v%d" % (M2R, MUR)); a("v_fma_f32 v100, -v%d, v%d, v100" % (M2I, MUI))
        a("v_mul_f32 v101, v%d, v%d" % (M2R, MUI)); a("v_fma_f32 v101, v%d, v%d, v101" % (M2I, MUR))
        a.label(lpw)
        lnoh = a.newlabel("L_noH")
        a("s_cmp_eq_u32 s57, 0"); a("s_cbranch_scc1 %s" % lnoh)
        a("s_add_u32 s56, s57, 1"); a("s_lshr_b32 s56, s56, 1")
        a("v_mov_b32 v13, 7168"); a("v_cndmask_b32 v13, v13, v%d, %s" % (V_ZERO, hi)); a("v_add_u32 v82, v82, v13")
        a("s_sub_u32 s55, s57, 1"); a("s_mul_i32 s55, s55, 7168"); a("s_add_u32 s55, s55, s54"); a("s_add_u32 s55, s55, %d" % WS_G)
        if self.g_gate: self.lds_wait(7, self.g_gate, sleep=4)
        a("s_mov_b32 s58, 0x40000")
        lp = a.newlabel("L_pe"); lld = a.newlabel("L_pel"); lck = a.newlabel("L_pec"); lok = a.newlabel("L_peo")
        a.label(lp)
        a("s_mov_b32 s48, s55")
        for i in range(4):
            if i: a("s_cmp_le_u32 s56, %d" % i); a("s_cbranch_scc1 %s" % lld) if i else None
            a("buffer_load_dwordx4 v[%d:%d], v82, s[%d:%d], s48 offen sc1" % (EB + 4*i, EB + 4*i + 3, S_WS, S_WS + 3))
            a("s_sub_u32 s48, s48, 14336")
        a.label(lld)
        a("s_waitcnt vmcnt(0)")
        a("v_xor_b32 v83, s%d, v%d" % (S_NONCE, EB + 2))
        for i in range(1, 4):
            a("s_cmp_le_u32 s56, %d" % i); a("s_cbranch_scc1 %s" % lck)
            a("v_xor_b32 v84, s%d, v%d" % (S_NONCE, EB + 4*i + 2)); a("v_or_b32 v83, v83, v84")
        a.label(lck)
        a("v_cmp_ne_u32 vcc, 0, v83")
        a("s_sub_u32 s58, s58, 1"); a("s_cbranch_scc1 %s" % lok)
        a("s_nop 2"); a("s_cbranch_vccz %s" % lok)
        a("s_sleep %d" % self.g_sleep); a("s_branch %s" % lp)
        a.label(lok)
        self.stamp(10)
        a("v_mov_b32 v102, 0"); a("v_mov_b32 v103, 0")
        for i in range(3, -1, -1):
            ls = a.newlabel("L_hs")
            if i: a("s_cmp_le_u32 s56, %d" % i); a("s_cbranch_scc1 %s" % ls) if i else None
            e = EB + 4 * i
            a("v_fma_f32 v84, v98, v102, v%d" % e); a("v_fma_f32 v85, v98, v103, v%d" % (e + 1))
            a("v_fma_f32 v84, -v99, v103, v84"); a("v_fma_f32 v103, v99, v102, v85"); a("v_mov_b32 v102, v84")
            if i: a.label(ls)
        a("v_mul_f32 v84, v96, v102"); a("v_fma_f32 v84, -v97, v103, v84")
        a("v_mul_f32 v85, v96, v103"); a("v_fma_f32 v85, v97, v102, v85")
        a("v_cndmask_b32 v102, v102, v84, %s" % hi); a("v_cndmask_b32 v103, v103, v85, %s" % hi)
        a("v_mov_b32 v84, v102"); a("v_mov_b32 v85, v103"); a("s_nop 1")
        a("v_permlane32_swap_b32 v102, v84"); a("v_permlane32_swap_b32 v103, v85"); a("s_nop 1")
        a("v_add_f32 v102, v102, v84"); a("v_add_f32 v103, v103, v85")
        cmad(84, 85, 102, 103, 100, 101, 80, 81)
        a("v_mov_b32 v80, v84"); a("v_mov_b32 v81, v85")
        a.label(lnoh)
        self.hexit(2)
        cmad(12, 13, 80, 81, 78, 79, 76, 77)
        RE, IM = 32, 48
        cur = 12
        for r in range(16):
            nxt = 10 if cur == 12 else 12
            self.scan_step(cur, RE + r, IM + r, nxt); cur = nxt
            a("v_cvt_pk_bf16_f32 v%d, v%d, -v%d" % (RE + r, cur, cur + 1))
            sw = r >> 1
            a("ds_write_b16 v%d, v%d offset:%d" % (86 + (sw & 3), RE + r, r * 128 + ((0 ^ (sw >> 2)) * 64)))
            a("ds_write_b16_d16_hi v%d, v%d offset:%d" % (86 + (sw & 3), RE + r, r * 128 + ((1 ^ (sw >> 2)) * 64)))
        a("s_lshl_b32 s48, s4, 1"); a("s_add_u32 s48, s48, s62"); a("s_mul_i32 s48, s48, 56")
        a("s_lshl_b32 s49, s5, 2"); a("s_add_u32 s48, s48, s49"); a("s_lshl_b32 s49, s63, 1"); a("s_add_u32 s48, s48, s49")
        a("s_lshl_b32 s48, s48, 10"); a("s_add_u32 s48, s48, %d" % WS_H); a("s_add_u32 s49, s48, %d" % (28 * 1024))
        a("s_waitcnt lgkmcnt(0)")
        for s in range(4): a("ds_read_b128 v[%d:%d], v%d" % (64 + 4*s, 64 + 4*s + 3, 90 + s))
        a("s_waitcnt lgkmcnt(0)")
        a("buffer_store_dwordx4 v[64:67], v2, s[%d:%d], s48 offen sc1" % (S_WS, S_WS + 3))
        a("buffer_store_dwordx4 v[68:71], v2, s[%d:%d], s48 offen offset:1024 sc1" % (S_WS, S_WS + 3))
        a("buffer_store_dwordx4 v[72:75], v2, s[%d:%d], s49 offen sc1" % (S_WS, S_WS + 3))
        a("buffer_store_dwordx4 v[76:79], v2, s[%d:%d], s49 offen offset:1024 sc1" % (S_WS, S_WS + 3))
        self.lds_inc(5)
        self.stamp(11)
        a("s_waitcnt vmcnt(0)")
        self.stamp(12); self.gstamp(4)
        a("s_lshl_b32 s52, s5, 2"); a("s_add_u32 s52, s52, s61")
        self.flag_store(WS_HF, 52)
        a("s_lshl_b32 s48, s4, 1"); a("s_add_u32 s48, s48, s62"); a("s_mul_i32 s48, s48, 56")
        a("s_lshl_b32 s49, s5, 2"); a("s_add_u32 s48, s48, s49"); a("s_lshl_b32 s49, s63, 1"); a("s_add_u32 s48, s48, s49")
        a("s_lshl_b32 s48, s48, 10"); a("s_add_u32 s48, s48, %d" % WS_H)
        a("v_and_b32 v12, 15, v1"); a("v_lshlrev_b32 v12, 7, v12"); a("v_bfe_u32 v13, v1, 4, 1"); a("v_mul_u32_u24 v13, %d, v13" % (28 * 1024)); a("v_add_u32 v12, v12, v13")
        a("s_mov_b32 exec_hi, 0")
        a("buffer_load_dword v10, v12, s[%d:%d], s48 offen sc1" % (S_WS, S_WS + 3))
        a("s_mov_b64 exec, -1")
        self.hexit(7)
        HF, DB, XD = 16, 160, 208
        self.hexit(3)
        self.lds_wait(7, 512, sleep=8)
        a("s_mul_i32 s48, s63, %d" % (7 * 8192 + 4096))
        a("v_and_b32 v13, 31, v1"); a("v_lshrrev_b32 v14, 5, v1")
        self.xfrag_addrs(248, add_sreg=48)
        for s in range(4): a("v_xor_b32 v%d, 0x1000, v%d" % (252 + s, 248 + s))
        for r in range(16): a("v_lshlrev_b32 v%d, 16, v%d" % (XD + r, XR + r))
        for r in range(16): a("v_mul_f32 v%d, v9, v%d" % (XD + r, XD + r))
        for r in range(16): a("v_sub_f32 v%d, 1.0, v%d" % (GR + r, GR + r))
        for r in range(16): a("v_add_f32 v%d, v%d, v%d" % (GR + r, GR + r, GR + r))
        self.lds_wait(7, self.hf_gate, sleep=4)
        lwf = a.newlabel("L_wf"); lwd = a.newlabel("L_wfd")
        a("v_lshlrev_b32 v12, 2, v1"); a("s_mov_b32 s48, 0x100000"); a("s_mov_b32 s50, %d" % WS_WF)
        a("s_lshl_b32 s51, s4, 7"); a("s_add_u32 s51, s51, %d" % WS_HF)
        a("v_min_u32 v15, 27, v1"); a("v_lshlrev_b32 v15, 2, v15")
        a.label(lwf)
        a("buffer_load_dword v13, v12, s[%d:%d], s50 offen sc1" % (S_WS, S_WS + 3))
        a("buffer_load_dword v14, v12, s[%d:%d], s50 offen offset:256 sc1" % (S_WS, S_WS + 3))
        a("buffer_load_dword v10, v15, s[%d:%d], s51 offen sc1" % (S_WS, S_WS + 3))
        a("s_waitcnt vmcnt(0)")
        a("v_xor_b32 v13, s%d, v13" % S_NONCE); a("v_xor_b32 v14, s%d, v14" % S_NONCE); a("v_xor_b32 v10, s%d, v10" % S_NONCE); a("v_or3_b32 v13, v13, v14, v10")
        a("v_cmp_ne_u32 vcc, 0, v13")
        a("s_sub_u32 s48, s48, 1"); a("s_cbranch_scc1 %s" % lwd)
        a("s_nop 2"); a("s_cbranch_vccz %s" % lwd)
        a("s_sleep 12"); a("s_branch %s" % lwf)
        a.label(lwd)
        self.lds_inc(15)
        a("s_lshl_b32 s53, s5, 5"); a("s_lshl_b32 s48, s63, 4"); a("s_add_u32 s53, s53, s48"); a("s_lshl_b32 s53, s53, 11"); a("s_add_u32 s53, s53, %d" % WS_WO)
        a("s_lshl_b32 s48, s63, 10"); a("v_add_u32 v4, s48, v2"); a("v_xor_b32 v5, 0x400, v4")
        a("s_lshl_b32 s54, s4, 1"); a("s_add_u32 s54, s54, s62")
        a("s_mul_i32 s50, s54, %d" % (56 * 1024)); a("s_mul_i32 s49, s63, %d" % (28 * 1024)); a("s_add_u32 s50, s50, s49"); a("s_add_u32 s50, s50, %d" % WS_H)
        a("s_lshl_b32 s54, s54, 4"); a("s_lshl_b32 s49, s63, 3"); a("s_add_u32 s54, s54, s49"); a("s_lshl_b32 s54, s54, 11"); a("s_add_u32 s54, s54, %d" % WS_O)
        a("s_mov_b32 s56, s50")
        self.lds_wait(7, 1024, sleep=1)
        self.stamp(13)
        self.hexit(4)
        a("s_mov_b32 s50, s56")
        for n in range(28):
            a("buffer_load_dwordx4 v[%d:%d], v2, s[%d:%d], s50 offen offset:%d sc1" % (HF + 4*n, HF + 4*n + 3, S_WS, S_WS + 3, (n % 4) * 1024))
            if n % 4 == 3: a("s_add_u32 s50, s50, 4096")
        srd(a, S_T, P_OUT, 2048 * 448 * 4)
        a("v_lshrrev_b32 v12, 5, v1"); a("v_mul_u32_u24 v12, %d, v12" % (16 * 1792)); a("v_and_b32 v13, 31, v1"); a("v_lshl_add_u32 v11, v13, 2, v12")
        a("s_lshl_b32 s52, s4, 6"); a("s_lshl_b32 s49, s62, 5"); a("s_add_u32 s52, s52, s49"); a("s_mul_i32 s52, s52, 1792")
        a("s_lshl_b32 s49, s5, 8"); a("s_add_u32 s52, s52, s49"); a("s_lshl_b32 s49, s63, 7"); a("s_add_u32 s52, s52, s49")
        self.lds_wait(15, 4)
        self.hexit(5)
        self.lds_wait(6, 4, sleep=1)
        a("s_setprio 0")
        self.stamp(14)
        self.hexit(6)
        A0, A1 = CACC, CACC + 16
        bufs = [224, 232, 240, 160, 168, 176, 184]
        LA = 6
        def breads(n, buf):
            kc, s = n // 4, n % 4
            return ["ds_read_b128 v[%d:%d], v%d offset:%d" % (buf, buf + 3, 248 + s, kc * 8192), "ds_read_b128 v[%d:%d], v%d offset:%d" % (buf + 4, buf + 7, 252 + s, kc * 8192)]
        def wreg(ks, cp):
            m = 2 * ks + cp
            return 16 + 4 * m if m < 28 else XD + 4 * (m - 28)
        wstate = {"m": 0}
        def wload_next():
            m = wstate["m"]; wstate["m"] += 1
            ks, cp = m // 2, m % 2
            r = wreg(ks, cp)
            o = ["buffer_load_dwordx4 v[%d:%d], v%d, s[%d:%d], s53 offen offset:%d sc1" % (r, r + 3, 4 + cp, S_WS, S_WS + 3, (ks % 2) * 2048)]
            if m % 4 == 3: o.append("s_add_u32 s53, s53, 4096")
            return o
        for n in range(LA):
            for x in breads(n, bufs[n]): a(x)
        for n in range(28):
            nxt = breads(n + LA, bufs[(n + LA) % 7]) if n + LA < 28 else []
            outstanding_after = 2 * (min(27, n + LA - 1) - n)
            a("s_waitcnt vmcnt(%d) lgkmcnt(%d)" % (min(63, 27 - n + max(0, n - 1)), outstanding_after))
            b = bufs[n % 7]; h = HF + 4 * n
            mm = ["%s %s, %s, %s, %s" % (MF, vr(A0, 16), vr(h, 4), vr(b, 4), vr(XD, 16) if n == 0 else vr(A0, 16)),
                  "%s %s, %s, %s, %s" % (MF, vr(A1, 16), vr(h, 4), vr(b + 4, 4), "0" if n == 0 else vr(A1, 16))]
            ex = list(nxt)
            if n >= 1 and not self.wo_after: ex += wload_next()
            interleave(a, mm, ex)
        if self.wo_after: self.stamp(17)
        while wstate["m"] < 32:
            for x in wload_next(): a(x)
        self.stamp(15)
        a("s_nop 7"); a("s_nop 3")
        for r in range(16):
            a("v_mul_f32 v%d, v%d, v%d" % (A0 + r, GR + r, A0 + r)); a("v_mul_f32 v%d, v%d, v%d" % (A1 + r, GR + r, A1 + r))
        def oreg(ks): return 160 + 4 * ks if ks < 12 else 224 + 4 * (ks - 12)
        lo = a.newlabel("L_of"); lod = a.newlabel("L_ofd")
        a("s_mov_b32 s55, 0x40000")
        a.label(lo)
        a("s_mov_b32 s48, s54")
        for ks in range(16):
            r = oreg(ks)
            a("buffer_load_dwordx4 v[%d:%d], v2, s[%d:%d], s48 offen offset:%d sc1" % (r, r + 3, S_WS, S_WS + 3, (ks % 4) * 1024))
            if ks % 4 == 3: a("s_add_u32 s48, s48, 4096")
        a("v_mov_b32 v13, 0")
        for ks in range(16):
            if ks % 4 == 0: a("s_waitcnt vmcnt(%d)" % (12 - ks))
            a("v_max3_u32 v13, v13, v%d, v%d" % (oreg(ks), oreg(ks) + 3))
        a("v_cmp_eq_u32 vcc, -1, v13")
        a("s_sub_u32 s55, s55, 1"); a("s_cbranch_scc1 %s" % lod)
        a("s_nop 2"); a("s_cbranch_vccz %s" % lod)
        a("s_branch %s" % lo)
        a.label(lod)
        self.stamp(18)
        for ks in range(16):
            a("%s %s, %s, %s, %s" % (MF, vr(A1, 16), vr(oreg(ks), 4), vr(wreg(ks, 1), 4), vr(A1, 16)))
            a("%s %s, %s, %s, %s" % (MF, vr(A0, 16), vr(oreg(ks), 4), vr(wreg(ks, 0), 4), vr(A0, 16)))
        a("s_xor_b32 s48, s61, 1"); a("s_lshl_b32 s48, s48, 12"); a("s_add_u32 s48, s48, %d" % L_RED)
        self.lds_wait(4, 4)
        a("v_add_u32 v12, s48, v2") if False else None
        a("s_xor_b32 s48, s61, 1"); a("s_lshl_b32 s48, s48, 12"); a("s_add_u32 s48, s48, %d" % L_RED)
        a("v_add_u32 v14, s48, v2")
        a("s_nop 7")
        self.stamp(19)
        for k in range(4): a("ds_write_b128 v14, v[%d:%d] offset:%d" % (A1 + 4*k, A1 + 4*k + 3, k * 1024))
        a("s_waitcnt lgkmcnt(0)")
        self.lds_inc(3)
        self.lds_wait(3, 4)
        a("s_lshl_b32 s48, s61, 12"); a("s_add_u32 s48, s48, %d" % L_RED)
        a("v_add_u32 v12, s48, v2")
        for k in range(4): a("ds_read_b128 v[%d:%d], v12 offset:%d" % (16 + 4*k, 16 + 4*k + 3, k * 1024))
        for k in range(4):
            a("s_waitcnt lgkmcnt(%d)" % (3 - k))
            for r in range(4 * k, 4 * k + 4): a("v_add_f32 v%d, v%d, v%d" % (A0 + r, A0 + r, 16 + r))
            for r in range(4 * k, 4 * k + 4):
                if r % 2 == 0 and r > 0: a("s_add_u32 s52, s52, %d" % (2 * 1792))
                a("buffer_store_dword v%d, v11, s[%d:%d], s52 offen offset:%d" % (A0 + r, S_T, S_T + 3, (r % 2) * 1792))
        self.stamp(20)
        if self.gst:
            a("s_waitcnt vmcnt(0)"); self.gstamp(5)
        if self.stamps: a("s_waitcnt vmcnt(0)")
        self.stamp(21)
        self.stamp_flush()
        a("s_endpgm")

if __name__ == "__main__":
    k = K(debug=False, gst=("gst" in sys.argv))
    k.build()
    open("gated_mix__grouped_kv_mqa__ssm_conv_s5__prompt.s", "w").write(HEADER_COMMENT + k.text())
```
